```python
import torch

def _softmax(x, axis=-1):
    return torch.softmax(x, dim=axis)

def _gelu(x):
    return torch.nn.functional.gelu(x, approximate='tanh')

def _silu(x):
    return torch.nn.functional.silu(x)

def _sigmoid(x):
    return torch.sigmoid(x)

def _layernorm(x, axis=-1, eps=1e-05):
    m = x.mean(dim=axis, keepdim=True)
    v = x.var(dim=axis, keepdim=True, unbiased=False)
    return (x - m) / torch.sqrt(v + eps)

def _scatter_add(tgt, idx, src, axis=0):
    return tgt.clone().index_add_(axis, idx, src)

def _segment_sum(src, seg, n):
    out = torch.zeros((n,) + src.shape[1:], dtype=src.dtype)
    return out.index_add_(0, seg, src)

def _pad(x, pw):
    flat = tuple((v for pair in reversed(pw) for v in pair))
    return torch.nn.functional.pad(x, flat)
kernel_name = 'gated_mix__linear_kernel_hedgehog__memory_aug_recurrent_mem_tr__prompt'

def setup_inputs():

    _w = lambda a: (lambda t: t.to(torch.bfloat16) if t.is_floating_point() else t)(torch.as_tensor(a))

    def _A_setup():
        B, S, D, H = (1, 2048, 448, 16)
        Dh = D // H
        return {'x': _w((lambda *s: torch.randn(*s, dtype=torch.bfloat16) * 0.05)(B, S, D)), 'wqkv': _w((lambda *s: torch.randn(*s, dtype=torch.bfloat16) * 1.6)(D, 3 * D)), 'w_phi': _w((lambda *s: torch.randn(*s, dtype=torch.bfloat16) * 1.6)(H, Dh, Dh) * Dh ** (-0.5)), 'wo': _w((lambda *s: torch.randn(*s, dtype=torch.bfloat16) * 0.05)(D, D))}
    _A_in = _A_setup()

    def _B_setup():
        B, S, Dm = (1, 2048, 448)
        H, Dh = (16, 256)
        M, seg = (8, 32)
        seg = min(seg, S)
        S = S // seg * seg
        return {'x': _w((lambda *s: torch.randn(*s, dtype=torch.bfloat16) * 0.05)(B, S, Dm)), 'mem0': _w((lambda *s: torch.randn(*s, dtype=torch.bfloat16) * 0.8)(B, M, Dm)), 'Wq': _w((lambda *s: torch.randn(*s, dtype=torch.bfloat16) * 1.6)(Dm, H, Dh) * Dm ** (-0.5)), 'Wk': _w((lambda *s: torch.randn(*s, dtype=torch.bfloat16) * 1.6)(Dm, H, Dh) * Dm ** (-0.5)), 'Wv': _w((lambda *s: torch.randn(*s, dtype=torch.bfloat16) * 0.8)(Dm, H, Dh) * Dm ** (-0.5)), 'Wo': _w((lambda *s: torch.randn(*s, dtype=torch.bfloat16) * 0.8)(H, Dh, Dm) * (H * Dh) ** (-0.5)), 'seg_len': seg}
    _B_in = _B_setup()
    return {'A_x': _A_in['x'], 'A_wqkv': _A_in['wqkv'], 'A_w_phi': _A_in['w_phi'], 'A_wo': _A_in['wo'], 'B_x': _B_in['x'], 'B_mem0': _B_in['mem0'], 'B_Wq': _B_in['Wq'], 'B_Wk': _B_in['Wk'], 'B_Wv': _B_in['Wv'], 'B_Wo': _B_in['Wo'], 'B_seg_len': _B_in['seg_len'], 'gate_w': _w((lambda *s: torch.randn(*s, dtype=torch.bfloat16) * 0.05)(448) * 16.0)}

def reference(A_x, A_wqkv, A_w_phi, A_wo, B_x, B_mem0, B_Wq, B_Wk, B_Wv, B_Wo, B_seg_len, gate_w):

    def _A_ref(x, wqkv, w_phi, wo):
        B, S, D = x.shape
        H = 16
        Dh = D // H
        qkv = (lambda x, *d: x.permute(*d))((x @ wqkv).reshape(B, S, 3, H, Dh), 2, 0, 3, 1, 4)
        q, k, v = (qkv[0], qkv[1], qkv[2])
        pq = torch.einsum('bhsd,hdf->bhsf', q, w_phi)
        pk = torch.einsum('bhsd,hdf->bhsf', k, w_phi)
        phi_q = torch.concatenate([_softmax(pq, axis=-1), _softmax(-pq, axis=-1)], axis=-1)
        phi_k = torch.concatenate([_softmax(pk, axis=-1), _softmax(-pk, axis=-1)], axis=-1)
        kv = torch.einsum('bhsf,bhsd->bhfd', phi_k, v)
        z = torch.einsum('bhsf->bhf', phi_k)
        num = torch.einsum('bhqf,bhfd->bhqd', phi_q, kv)
        den = torch.einsum('bhqf,bhf->bhq', phi_q, z)[..., None] + 1e-06
        o = num / den
        return (lambda x, *d: x.permute(*d))(o, 0, 2, 1, 3).reshape(B, S, D) @ wo

    def _B_ref(x, mem0, Wq, Wk, Wv, Wo, seg_len):
        B, S, Dm = x.shape
        H, Dh = (Wq.shape[1], Wq.shape[2])
        M = mem0.shape[1]
        scale = Dh ** (-0.5)
        n_seg = S // seg_len
        L = M + seg_len
        idx = torch.arange(L)
        mask = (idx[:, None] < M) | (idx[:, None] >= idx[None, :])
        mem = mem0
        outs = []
        for s in range(n_seg):
            xs = x[:, s * seg_len:(s + 1) * seg_len, :].clone()
            h = torch.concatenate([mem, xs], axis=1)
            q = torch.einsum('btd,dhe->bhte', h, Wq)
            k = torch.einsum('btd,dhe->bhte', h, Wk)
            v = torch.einsum('btd,dhe->bhte', h, Wv)
            scores = torch.einsum('bhqe,bhke->bhqk', q, k) * scale
            scores = torch.where(mask[None, None], scores, -1000000000.0)
            p = _softmax(scores, axis=-1)
            o = torch.einsum('bhqk,bhke->bhqe', p, v)
            o = torch.einsum('bhte,hed->btd', o, Wo)
            mem = o[:, :M, :].clone()
            outs.append(o[:, M:, :])
        return torch.concatenate(outs, axis=1)
    x = A_x
    g = _sigmoid((x * gate_w).sum(-1, keepdims=True))
    a = _A_ref(x, A_wqkv, A_w_phi, A_wo)
    b = _B_ref(x, B_mem0, B_Wq, B_Wk, B_Wv, B_Wo, B_seg_len)
    return g * a + (1 - g) * b
```

```python
import re

def regs_of(tok):
    tok = tok.strip()
    tok = tok.lstrip('-')
    m = re.fullmatch(r'abs\((.*)\)', tok) or re.fullmatch(r'\|(.*)\|', tok)
    if m: tok = m.group(1)
    m = re.fullmatch(r'([vas])(\d+)', tok)
    if m: return {(m.group(1), int(m.group(2)))}
    m = re.fullmatch(r'([vas])\[(\d+):(\d+)\]', tok)
    if m: return {(m.group(1), i) for i in range(int(m.group(2)), int(m.group(3)) + 1)}
    if tok == 'vcc': return {('s', 'vcc')}
    if tok in ('vcc_lo', 'vcc_hi'): return {('s', 'vcc')}
    if tok in ('exec', 'exec_lo', 'exec_hi'): return {('s', 'exec')}
    if tok == 'm0': return {('s', 'm0')}
    return set()

TRANS = ('v_exp_f32', 'v_log_f32', 'v_rcp_f32', 'v_rsq_f32', 'v_sqrt_f32', 'v_sin_f32', 'v_cos_f32')

class Ins:
    __slots__ = ('op', 'cls', 'w', 'r', 'srcc', 'ab', 'ws', 'passes', 'dpp', 'wide_data', 'text', 'lds_dma', 'trans', 'dppsrc')

def analyze(op, ops, mods):
    i = Ins(); i.op = op; i.w = set(); i.r = set(); i.srcc = set(); i.ab = set(); i.ws = 1; i.passes = 0
    i.dpp = ('row_' in mods or 'quad_perm' in mods or 'wave_' in mods or op.endswith('_dpp'))
    i.wide_data = set(); i.lds_dma = False; i.trans = op.replace('_e32', '').replace('_e64', '') in TRANS
    R = [regs_of(o) for o in ops]
    i.dppsrc = R[1] if (i.dpp and len(R) > 1) else set()
    if op.startswith('v_mfma') or op.startswith('v_smfmac'):
        i.cls = 'mfma'
        i.passes = 8 if '32x32' in op else 4
        i.w = R[0]; i.ab = R[1] | R[2]
        if op.startswith('v_smfmac'):
            i.srcc = R[0]; i.ab |= R[3]
        else:
            i.srcc = R[3]
        i.r = i.ab | i.srcc
    elif op.startswith('v_'):
        i.cls = 'valu'
        if op.startswith('v_cmpx'):
            i.w = R[0] | {('s', 'exec')}; i.r = set().union(*R[1:])
        elif op.startswith('v_permlane') or op.startswith('v_swap'):
            i.w = R[0] | R[1]; i.r = R[0] | R[1]
        elif '_co_' in op or op.startswith('v_div_scale') or op.startswith('v_mad_u64'):
            i.w = R[0] | R[1]; i.r = set().union(*R[2:])
        else:
            i.w = R[0]; i.r = set().union(*R[1:]) if len(R) > 1 else set()
            if op.startswith('v_fmac') or op.startswith('v_pk_fmac') or i.dpp or op.startswith('v_writelane') or op.startswith('v_dot2c'):
                i.r |= R[0]
    elif op.startswith('ds_'):
        i.cls = 'ds'
        if op.startswith('ds_read') or op.startswith('ds_bpermute') or op.startswith('ds_permute') or op.startswith('ds_swizzle') or '_rtn' in op:
            i.w = R[0]; i.r = set().union(*R[1:])
        else:
            i.r = set().union(*R)
    elif op.startswith('buffer_') or op.startswith('global_') or op.startswith('flat_'):
        i.cls = 'vmem'
        if op in ('buffer_wbl2', 'buffer_inv'):
            pass
        elif 'load_lds' in op or (' lds' in (' ' + mods) and 'load' in op):
            i.lds_dma = True; i.r = set().union(*R) | {('s', 'm0')}
        elif 'load' in op:
            i.w = R[0]; i.r = set().union(*R[1:])
            if 'd16' in op: i.r |= R[0]
        elif 'atomic' in op:
            if op.startswith('buffer_'):
                i.r = set().union(*R)
                if 'sc0' in mods: i.w = R[0]
            else:
                if 'sc0' in mods:
                    i.w = R[0]; i.r = set().union(*R[1:])
                else:
                    i.r = set().union(*R)
        else:
            i.r = set().union(*R)
            if 'x3' in op or 'x4' in op:
                i.wide_data = R[0] if op.startswith('buffer_') else R[1]
    elif op.startswith('s_'):
        i.cls = 'salu'
        if op == 's_nop':
            i.ws = int(ops[0], 0) + 1
        elif op.startswith(('s_cmp', 's_cbranch', 's_branch', 's_waitcnt', 's_barrier', 's_endpgm', 's_sleep', 's_setprio', 's_bitcmp')):
            i.r = set().union(*R) if R else set()
        else:
            i.w = R[0] if R else set(); i.r = set().union(*R[1:]) if len(R) > 1 else set()
            if 'saveexec' in op: i.w |= {('s', 'exec')}
            if op.startswith('s_load') or op.startswith('s_mem') or op.startswith('s_atomic') or op.startswith('s_buffer_load'): i.cls = 'smem'
    else:
        raise ValueError('unknown op ' + op)
    return i

def isv(s): return {x for x in s if x[0] in 'va'}
def iss(s): return {x for x in s if x[0] == 's'}

def need(p, c):
    n = 0
    if p.cls == 'valu':
        wv = isv(p.w); wsg = iss(p.w)
        if c.cls == 'mfma' and wv & c.r: n = max(n, 2)
        if c.cls == 'valu':
            if c.op.startswith('v_permlane') and wv & c.r: n = max(n, 2)
            if c.dpp and wv & c.dppsrc: n = max(n, 2)
            if c.op.startswith(('v_readlane', 'v_readfirstlane')) and wv & c.r: n = max(n, 1)
            if p.trans and (wv & c.r): n = max(n, 1)
            if wsg & c.r: n = max(n, 4 if c.op.startswith(('v_readlane', 'v_writelane', 'v_div_fmas')) else 2)
            if ('s', 'vcc') in wsg and c.op.startswith('v_div_fmas'): n = max(n, 4)
            if ('s', 'exec') in wsg:
                if c.dpp: n = max(n, 5)
                if c.op.startswith(('v_readlane', 'v_readfirstlane', 'v_writelane', 'v_permlane')): n = max(n, 4)
        if c.cls == 'mfma' and ('s', 'exec') in wsg: n = max(n, 4)
        if c.cls == 'vmem' and wsg & c.r: n = max(n, 5)
        if c.cls in ('salu', 'smem') and wsg & c.r and not c.op.startswith('s_cbranch'): n = max(n, 1)
        if p.trans and c.cls in ('ds', 'vmem') and (wv & c.r): n = max(n, 1)
    if p.cls == 'mfma':
        big = p.passes == 8
        if c.cls == 'mfma':
            if p.w & c.ab: n = max(n, 12 if big else 8)
            if p.w & c.srcc and not (p.w == c.srcc and p.passes == c.passes): n = max(n, 10 if big else 6)
            if p.w & c.w and not (p.w == c.w and p.passes == c.passes): n = max(n, 10 if big else 6)
        else:
            if p.w & (c.r | c.w): n = max(n, 12 if big else 8)
            if c.cls in ('valu', 'ds', 'vmem') and p.srcc & c.w: n = max(n, 7 if big else 3)
    if p.cls == 'vmem' and p.wide_data and p.wide_data & c.w: n = max(n, 2)
    if p.cls == 'salu' and ('s', 'm0') in p.w and (c.lds_dma or c.op.startswith('s_sendmsg') or 'addtid' in c.op): n = max(n, 1)
    return n

MAXD = 14

class Asm:
    def __init__(self):
        self.lines = []
        self.paths = [[]]
        self.snap = {}
        self.labelpos = {}
        self.ins = []
        self.nlab = 0
        self.nops_inserted = 0
        self.tr_every = 0; self.tr_cnt = 0; self.tr_n = 0; self.tr_max = 0; self.tr_log = []; self.tr_skip = 0
    def raw(self, s): self.lines.append(s)
    def comment(self, s): self.lines.append('    ; ' + s)
    def newlabel(self, base='L'):
        self.nlab += 1; return f'{base}_{self.nlab}'
    def _req(self, paths, c):
        worst = 0
        for p in paths:
            d = 0; nm = 0; dafter = 0
            for q in reversed(p):
                n = need(q, c)
                deff = d
                if q.cls == 'mfma' and nm > 0:
                    deff = max(d, 4 * nm + dafter)
                if n - deff > worst: worst = n - deff
                if q.cls == 'mfma':
                    if nm == 0: dafter = d
                    nm += 1
                d += q.ws
                if d >= MAXD: break
        return worst
    def _push(self, i):
        newp = []
        seen = set()
        for p in self.paths:
            p = p + [i]
            d = 0; k = len(p)
            while k > 0 and d < MAXD:
                k -= 1; d += p[k].ws
            p = p[k:]
            key = tuple(id(x) for x in p)
            if key not in seen:
                seen.add(key); newp.append(p)
        self.paths = newp if newp else [[i]]
    def I(self, text):
        text = text.strip()
        if self.tr_every and not text.startswith('s_memtime'):
            if self.tr_skip > 0: self.tr_skip -= 1
            else:
                if self.tr_cnt % self.tr_every == 0 and self.tr_n < self.tr_max:
                    k = self.tr_n; self.tr_n += 1
                    self.tr_log.append(text)
                    self.I(f's_memtime s[{48+2*k}:{49+2*k}]')
                self.tr_cnt += 1
        parts = text.split(None, 1)
        op = parts[0]; rest = parts[1] if len(parts) > 1 else ''
        toks = [t.strip() for t in re.split(r',(?![^\[\(]*[\]\)])', rest)] if rest else []
        mods = ''
        if toks:
            last = toks[-1].split(None, 1)
            if op.startswith('s_waitcnt') or op.startswith('s_getreg') or op.startswith('s_setreg'):
                pass
            elif len(last) > 1:
                toks[-1] = last[0]; mods = last[1]
        if op in ('buffer_wbl2', 'buffer_inv'): toks = []; mods = rest
        i = analyze(op, toks, mods); i.text = text
        n = self._req(self.paths, i)
        if op.startswith('s_cbranch') or op == 's_branch':
            tgt = toks[0]
            if tgt in self.labelpos:
                n = max(n, self._replay(tgt, i))
        if n > 0: self._nop(n)
        self.lines.append('    ' + text); self.ins.append(i); self._push(i)
        if op.startswith('s_cbranch') or op == 's_branch':
            tgt = toks[0]
            if tgt not in self.labelpos:
                self.snap.setdefault(tgt, []).extend([list(p) for p in self.paths])
        if op in ('s_branch', 's_endpgm', 's_setpc_b64'):
            self.paths = []
        return i
    def _replay(self, tgt, br):
        paths = [p + [br] for p in self.paths]
        worst = 0; d = 0
        head = []
        for c in self.ins[self.labelpos[tgt]:]:
            r = self._req([p + head for p in paths], c)
            worst = max(worst, r)
            head.append(c); d += c.ws
            if d >= MAXD or c.op in ('s_branch', 's_endpgm'): break
        return worst
    def _nop(self, n):
        self.nops_inserted += n
        while n > 0:
            k = min(n, 16)
            i = analyze('s_nop', [str(k - 1)], ''); i.text = f's_nop {k-1}'
            self.lines.append(f'    s_nop {k-1}'); self.ins.append(i); self._push(i)
            n -= k
    def label(self, name):
        self.lines.append(name + ':')
        self.labelpos[name] = len(self.ins)
        self.paths = self.paths + self.snap.pop(name, [])
        if not self.paths: self.paths = [[]]
    def __call__(self, text):
        for ln in text.strip().split('\n'):
            ln = ln.split(';')[0].strip()
            if not ln: continue
            if ln.endswith(':'): self.label(ln[:-1])
            else: self.I(ln)
    def text(self): return '\n'.join(self.lines) + '\n'

def vr(base, n=1, f='v'):
    return f'{f}{base}' if n == 1 else f'{f}[{base}:{base+n-1}]'
```

```python
from common import *
from workers import xg_reduce

sH = 14; sR = 15; sXO = 16; sLB = 17; sI = 18; sC2 = 19; sA = 21; sM12 = 22; sG3 = 28; sF = 30; sGO = 31

def bw(t, kk):
    i = t * 14 + kk
    return vr(4*i, 4, 'a') if i < 64 else vr(176 + 4*(i - 64), 4)

def role_BA(a, cfg, done):
    vXS, vXR, vL16, vZ, vGA, vLN = 170, 171, 172, 173, 174, 175
    lane_setup(a)
    a(f'''s_sub_u32 s{sT0}, s{sROLE}, 192
          s_lshr_b32 s{sH}, s{sT0}, 2
          s_and_b32 s{sR}, s{sT0}, 3
          v_lshlrev_b32 v{vL16}, 4, v{L}
          v_mov_b32 v{vZ}, 0
          v_mov_b32 v{vLN}, v{L}
          s_mov_b32 s{sC2}, {LOG2E_HEX}
          v_cmp_eq_u32 s[{sM12}:{sM12+1}], 12, v{N}
          v_cmp_eq_u32 s[{sG3}:{sG3+1}], 3, v{G}''')
    srd(a, sR1, 1, 1204224)
    frag_src_lane(a, 24, 2688, 6, 7, perm=True)
    frag_read_lane(a, vXR, 6)
    for n in range(7):
        a(f'''s_mul_i32 s{sT0}, s{sW}, 7
              s_add_u32 s{sT0}, s{sT0}, {n}
              s_lshl_b32 s{sT2}, s{sT0}, 10
              s_lshr_b32 s{sT1}, s{sT0}, 1
              s_lshl_b32 s{sT1}, s{sT1}, 5
              s_and_b32 s{sT0}, s{sT0}, 1
              s_lshl_b32 s{sT0}, s{sT0}, 2
              s_add_u32 s{sT0}, s{sT0}, s{sT1}
              s_mul_i32 s{sT0}, s{sT0}, 2688
              s_mul_i32 s{sT1}, s{sH}, 56
              s_add_u32 s{sT0}, s{sT0}, s{sT1}''')
        for sec in range(3):
            a(f'''s_add_u32 m0, s{sT2}, {sec*28*1024 - sec*896}
                  buffer_load_dwordx4 v24, {S(sR1)}, s{sT0} offen offset:{sec*896} lds''')
    PH, ID = 32, 40
    srd(a, sR2, 2, 25088)
    a(f'''v_mul_u32_u24 v6, 448, v{G}
          v_lshl_add_u32 v6, v{N}, 1, v6
          v_mov_b32 v8, {OOB}
          v_cndmask_b32 v7, v6, v8, s[{sG3}:{sG3+1}]
          v_cmp_gt_u32 vcc, 12, v{N}
          v_cndmask_b32 v9, v8, v6, vcc
          v_cndmask_b32 v10, v8, v7, vcc
          s_mul_i32 s{sT0}, s{sH}, 1568''')
    for ft in range(2):
        for j in range(8):
            vo = ((6, 7), (9, 10))[ft][j >= 4]
            a(f'buffer_load_ushort v{(48 if j%2 else PH)+4*ft+j//2}, v{vo}, {S(sR2)}, s{sT0} offen offset:{j*56 + ft*32}')
    a(f'''v_lshlrev_b32 v6, 3, v{G}
          v_sub_u32 v6, v{N}, v6
          v_add_u32 v7, 16, v6
          v_mov_b32 v9, 99
          v_cndmask_b32 v7, v9, v7, vcc
          v_mov_b32 v9, 0x3f80
          v_mov_b32 v10, 0x3f800000''')
    for ft in range(2):
        for rr in range(4):
            a(f'''v_cmp_eq_u32 vcc, {2*rr}, v{6+ft}
                  v_cndmask_b32 v{ID+4*ft+rr}, 0, v9, vcc
                  v_cmp_eq_u32 vcc, {2*rr+1}, v{6+ft}
                  v_cndmask_b32 v{ID+4*ft+rr}, v{ID+4*ft+rr}, v10, vcc''')
    srd(a, sR2, 11, 896)
    a(f'''v_lshlrev_b32 v25, 4, v{G}
          s_lshl_b32 s{sT0}, s{sW}, 11
          v_add_u32 v26, s{sT0}, v{vXR}
          v_add_u32 v27, s{sT0}, v{vL16}
          s_mov_b32 s{sI}, s{sW}
          s_waitcnt vmcnt(0)
          s_barrier''')
    for k in range(8): a(f'v_lshl_or_b32 v{PH+k}, v{48+k}, 16, v{PH+k}')
    lp = a.newlabel('L_Bb')
    a.label(lp)
    IN, DD, OUT, GW = 48, 72, 120, 144
    a(f'''s_lshl_b32 s{sT0}, s{sI}, 6
          buffer_load_dwordx4 {vr(GW,4)}, v25, {S(sR2)}, s{sT0} offen''')
    for sec in range(3):
        for mt in range(2): a(f'ds_read_b128 {vr(IN+(sec*2+mt)*4,4)}, v26 offset:{sec*28672 + mt*1024}')
    a('s_waitcnt lgkmcnt(0)')
    for sec in range(3):
        for ft in range(2):
            for mt in range(2):
                a(f'v_mfma_f32_16x16x32_bf16 {vr(DD+((sec*2+ft)*2+mt)*4,4)}, {vr(IN+(sec*2+mt)*4,4)}, {vr((ID if sec==2 else PH)+4*ft,4)}, 0')
    a('s_waitcnt vmcnt(0)')
    for sec in range(3):
        for ft in range(2):
            o = OUT + (sec*2+ft)*4; d = DD + (sec*2+ft)*8
            for k in range(4): a(f'v_cvt_pk_bf16_f32 v{o+k}, v{d+2*k}, v{d+2*k+1}')
            if sec == 0 and ft == 1:
                for k in range(4): a(f'v_cndmask_b32 v{o+k}, v{o+k}, v{GW+k}, s[{sM12}:{sM12+1}]')
            a(f'ds_write_b128 v27, {vr(o,4)} offset:{sec*28672 + ft*1024}')
    a(f'''v_add_u32 v26, 8192, v26
          v_add_u32 v27, 8192, v27
          s_add_u32 s{sI}, s{sI}, 4
          s_cmp_lt_u32 s{sI}, 14
          s_cbranch_scc1 {lp}
          s_waitcnt lgkmcnt(0)
          s_barrier
          v_add_u32 v26, 57344, v{vL16}''')
    for t, (sec, ft) in enumerate(((1, 0), (1, 1), (2, 0), (2, 1), (0, 0), (0, 1))):
        for kk in range(14):
            off = sec*28672 + (2*kk+ft)*1024
            a(f'ds_read_b128 {bw(t,kk)}, v{26 if sec==2 else vL16} offset:{off - (57344 if sec==2 else 0)}')
        a('s_waitcnt lgkmcnt(0)')
    a('s_barrier')
    mark(a, cfg, 5)
    frag_src_lane(a, vXS, 1792, 6, 7)
    a(f'''s_mul_i32 s{sLB}, s{sW}, 28672
          v_add_u32 v{vXR}, s{sLB}, v{vXR}
          v_lshlrev_b32 v6, 3, v{N}
          v_mov_b32 v8, {OOB}
          v_cndmask_b32 v{vGA}, v8, v6, s[{sG3}:{sG3+1}]''')
    def dma(mt, nxt):
        if nxt: a(f's_add_u32 s{sT0}, s{sXO}, 28672')
        for kk in range(14):
            off = mt*896 + kk*64
            a(f'''s_add_u32 m0, s{sLB}, {mt*14336 + kk*1024 - off}
                  buffer_load_dwordx4 v{vXS}, {S(sXS)}, s{sT0 if nxt else sXO} offen offset:{off} lds''')
    def seg0():
        a(f'''s_lshl_b32 s{sT0}, s{sR}, 2
              s_add_u32 s{sT0}, s{sT0}, s{sW}
              s_mul_i32 s{sXO}, s{sT0}, {4*28672}
              s_mov_b32 s{sI}, 0''')
        dma(0, False); dma(1, False)
    XF = 0
    def gemm(mt, tiles, acc, w_is_A, nwait):
        a(f's_waitcnt vmcnt({nwait})')
        rd = lambda kk: f'ds_read_b128 {vr(XF+4*(kk%3),4)}, v{vXR} offset:{mt*14336 + kk*1024}'
        a(rd(0)); a(rd(1))
        for kk in range(14):
            a(f's_waitcnt lgkmcnt({1 if kk < 13 else 0})')
            for n, t in enumerate(tiles):
                d = vr(acc + 4*n, 4); xf = vr(XF + 4*(kk%3), 4)
                A, B = (bw(t, kk), xf) if w_is_A else (xf, bw(t, kk))
                a(f'v_mfma_f32_16x16x32_bf16 {d}, {A}, {B}, {d if kk else 0}')
                if n == 0 and kk + 2 < 14: a(rd(kk + 2))
        dma(mt, True)
    AC, KV, EP, TM = 16, 48, 80, 120
    seg0()
    for r in range(32): a(f'v_mov_b32 v{KV+r}, 0')
    a(f'v_cmp_gt_u32 s[{sM}:{sM+1}], 12, v{N}')
    top = a.newlabel('L_B1')
    a.label(top)
    gemm(0, (0, 1, 2, 3), AC, False, 14)
    gemm(1, (0, 1, 2, 3), AC + 16, False, 14)
    dm = 'row_mask:0xf bank_mask:0xf'
    slots = [(mt, r) for mt in range(2) for r in range(4)]
    A_ = lambda s: AC + 16*s[0] + s[1]
    B_ = lambda s: AC + 16*s[0] + 4 + s[1]
    MX, MN = TM, TM + 8
    for k, s_ in enumerate(slots): a(f'v_cndmask_b32 v{B_(s_)}, v{A_(s_)}, v{B_(s_)}, s[{sM}:{sM+1}]')
    for k, s_ in enumerate(slots):
        a(f'v_max_f32 v{MX+k}, v{A_(s_)}, v{B_(s_)}\nv_min_f32 v{MN+k}, v{A_(s_)}, v{B_(s_)}')
    def row_all(ops):
        for m in ('quad_perm:[1,0,3,2]', 'quad_perm:[2,3,0,1]', 'row_half_mirror', 'row_mirror'):
            for op, r in ops: a.I(f'{op}_dpp v{r}, v{r}, v{r} {m} {dm}')
    row_all([('v_max_f32', MX+k) for k in range(8)] + [('v_min_f32', MN+k) for k in range(8)])
    for k in range(16): a(f'v_mul_f32 v{TM+k}, s{sC2}, v{TM+k}')
    for k, s_ in enumerate(slots):
        a(f'''v_fma_f32 v{EP+k}, v{A_(s_)}, s{sC2}, -v{MX+k}
              v_fma_f32 v{EP+8+k}, v{B_(s_)}, s{sC2}, -v{MX+k}
              v_fma_f32 v{EP+16+k}, -v{A_(s_)}, s{sC2}, v{MN+k}
              v_fma_f32 v{EP+24+k}, -v{B_(s_)}, s{sC2}, v{MN+k}''')
    for k in range(32): a(f'v_exp_f32 v{EP+k}, v{EP+k}')
    for k in range(8):
        a(f'''v_cndmask_b32 v{EP+8+k}, 0, v{EP+8+k}, s[{sM}:{sM+1}]
              v_cndmask_b32 v{EP+24+k}, 0, v{EP+24+k}, s[{sM}:{sM+1}]''')
    for k in range(8): a(f'v_add_f32 v{MX+k}, v{EP+k}, v{EP+8+k}\nv_add_f32 v{MN+k}, v{EP+16+k}, v{EP+24+k}')
    row_all([('v_add_f32', TM+k) for k in range(16)])
    for k in range(16): a(f'v_rcp_f32 v{TM+k}, v{TM+k}')
    for f in range(4):
        for k in range(8): a(f'v_mul_f32 v{EP+8*f+k}, v{EP+8*f+k}, v{TM+8*(f//2)+k}')
    FR = 136
    for f in range(4):
        for r in range(4): a(f'v_cvt_pk_bf16_f32 v{FR+4*f+r}, v{EP+8*f+r}, v{EP+8*f+4+r}')
    a(f'v_mov_b32 v{TM}, 0x3f803f80')
    for dt in range(2):
        for r in range(4):
            a(f'v_cvt_pk_bf16_f32 v{FR+16+4*dt+r}, v{AC+8+4*dt+r}, v{AC+16+8+4*dt+r}')
            if dt == 1: a(f'v_cndmask_b32 v{FR+20+r}, v{FR+20+r}, v{TM}, s[{sM12}:{sM12+1}]')
    for f in range(4):
        for dt in range(2):
            d = vr(KV + (f*2+dt)*4, 4)
            a(f'v_mfma_f32_16x16x32_bf16 {d}, {vr(FR+4*f,4)}, {vr(FR+16+4*dt,4)}, {d}')
    a(f'''s_add_u32 s{sXO}, s{sXO}, 28672
          s_add_u32 s{sI}, s{sI}, 1
          s_cmp_lt_u32 s{sI}, 4
          s_cbranch_scc1 {top}''')
    L_KV = 114688
    a(f'''s_lshl_b32 s{sT0}, s{sW}, 13
          s_add_u32 s{sT0}, s{sT0}, {L_KV}
          v_add_u32 v{TM}, s{sT0}, v{vL16}
          s_lshl_b32 s{sT0}, s{sW}, 11
          s_add_u32 s{sT0}, s{sT0}, {L_KV}
          v_add_u32 v{TM+1}, s{sT0}, v{vL16}''')
    for f in range(8): a(f'ds_write_b128 v{TM}, {vr(KV+4*f,4)} offset:{f*1024}')
    a('s_waitcnt vmcnt(0) lgkmcnt(0)\ns_barrier')
    for p in range(4):
        for k in range(2): a(f'ds_read_b128 {vr(8*p+4*k,4)}, v{TM+1} offset:{p*8192 + k*1024}')
    seg0()
    a('s_waitcnt lgkmcnt(0)')
    for r in range(0, 16, 2): a(f'v_pk_add_f32 {vr(r,2)}, {vr(r,2)}, {vr(r+16,2)}')
    for r in range(0, 8, 2): a(f'v_pk_add_f32 {vr(r,2)}, {vr(r,2)}, {vr(r+8,2)}')
    a(f'''s_lshl_b32 s{sA}, s{sH}, 15
          s_add_u32 s{sA}, s{sA}, {KVP_OFF}
          s_lshl_b32 s{sT0}, s{sR}, 13
          s_lshl_b32 s{sT1}, s{sW}, 11
          s_add_u32 s{sT0}, s{sT0}, s{sT1}
          s_add_u32 s{sT0}, s{sT0}, s{sA}
          buffer_store_dwordx4 v[0:3], v{vL16}, {S(sWS)}, s{sT0} offen sc1
          buffer_store_dwordx4 v[4:7], v{vL16}, {S(sWS)}, s{sT0} offen offset:1024 sc1''')
    wait_dbg(a, D_FLAGS_OK, 1, done, 10, 11)
    a(f'''s_lshl_b32 s{sF}, s{sH}, 6
          s_add_u32 s{sF}, s{sF}, {FL_OFF + F_KV}
          s_lshl_b32 s{sT0}, s{sR}, 4
          s_lshl_b32 s{sT1}, s{sW}, 2
          s_add_u32 s{sT0}, s{sT0}, s{sT1}
          s_add_u32 s{sT0}, s{sT0}, s{sF}
          v_mov_b32 v8, 1
          s_mov_b64 exec, 1
          buffer_store_dword v8, v{vZ}, {S(sWS)}, s{sT0} offen sc1
          s_mov_b64 exec, -1''')
    mark(a, cfg, 6)
    wait_flags(a, f's{sF}', 16, 1, 1, done, vLN, 10)
    for p in range(4):
        for half in range(2):
            a(f's_add_u32 s{sT0}, s{sA}, {p*8192 + half*4096}')
            for k in range(4):
                a(f'buffer_load_dwordx4 {vr(32*p+16*half+4*k,4)}, v{vL16}, {S(sWS)}, s{sT0} offen offset:{k*1024} sc1')
    a('s_waitcnt vmcnt(0)')
    for r in range(0, 64, 2): a(f'v_pk_add_f32 {vr(r,2)}, {vr(r,2)}, {vr(r+64,2)}')
    for r in range(0, 32, 2): a(f'v_pk_add_f32 {vr(r,2)}, {vr(r,2)}, {vr(r+32,2)}')
    KA, ZA = 128, 144
    for sg in range(2):
        for dt in range(2):
            for hh in range(2):
                s_ = ((2*sg+hh)*2+dt)*4
                a(f'''v_cvt_pk_bf16_f32 v{KA+(sg*2+dt)*4+2*hh}, v{s_}, v{s_+1}
                      v_cvt_pk_bf16_f32 v{KA+(sg*2+dt)*4+2*hh+1}, v{s_+2}, v{s_+3}''')
    for sg in range(2):
        for r in range(4): a.I(f'v_mov_b32_dpp v{ZA+4*sg+r}, v{KA+(sg*2+1)*4+r} row_newbcast:12 {dm}')
    a(f'''s_lshl_b32 s{sT0}, s{sR}, 2
          s_add_u32 s{sT0}, s{sT0}, s{sW}
          s_lshl_b32 s{sF}, s{sT0}, 6
          s_lshl_b32 s{sT1}, s{sH}, 2
          s_add_u32 s{sF}, s{sF}, s{sT1}
          s_add_u32 s{sF}, s{sF}, {FL_OFF + F_O}
          s_lshl_b32 s{sA}, s{sT0}, 17
          s_lshl_b32 s{sT1}, s{sH}, 11
          s_add_u32 s{sA}, s{sA}, s{sT1}
          s_add_u32 s{sA}, s{sA}, {OA_OFF}
          s_lshl_b32 s{sGO}, s{sT0}, 9
          s_add_u32 s{sGO}, s{sGO}, {G_OFF}
          s_cmp_eq_u32 s{sH}, 0
          s_cselect_b32 s{sGO}, s{sGO}, {OOB}''')
    top = a.newlabel('L_B2')
    a.label(top)
    Q, EQ, PB, NM, T2 = 16, 32, 64, 80, 104
    gemm(0, (4, 5), Q, True, 14)
    gemm(1, (4, 5), Q + 8, True, 14)
    for mt in range(2):
        q = Q + 8*mt
        a(f'''v_mul_f32 v{T2+8+mt}, s{sC2}, v{q+4}''')
        for r in range(4): a(f'v_cndmask_b32 v{q+4+r}, v{q+4+r}, v{q}, s[{sG3}:{sG3+1}]')
        for op, d in (('max', T2 + 2*mt), ('min', T2 + 2*mt + 1)):
            a(f'''v_{op}3_f32 v{d}, v{q}, v{q+1}, v{q+2}
                  v_{op}3_f32 v{d}, v{d}, v{q+3}, v{q+4}
                  v_{op}3_f32 v{d}, v{d}, v{q+5}, v{q+6}
                  v_{op}_f32 v{d}, v{d}, v{q+7}''')
    xg_reduce(a, 'v_max_f32', [T2, T2+2], [T2+4, T2+5])
    xg_reduce(a, 'v_min_f32', [T2+1, T2+3], [T2+4, T2+5])
    for k in range(4): a(f'v_mul_f32 v{T2+k}, s{sC2}, v{T2+k}')
    for mt in range(2):
        for k in range(8):
            a(f'''v_fma_f32 v{EQ+16*mt+k}, v{Q+8*mt+k}, s{sC2}, -v{T2+2*mt}
                  v_fma_f32 v{EQ+16*mt+8+k}, -v{Q+8*mt+k}, s{sC2}, v{T2+2*mt+1}''')
    for k in range(32): a(f'v_exp_f32 v{EQ+k}, v{EQ+k}')
    for mt in range(2): a(f'v_exp_f32 v{T2+8+mt}, -v{T2+8+mt}')
    for b in range(4):
        e = EQ + 8*b
        for r in range(4): a(f'v_cndmask_b32 v{e+4+r}, v{e+4+r}, 0, s[{sG3}:{sG3+1}]')
        a(f'''v_pk_add_f32 {vr(T2+4,2)}, {vr(e,2)}, {vr(e+2,2)}
              v_pk_add_f32 {vr(T2+6,2)}, {vr(e+4,2)}, {vr(e+6,2)}
              v_pk_add_f32 {vr(T2+4,2)}, {vr(T2+4,2)}, {vr(T2+6,2)}
              v_add_f32 v{T2+b}, v{T2+4}, v{T2+5}''')
    xg_reduce(a, 'v_add_f32', [T2, T2+1, T2+2, T2+3], [T2+4, T2+5, T2+6, T2+7])
    for k in range(4): a(f'v_rcp_f32 v{T2+k}, v{T2+k}')
    for mt in range(2): a(f'v_add_f32 v{T2+8+mt}, 1.0, v{T2+8+mt}')
    for mt in range(2): a(f'v_rcp_f32 v{T2+8+mt}, v{T2+8+mt}')
    for b in range(4):
        for k in range(8): a(f'v_mul_f32 v{EQ+8*b+k}, v{EQ+8*b+k}, v{T2+b}')
        for k in range(4): a(f'v_cvt_pk_bf16_f32 v{PB+4*b+k}, v{EQ+8*b+2*k}, v{EQ+8*b+2*k+1}')
    for sg in range(2):
        for mt in range(2):
            for n, A in enumerate((ZA + 4*sg, KA + (sg*2)*4, KA + (sg*2+1)*4)):
                d = vr(NM + 12*mt + 4*n, 4)
                a(f'v_mfma_f32_16x16x32_bf16 {d}, {vr(A,4)}, {vr(PB+4*(2*mt+sg),4)}, {d if sg else 0}')
    a(f'buffer_store_dwordx2 {vr(T2+8,2)}, v{vGA}, {S(sWS)}, s{sGO} offen sc1')
    for mt in range(2):
        n = NM + 12*mt
        a(f'''v_add_f32 v{n}, 0x358637bd, v{n}
              v_rcp_f32 v{n}, v{n}''')
        for k in range(8): a(f'v_mul_f32 v{n+4+k}, v{n+4+k}, v{n}')
        for k in range(4): a(f'v_cvt_pk_bf16_f32 v{PB+4*mt+k}, v{n+4+2*k}, v{n+4+2*k+1}')
        a(f'buffer_store_dwordx4 {vr(PB+4*mt,4)}, v{vL16}, {S(sWS)}, s{sA} offen offset:{mt*1024} sc1')
    a(f'''s_add_u32 s{sXO}, s{sXO}, 28672
          s_add_u32 s{sA}, s{sA}, 32768
          s_add_u32 s{sGO}, s{sGO}, 128
          s_add_u32 s{sI}, s{sI}, 1
          v_mov_b32 v{T2}, s{sI}
          s_waitcnt vmcnt(0)
          s_mov_b64 exec, 1
          buffer_store_dword v{T2}, v{vZ}, {S(sWS)}, s{sF} offen sc1
          s_mov_b64 exec, -1
          s_cmp_lt_u32 s{sI}, 4
          s_cbranch_scc1 {top}
          s_branch {done}''')
```

```python
from common import *

L_MEM = 0
L_T   = 8192
L_RED = 16384
L_X   = 65536

MA = 0; ACC = 28; XB = 56; SACC = 88
vIDX, vPOLL, vLM, vLA, vLB, vLC, vTW, vTR, vMB, vSW, vSW2, vSR, vPS, vX, vX2, vXR, vPF3, vPF2, vT0, vT1 = range(100, 120)
sHO = 15; sHO2 = 16; sXO = 17; sYO = 18; sYO2 = 19; sTHR = 21
sVALID = 22
sMSO = 28; sPFY = 29; sPO = 30; sLX = 31
sFAST = 32; sSLOW = 33; sYK = 34; sFY = 35; sMODE = 36
ST0 = 48

def slot_map(w):
    if w < 3: return [2*w, 2*w+1, 2*((w+1)%3), 2*((w+1)%3)+1, 2*((w+2)%3), 2*((w+2)%3)+1, 6]
    return [6, 0, 2, 3, 4, 5, 1]
def pack_map(w): return sum(k << (4*i) for i, k in enumerate(slot_map(w)))

def load_weights(a, rot=True):
    a(f'''s_mul_i32 s{sT1}, s{sW}, {7*14*1024}
          s_add_u32 s{sT1}, s{sT1}, s{sT0}''')
    if rot:
        a(f'''s_mov_b32 s{sT3}, {pack_map(0)}
              s_cmp_eq_u32 s{sW}, 1
              s_cselect_b32 s{sT3}, {pack_map(1)}, s{sT3}
              s_cmp_eq_u32 s{sW}, 2
              s_cselect_b32 s{sT3}, {pack_map(2)}, s{sT3}
              s_cmp_eq_u32 s{sW}, 3
              s_cselect_b32 s{sT3}, {pack_map(3)}, s{sT3}''')
    for i in range(7):
        if rot:
            a(f's_bfe_u32 s{sT2}, s{sT3}, {(4 << 16) | (4*i)}')
            if i in (2, 4, 6):
                a(f'''s_lshl_b32 s{sT0}, s{sT2}, 10
                      v_add_u32 v{ {2: vLA, 4: vLB, 6: vLC}[i] }, s{sT0}, v{vPOLL}''')
            a(f'''s_lshl_b32 s{sT2}, s{sT2}, 11
                  s_add_u32 s{sT2}, s{sT2}, s{sT1}''')
        else:
            a(f's_add_u32 s{sT2}, s{sT1}, {i*2048}')
        for j in range(7):
            if j: a(f's_add_u32 s{sT2}, s{sT2}, {14*1024}')
            a(f'buffer_load_dwordx4 {wreg(j,i,4,0)}, v{vPOLL}, {S(sWS)}, s{sT2} offen sc1')
            a(f'buffer_load_dwordx4 {wreg(j,i,4,1)}, v{vPOLL}, {S(sWS)}, s{sT2} offen offset:1024 sc1')

def idx_setup(a):
    a(f'''v_lshlrev_b32 v{vPOLL}, 4, v{L}
          v_mov_b32 v{vIDX}, 0x4444
          v_mov_b32 v1, 0xeeee
          v_and_b32 v2, 2, v{N}
          v_cmp_ne_u32 vcc, 0, v2
          v_cndmask_b32 v{vIDX}, v{vIDX}, v1, vcc''')

def common_setup(a):
    idx_setup(a)
    a(f'''s_lshl_b32 s{sT0}, s{sW}, 11
          v_add_u32 v{vLM}, s{sT0}, v{vPOLL}
          v_lshrrev_b32 v4, 5, v{L}
          v_and_b32 v5, 31, v{L}''')

def red_read_addr(a, colreg):
    a(f'''v_lshlrev_b32 v{vSR}, 8, v4
          v_lshl_add_u32 v{vSR}, v{colreg}, 3, v{vSR}
          s_lshl_b32 s{sT1}, s{sW}, 9
          s_add_u32 s{sT1}, s{sT1}, {L_RED}
          v_add_u32 v{vSR}, s{sT1}, v{vSR}''')

def warm(a, n):
    for _ in range(n): a(f'v_mov_b32 v{vT1}, v{vT1}\ns_nop 2')

def smf(a, d, A, B): a(f'v_smfmac_f32_16x16x64_bf16 {vr(d,4)}, {vr(A,4)}, {B}, v{vIDX}')

def post_ops(j, d=None):
    d = ACC + 4 * j if d is None else d
    return [f'v_add_f32 v{d}, v{d}, v{d+2}', f'v_add_f32 v{d+1}, v{d+1}, v{d+3}',
            f'v_cvt_pk_bf16_f32 v{d}, v{d}, v{d+1}', f'ds_write_b32 v{vTW}, v{d} offset:{j*256}']

def stage1(a, early, extra, cfg, depth, abort, tail):
    lp = a.newlabel('L_mp'); rt = a.newlabel('L_mretry')
    ld = [f'buffer_load_dwordx4 {vr(MA,4)}, v{vPOLL}, {S(sWS)}, s{sHO} offen sc1',
          f'buffer_load_dwordx4 {vr(MA+4,4)}, v{vPOLL}, {S(sWS)}, s{sHO2} offen sc1']
    a(f's_mov_b32 s{sTO}, 0x40000')
    for d in range(depth - 1):
        for x in ld: a(x)
        warm(a, cfg.get('stag', 6))
    a.label(lp)
    for x in ld: a(x)
    warm(a, cfg.get('pw', 1))
    a(f'''s_waitcnt vmcnt({2*(depth-1)+1})
          v_max3_u32 v{vT0}, v{MA}, v{MA+1}, v{MA+2}
          v_max_u32 v{vT0}, v{vT0}, v{MA+3}
          s_waitcnt vmcnt({2*(depth-1)})
          v_max3_u32 v{vT0}, v{vT0}, v{MA+4}, v{MA+5}
          v_max3_u32 v{vT0}, v{vT0}, v{MA+6}, v{MA+7}
          v_cmp_eq_u32 vcc, -1, v{vT0}''')
    wr = [f'ds_write_b128 v{vLM}, {vr(MA,4)}', f'ds_write_b128 v{vLM}, {vr(MA+4,4)} offset:1024']
    a(wr[0])
    a(f's_cbranch_vccnz {rt}')
    stamp(a, cfg, 0)
    q = wr[1:] + list(early)
    def retry():
        a.label(rt)
        a(f'''s_sub_u32 s{sTO}, s{sTO}, 1
              s_cbranch_scc0 {lp}
              s_branch {abort}''')
    tail.append(retry)
    rd = [f'ds_read_b128 {vr(MA+8,4)}, v{vLA}', f'ds_read_b128 {vr(MA+12,4)}, v{vLA} offset:1024',
          f'ds_read_b128 {vr(MA+16,4)}, v{vLB}', f'ds_read_b128 {vr(MA+20,4)}, v{vLB} offset:1024',
          f'ds_read_b128 {vr(MA+24,4)}, v{vLC}']
    def pop():
        x = q.pop(0)
        if x: a(x)
    k = 0
    for i in range(2):
        for j in range(7):
            smf(a, ACC + 4 * j, MA + 4 * i, wreg(j, i))
            k += 1
            if k == cfg.get('barpos', 8):
                a('s_waitcnt lgkmcnt(0)\ns_barrier')
                for x in rd[:2]: a(x)
                q = rd[2:] + q
            elif q: pop()
    assert not any(x in rd for x in q)
    for j in range(7):
        for i in range(2, 7):
            if j == 0: a(f's_waitcnt lgkmcnt({6-i})')
            smf(a, ACC + 4 * j, MA + 4 * i, wreg(j, i))
            if j > 0 and i == 3: q = q + post_ops(j - 1) + extra.get(j, [])
            for _ in range(2 if len(q) > 5 else 1):
                if q: pop()
    while q: pop()

def zero_acc(a, regs):
    for r in regs: a(f'v_mov_b32 v{r}, 0')

def chain_start(a, abort):
    lp = a.newlabel('L_cm'); dn = a.newlabel('L_cmd')
    a(f'''s_mov_b32 s{sTO}, 0x20000
          v_lshlrev_b32 v10, 2, v{L}
          v_and_b32 v10, 28, v10''')
    a.label(lp)
    a(f'''global_load_dword v11, v10, s[{sDBG}:{sDBG+1}] sc1
          s_waitcnt vmcnt(0)
          v_readlane_b32 s{sT0}, v11, 0
          s_mov_b32 s{sMODE}, 0
          s_cmp_ge_u32 s{sT0}, 32
          s_cbranch_scc1 {dn}''')
    for k in range(1, 8):
        a(f'''v_readlane_b32 s{sT1}, v11, {k}
              s_add_u32 s{sT0}, s{sT0}, s{sT1}''')
    a(f'''s_mov_b32 s{sMODE}, 1
          s_cmp_ge_u32 s{sT0}, 256
          s_cbranch_scc1 {dn}
          s_sleep 2
          s_sub_u32 s{sTO}, s{sTO}, 1
          s_cbranch_scc0 {lp}
          s_branch {abort}''')
    a.label(dn)
    wait_dbg(a, D_SENT, 32, abort, 10, 11)
    a(f'''s_lshl_b32 s{sT0}, s{sW}, 11
          s_add_u32 s{sHO}, s{sT0}, {REC_OFF}
          s_add_u32 s{sHO2}, s{sHO}, 1024
          s_cmp_eq_u32 s{sW}, 3
          s_cselect_b32 s{sHO2}, {REC_OFF}, s{sHO2}
          s_mov_b32 s{sS}, 0''')

def mode_offsets(a, off, cfg):
    if cfg.get('force_slow'): a(f's_mov_b32 s{sMODE}, 1')
    a(f'''s_mov_b32 s{sT0}, {off}
          s_mov_b32 s{sT1}, {OOB}
          s_cmp_eq_u32 s{sMODE}, 0
          s_cselect_b32 s{sFAST}, s{sT0}, s{sT1}
          s_cselect_b32 s{sSLOW}, s{sT1}, s{sT0}''')

def stamp(a, cfg, k):
    if cfg.get('stamps') and k in cfg['stamps']:
        a(f's_memtime s[{ST0+2*k}:{ST0+1+2*k}]')

def dump_stamps(a, cfg):
    if not cfg.get('stamps'): return
    a(f'''s_waitcnt lgkmcnt(0)
          s_lshl_b32 s{sT0}, s{sROLE}, 2
          s_add_u32 s{sT0}, s{sT0}, s{sW}
          s_lshl_b32 s{sT0}, s{sT0}, 6
          s_add_u32 s{sT0}, s{sT0}, s{sS}
          s_lshl_b32 s{sT0}, s{sT0}, 4
          s_add_u32 s{sT0}, s{sT0}, {DBG_OFF + 0x10000}''')
    for k in range(4): a(f'v_mov_b32 v{MA+24+k}, s{ST0+2*k}')
    a(f'v_mov_b32 v{MA+23}, 0')
    a(f'buffer_store_dwordx4 {vr(MA+24,4)}, v{MA+23}, {S(sWS)}, s{sT0} offen')

def red_sum(a, t, cfg):
    warm(a, cfg.get('w2', 2))
    a(f's_waitcnt lgkmcnt(0)\nv_mov_b32 v{vT1}, v{vT1}\ns_barrier')
    for wv in range(4):
        a(f'ds_read_b64 {vr(t+2*wv,2)}, v{vSR} offset:{2048*wv}')
        if wv == 0: a(f'v_mov_b32 v{vT1}, v{vT1}')
    warm(a, cfg.get('w3', 2))
    a(f'''s_waitcnt lgkmcnt(2)
          v_pk_add_f32 {vr(t,2)}, {vr(t,2)}, {vr(t+2,2)}
          s_waitcnt lgkmcnt(0)
          v_pk_add_f32 {vr(t+4,2)}, {vr(t+4,2)}, {vr(t+6,2)}
          v_pk_add_f32 {vr(t,2)}, {vr(t,2)}, {vr(t+4,2)}''')

def x_dma():
    out = []
    for aa in range(2):
        for nt in range(2):
            for hf in range(2):
                f = (aa*2+nt)*2+hf
                vo = vX2 if (aa == 1 and hf == 1) else vX
                off = nt*896+128*aa+64*hf
                out.append(f's_add_u32 m0, s{sLX}, {f*1024 - off}\nbuffer_load_dwordx4 v{vo}, {S(sXS)}, s{sXO} offen offset:{off} lds')
    return out

def role_S(a, cfg, done):
    lane_setup(a); common_setup(a)
    a(f'''s_lshl_b32 s{sT0}, s{sW}, 11
          s_add_u32 s{sT1}, s{sT0}, {L_T}
          v_lshrrev_b32 v6, 3, v{N}
          v_and_b32 v7, 3, v{N}
          v_lshl_add_u32 v6, v6, 2, v7
          v_lshlrev_b32 v{vTW}, 5, v6
          v_lshl_add_u32 v{vTW}, v{G}, 3, v{vTW}
          v_and_b32 v6, 4, v{N}
          v_add_u32 v{vTW}, v6, v{vTW}
          v_add_u32 v{vTW}, s{sT1}, v{vTW}
          v_lshlrev_b32 v{vTR}, 8, v{G}
          v_lshl_add_u32 v{vTR}, v{N}, 3, v{vTR}
          v_add_u32 v{vTR}, s{sT1}, v{vTR}''')
    a(f'''s_mul_i32 s{sT2}, s{sW}, {7*256}
          v_and_b32 v7, 1, v{N}
          v_lshrrev_b32 v6, 1, v{G}
          v_lshlrev_b32 v{vMB}, 8, v6
          v_bfe_u32 v6, v{N}, 1, 2
          v_lshl_add_u32 v6, v6, 2, v7
          v_lshl_add_u32 v{vMB}, v6, 4, v{vMB}
          v_and_b32 v6, 1, v{G}
          v_lshl_add_u32 v{vMB}, v6, 3, v{vMB}
          v_add_u32 v{vMB}, s{sT2}, v{vMB}
          s_add_u32 s{sT1}, s{sT0}, {L_RED}
          v_lshlrev_b32 v6, 9, v{G}
          v_add_u32 v6, s{sT1}, v6
          v_lshl_add_u32 v{vSW}, v{N}, 3, v6
          v_lshl_add_u32 v{vSW2}, v{N}, 2, v6
          v_add_u32 v{vSW2}, 128, v{vSW2}''')
    a(f'''v_and_b32 v8, 8, v5
          v_and_b32 v6, 3, v5
          v_lshl_add_u32 v8, v6, 1, v8
          v_bfe_u32 v6, v5, 2, 1
          v_add_u32 v8, v8, v6
          v_cmp_gt_u32 vcc, 16, v5
          v_cndmask_b32 v8, v5, v8, vcc
          v_mov_b32 v9, 28
          v_cmp_gt_u32 s[{sVALID}:{sVALID+1}], 20, v5
          v_cndmask_b32 v8, v9, v8, s[{sVALID}:{sVALID+1}]''')
    red_read_addr(a, 8)
    a(f'''v_bfe_u32 v7, v5, 3, 1
          v_lshlrev_b32 v7, 8, v7
          v_lshl_add_u32 v7, v6, 5, v7
          s_lshl_b32 s{sT1}, s{sW}, 6
          v_add_u32 v7, s{sT1}, v7
          s_lshl_b32 s{sT1}, s{sW}, 5
          s_add_u32 s{sT1}, s{sT1}, 512
          v_mov_b32 v9, s{sT1}
          v_cndmask_b32 v{vPS}, v9, v7, vcc
          v_lshl_add_u32 v{vPS}, v4, 4, v{vPS}
          v_and_b32 v6, 3, v5
          v_lshl_add_u32 v{vPS}, v6, 2, v{vPS}
          s_mul_i32 s{sT1}, s{sROLE}, 640
          v_add_u32 v{vPS}, s{sT1}, v{vPS}
          v_mov_b32 v8, {OOB}
          v_cndmask_b32 v{vPS}, v8, v{vPS}, s[{sVALID}:{sVALID+1}]''')
    frag_src_lane(a, vX, 1792, 6, 7)
    a(f'''s_mul_i32 s{sT1}, s{sW}, 224
          v_add_u32 v{vX}, s{sT1}, v{vX}
          v_cmp_gt_u32 vcc, 2, v7
          v_cndmask_b32 v{vX2}, v8, v{vX}, vcc''')
    frag_read_lane(a, vXR, 6)
    a(f'''s_lshl_b32 s{sLX}, s{sW}, 13
          s_add_u32 s{sLX}, s{sLX}, {L_X}
          v_add_u32 v{vXR}, s{sLX}, v{vXR}''')
    a(f'''s_mul_i32 s{sT1}, s{sROLE}, 640
          s_add_u32 s{sT1}, s{sT1}, {REC_STR}
          v_lshlrev_b32 v6, 7, v{L}
          v_add_u32 v{vPF3}, s{sT1}, v6
          s_lshl_b32 s{sT1}, s{sROLE}, 9
          s_add_u32 s{sT1}, s{sT1}, {2*REC_STR - R_P - 8*128}
          v_add_u32 v7, s{sT1}, v6
          v_cmp_gt_u32 vcc, 8, v{L}
          v_cndmask_b32 v{vPF3}, v7, v{vPF3}, vcc
          v_cmp_gt_u32 vcc, 12, v{L}
          v_cndmask_b32 v{vPF3}, v8, v{vPF3}, vcc
          s_mul_i32 s{sT1}, s{sROLE}, {14*128}
          s_add_u32 s{sT1}, s{sT1}, 28672
          v_add_u32 v{vPF2}, s{sT1}, v6
          v_cmp_gt_u32 vcc, 14, v{L}
          v_cndmask_b32 v{vPF2}, v8, v{vPF2}, vcc''')
    a(f'''v_mov_b32 v6, 0
          ds_write_b32 v{vTW}, v6 offset:{7*256}
          v_mov_b32 v8, 0xf0000000
          v_mov_b32 v9, v8
          v_and_b32 v6, 7, v{L}
          v_lshlrev_b32 v6, 8, v6
          s_add_u32 s{sT1}, s{sT0}, {L_RED + 28*8}
          v_add_u32 v6, s{sT1}, v6
          ds_write_b64 v6, v[8:9]
          s_mov_b32 s{sXO}, 0
          s_mov_b32 s{sTHR}, 0x42200000
          s_mov_b32 s{sPO}, {REC_OFF + R_P}
          s_lshl_b32 s{sPFY}, s{sROLE}, 15
          s_lshl_b32 s{sT1}, s{sW}, 13
          s_add_u32 s{sPFY}, s{sPFY}, s{sT1}
          s_add_u32 s{sPFY}, s{sPFY}, {YF_OFF + 2*16*32768}''')
    for x in x_dma(): a(x)
    chain_start(a, done)
    mode_offsets(a, REC_OFF + R_P, cfg)
    wait_dbg(a, D_FLAGS_OK, 1, done, 10, 11)
    a(f'''s_lshl_b32 s{sT2}, s{sROLE}, 6
          s_add_u32 s{sT2}, s{sT2}, {FL_OFF + F_A}''')
    wait_flags(a, f's{sT2}', 14, 1, 1, done, L, 10)
    mark(a, cfg, 4)
    a(f's_mul_i32 s{sT0}, s{sROLE}, {WF_MAT}')
    load_weights(a)
    if cfg.get('marks'):
        a('s_waitcnt vmcnt(0)'); mark(a, cfg, 5)
    top = a.newlabel('L_Stop'); slow = a.newlabel('L_Sslow'); back = a.newlabel('L_Sback')
    a.label(top)
    a(f's_add_u32 s{sXO}, s{sXO}, 28672\ns_xor_b32 s{sLX}, s{sLX}, 0x8000')
    for f in range(8): a(f'ds_read_b128 {vr(XB+4*f,4)}, v{vXR} offset:{f*1024}')
    a(f'v_xor_b32 v{vXR}, 0x8000, v{vXR}')
    z = [f'v_mov_b32 v{r}, 0' for r in list(range(ACC, ACC + 28)) + list(range(SACC, SACC + 12))]
    for x in x_dma():
        a(x)
        for _ in range(5): a(z.pop(0))
    a('s_waitcnt lgkmcnt(0)')
    for f in range(8): a(f'v_swap_b32 v{XB+4*f+1}, v{XB+4*f+2}')
    tail = []
    early = [''] * 8 + [
             f'buffer_load_dword v{vT1}, v{vPF3}, {S(sWS)}, s{sPO} offen sc1', '',
             f'buffer_load_dword v{vT1}, v{vPF2}, {S(sXS)}, s{sXO} offen', f'v_lshlrev_b32 v{vT0}, 3, v{vPOLL}',
             f'buffer_load_dword v{vT0}, v{vT0}, {S(sWS)}, s{sPFY} offen sc1']
    def mbread(d, aa):
        return [f'ds_read2_b64 {vr(d,4)}, v{vMB} offset0:{128*aa} offset1:{128*aa+4}', f'ds_read2_b64 {vr(d+4,4)}, v{vMB} offset0:{128*aa+64} offset1:{128*aa+68}']
    def s_step(aa, TA, MBr):
        return [f'v_smfmac_f32_16x16x64_bf16 {vr(SACC,4)}, {vr(TA,4)}, {vr(XB+aa*16,8)}, v{vIDX}',
                f'v_smfmac_f32_16x16x64_bf16 {vr(SACC+4,4)}, {vr(TA,4)}, {vr(XB+aa*16+8,8)}, v{vIDX}',
                f'v_smfmac_f32_16x16x64_bf16 {vr(SACC+8,4)}, {vr(TA,4)}, {vr(MBr,8)}, v{vIDX}']
    def trread(aa, d):
        return [f'ds_read_b64_tr_b16 {vr(d,2)}, v{vTR} offset:{aa*1024}', f'ds_read_b64_tr_b16 {vr(d+2,2)}, v{vTR} offset:{aa*1024+128}']
    extra = {2: mbread(ACC, 0), 4: mbread(ACC + 8, 1), 5: trread(0, ACC + 16)}
    stage1(a, early, extra, cfg, 2, done, tail)
    s0 = s_step(0, ACC + 16, ACC)
    a('s_waitcnt lgkmcnt(1)')
    a(s0[0]); a(s0[1])
    for x in post_ops(6): a(x)
    for x in trread(1, ACC + 20): a(x)
    a(s0[2])
    warm(a, 2)
    a('s_waitcnt lgkmcnt(0)')
    s1 = s_step(1, ACC + 20, ACC + 8)
    a(s1[2]); a(s1[0]); a(s1[1])
    d = SACC; t = ACC
    a(f'''v_add_f32 v{d+8}, v{d+8}, v{d+10}
          v_add_f32 v{d+9}, v{d+9}, v{d+11}
          ds_write2_b32 v{vSW2}, v{d+8}, v{d+9} offset0:0 offset1:64
          v_add_f32 v{t}, v{d}, v{d+2}
          v_add_f32 v{t+2}, v{d+1}, v{d+3}
          v_add_f32 v{t+1}, v{d+4}, v{d+6}
          v_add_f32 v{t+3}, v{d+5}, v{d+7}
          ds_write2_b64 v{vSW}, {vr(t,2)}, {vr(t+2,2)} offset0:0 offset1:32''')
    t = ACC + 8
    red_sum(a, t, cfg)
    a(f'''v_exp_f32 v{t+2}, v{t}
          v_exp_f32 v{t+3}, v{t+1}
          v_max_f32 v{t+6}, |v{t}|, |v{t+1}|
          v_add_f32 v{t+4}, v{t+2}, v{t+3}
          v_cmp_lt_f32 vcc, s{sTHR}, v{t+6}''')
    def butterfly(op, r, tmp, mid=None):
        for k, m in enumerate(('quad_perm:[1,0,3,2]', 'quad_perm:[2,3,0,1]', 'row_half_mirror', 'row_mirror')):
            a.I(f'{op}_dpp v{r}, v{r}, v{r} {m} row_mask:0xf bank_mask:0xf')
            if k == 2 and mid: a(mid)
        a(f'v_mov_b32 v{tmp}, v{r}')
        a(f'v_permlane16_swap_b32 v{r}, v{tmp}')
        a(f'{op} v{r}, v{r}, v{tmp}')
    butterfly('v_add_f32', t + 4, t + 5, f's_and_b64 vcc, vcc, s[{sVALID}:{sVALID+1}]\ns_cbranch_scc1 {slow}')
    a.label(back)
    a(f'''v_rcp_f32 v{t+4}, v{t+4}
          v_mul_f32 v{t+2}, v{t+2}, v{t+4}
          v_mul_f32 v{t+3}, v{t+3}, v{t+4}
          v_cvt_pk_bf16_f32 v{t+2}, |v{t+2}|, |v{t+3}|
          buffer_store_dword v{t+2}, v{vPS}, {S(sWS)}, s{sFAST} offen
          buffer_store_dword v{t+2}, v{vPS}, {S(sWS)}, s{sSLOW} offen sc1''')
    stamp(a, cfg, 3)
    dump_stamps(a, cfg)
    a(f'''s_add_u32 s{sHO}, s{sHO}, {REC_STR}
          s_add_u32 s{sHO2}, s{sHO2}, {REC_STR}
          s_add_u32 s{sPO}, s{sPO}, {REC_STR}
          s_add_u32 s{sFAST}, s{sFAST}, {REC_STR}
          s_add_u32 s{sSLOW}, s{sSLOW}, {REC_STR}
          s_add_u32 s{sPFY}, s{sPFY}, {16*32768}
          s_add_u32 s{sS}, s{sS}, 1
          s_cmp_lt_u32 s{sS}, 63
          s_cbranch_scc1 {top}
          s_branch {done}''')
    a.label(slow)
    a(f'v_max_f32 v{t+4}, v{t}, v{t+1}')
    butterfly('v_max_f32', t + 4, t + 5)
    a(f'''v_sub_f32 v{t}, v{t}, v{t+4}
          v_sub_f32 v{t+1}, v{t+1}, v{t+4}
          v_exp_f32 v{t+2}, v{t}
          v_exp_f32 v{t+3}, v{t+1}
          v_add_f32 v{t+4}, v{t+2}, v{t+3}''')
    butterfly('v_add_f32', t + 4, t + 5)
    a(f's_branch {back}')
    for f in tail: f()

def role_V(a, cfg, done):
    vUW, vUR, vPP, vPP2, vMS, vMN, vOUT, vFY, vFO = vTW, vTR, vMB, vSW2, vPS, vX, vX2, vPF3, vPF2
    lane_setup(a); common_setup(a)
    a(f'''s_lshl_b32 s{sT0}, s{sW}, 11
          s_add_u32 s{sT1}, s{sT0}, {L_T}
          v_lshlrev_b32 v{vUW}, 4, v{N}
          v_lshl_add_u32 v{vUW}, v{G}, 2, v{vUW}
          v_add_u32 v{vUW}, s{sT1}, v{vUW}
          v_mul_u32_u24 v{vUR}, 448, v{G}
          v_lshl_add_u32 v{vUR}, v{N}, 4, v{vUR}
          v_add_u32 v{vUR}, s{sT1}, v{vUR}
          s_mul_i32 s{sT1}, s{sW}, 2560
          v_mul_u32_u24 v6, 640, v{G}
          v_add_u32 v6, s{sT1}, v6
          v_lshl_add_u32 v{vPP}, v{N}, 4, v6
          v_lshrrev_b32 v7, 2, v{N}
          v_and_b32 v9, 1, v{N}
          v_lshl_add_u32 v7, v7, 1, v9
          v_lshl_add_u32 v{vPP2}, v7, 4, v6
          v_mov_b32 v8, {OOB}
          v_and_b32 v9, 2, v{N}
          v_cmp_eq_u32 vcc, 0, v9
          v_cndmask_b32 v{vPP2}, v8, v{vPP2}, vcc''')
    a(f'''s_add_u32 s{sT1}, s{sT0}, {L_RED}
          v_lshlrev_b32 v6, 9, v{G}
          v_add_u32 v6, s{sT1}, v6
          v_add_u32 v7, 20, v{N}
          v_cmp_gt_u32 vcc, 14, v{N}
          v_cndmask_b32 v7, v7, v{N}, vcc
          v_lshl_add_u32 v{vSW}, v7, 2, v6''')
    red_read_addr(a, N)
    a(f'''s_sub_u32 s{sT1}, s{sROLE}, 16
          s_mul_i32 s{sT2}, s{sT1}, 28
          v_lshlrev_b32 v6, 1, v5
          v_add_u32 v6, s{sT2}, v6
          v_lshrrev_b32 v7, 4, v6
          v_lshlrev_b32 v{vMS}, 8, v7
          v_and_b32 v9, 2, v6
          v_add_u32 v7, v9, v4
          v_lshl_add_u32 v{vMS}, v7, 4, v{vMS}
          v_and_b32 v7, 12, v6
          v_add_u32 v{vMS}, v7, v{vMS}
          s_lshl_b32 s{sT2}, s{sW}, 6
          v_add_u32 v{vMS}, s{sT2}, v{vMS}
          v_lshrrev_b32 v7, 2, v6
          v_lshlrev_b32 v{vMN}, 6, v7
          v_lshl_add_u32 v{vMN}, v4, 3, v{vMN}
          v_lshl_add_u32 v{vMN}, v9, 1, v{vMN}
          s_lshl_b32 s{sT2}, s{sW}, 4
          s_add_u32 s{sT2}, s{sT2}, {R_MSX - R_MSA}
          v_add_u32 v{vMN}, s{sT2}, v{vMN}
          v_cmp_gt_u32 vcc, 14, v5
          v_cndmask_b32 v{vMS}, v8, v{vMS}, vcc
          v_cndmask_b32 v{vMN}, v8, v{vMN}, vcc
          s_lshl_b32 s{sYO}, s{sT1}, 15
          s_lshl_b32 s{sT2}, s{sW}, 13
          s_add_u32 s{sYO}, s{sYO}, s{sT2}
          s_add_u32 s{sYO}, s{sYO}, {YF_OFF}
          s_add_u32 s{sYO2}, s{sYO}, 4096
          s_mov_b32 s{sPO}, {REC_OFF + R_P}
          s_mov_b32 s{sMSO}, {OOB}
          s_lshl_b32 s{sFY}, s{sT1}, 2
          s_add_u32 s{sFY}, s{sFY}, s{sW}
          s_lshl_b32 s{sFY}, s{sFY}, 5
          s_add_u32 s{sFY}, s{sFY}, {FL_OFF + F_Y}
          v_and_b32 v{vFO}, 7, v{L}
          v_lshlrev_b32 v{vFO}, 2, v{vFO}
          v_mov_b32 v{vFY}, 0
          s_mov_b32 s{sYK}, 0''')
    wait_dbg(a, D_FLAGS_OK, 1, done, 10, 11)
    wait_flags(a, FL_OFF + F_B, 56, 4, 1, done, L, 10, sleep=1)
    mark(a, cfg, 4)
    a(f's_mul_i32 s{sT0}, s{sROLE}, {WF_MAT}')
    load_weights(a)
    chain_start(a, done)
    mode_offsets(a, REC_OFF + REC_STR + R_MEMF, cfg)
    mark(a, cfg, 5)
    top = a.newlabel('L_Vtop'); yok = a.newlabel('L_Vyok'); ychk = a.newlabel('L_Vychk')
    a.label(top)
    zero_acc(a, range(ACC, ACC + 28))
    a(f'''s_cmp_lt_u32 s{sS}, s{sYK}
          s_cbranch_scc0 {ychk}''')
    a.label(yok)
    early = []; tail = []
    for f in range(8):
        early.append(f'buffer_load_dwordx4 {vr(XB+4*f,4)}, v{vPOLL}, {S(sWS)}, s{sYO if f<4 else sYO2} offen offset:{(f%4)*1024} sc1')
    early += [f'buffer_store_dword v{vOUT}, v{vMS}, {S(sWS)}, s{sMSO} offen sc1',
              f'buffer_store_dword v{vOUT}, v{vMN}, {S(sWS)}, s{sMSO} offen sc1',
              f'buffer_load_dword v{vFY}, v{vFO}, {S(sWS)}, s{sFY} offen sc1']
    stage1(a, early, {}, cfg, 1, done, tail)
    for x in post_ops(6): a(x)
    a(f'''ds_read_b128 {vr(SACC,4)}, v{vUR}
          ds_read_b128 {vr(SACC+4,4)}, v{vUR} offset:224''')
    PA = MA + 8
    pl = [f'buffer_load_dwordx4 {vr(PA,4)}, v{vPP2}, {S(sWS)}, s{sPO} offen offset:512 sc1',
          f'buffer_load_dwordx4 {vr(PA+4,4)}, v{vPP}, {S(sWS)}, s{sPO} offen sc1',
          f'buffer_load_dwordx4 {vr(PA+8,4)}, v{vPP}, {S(sWS)}, s{sPO} offen offset:256 sc1']
    a('s_waitcnt lgkmcnt(0)')
    lp = a.newlabel('L_pp'); rt = a.newlabel('L_pretry')
    a(f's_mov_b32 s{sTO}, 0x40000')
    for x in pl: a(x)
    warm(a, cfg.get('stag', 6))
    a.label(lp)
    for x in pl: a(x)
    warm(a, cfg.get('vpw', 2))
    d = ACC
    mf = [f'v_mfma_f32_16x16x32_bf16 {vr(d+4*nt,4)}, {vr(PA,4)}, {vr(SACC+4*nt,4)}, 0' for nt in range(2)]
    for i in range(2):
        mf += [f'v_smfmac_f32_16x16x64_bf16 {vr(d+4*nt,4)}, {vr(PA+4+4*i,4)}, {vr(XB+(i*2+nt)*8,8)}, v{vIDX}' for nt in range(2)]
    a(f'''s_waitcnt vmcnt(5)
          v_max3_u32 v{vT0}, v{PA}, v{PA+1}, v{PA+2}
          v_max_u32 v{vT0}, v{vT0}, v{PA+3}''')
    stamp(a, cfg, 2)
    for i in range(2):
        r = PA + 4 + 4*i
        a(f'''s_waitcnt vmcnt({4-i})
              v_max3_u32 v{vT0}, v{vT0}, v{r}, v{r+1}
              v_max3_u32 v{vT0}, v{vT0}, v{r+2}, v{r+3}''')
    a(f'v_cmp_eq_u32 vcc, -1, v{vT0}')
    a(mf[0]); a(mf[1])
    a(f's_cbranch_vccnz {rt}')
    def retry():
        a.label(rt)
        a(f'''s_sub_u32 s{sTO}, s{sTO}, 1
              s_cbranch_scc0 {lp}
              s_branch {done}''')
    tail.append(retry)
    for x in mf[2:]: a(x)
    a(f'''v_add_f32 v{d}, v{d}, v{d+2}
          v_add_f32 v{d+1}, v{d+1}, v{d+3}
          ds_write2_b32 v{vSW}, v{d}, v{d+1} offset0:0 offset1:64
          v_add_f32 v{d+4}, v{d+4}, v{d+6}
          v_add_f32 v{d+5}, v{d+5}, v{d+7}
          ds_write2_b32 v{vSW}, v{d+4}, v{d+5} offset0:14 offset1:78''')
    t = ACC + 12
    red_sum(a, t, cfg)
    a(f'''v_cvt_pk_bf16_f32 v{vOUT}, v{t}, v{t+1}
          v_min_u32 v{vOUT}, -2, v{vOUT}
          buffer_store_dword v{vOUT}, v{vMS}, {S(sWS)}, s{sFAST} offen
          buffer_store_dword v{vOUT}, v{vMS}, {S(sWS)}, s{sSLOW} offen sc1''')
    stamp(a, cfg, 3)
    dump_stamps(a, cfg)
    a(f'''s_add_u32 s{sHO}, s{sHO}, {REC_STR}
          s_add_u32 s{sHO2}, s{sHO2}, {REC_STR}
          s_add_u32 s{sPO}, s{sPO}, {REC_STR}
          s_add_u32 s{sFAST}, s{sFAST}, {REC_STR}
          s_add_u32 s{sSLOW}, s{sSLOW}, {REC_STR}
          s_add_u32 s{sYO}, s{sYO}, {16*32768}
          s_add_u32 s{sYO2}, s{sYO2}, {16*32768}
          s_add_u32 s{sMSO}, s{sPO}, {R_MSA - R_P}
          s_add_u32 s{sS}, s{sS}, 1
          s_cmp_lt_u32 s{sS}, 63
          s_cbranch_scc1 {top}
          buffer_store_dword v{vOUT}, v{vMN}, {S(sWS)}, s{sMSO} offen sc1
          buffer_store_dword v{vOUT}, v{vMS}, {S(sWS)}, s{sMSO} offen sc1
          s_branch {done}''')
    a.label(ychk)
    a(f's_mov_b32 s{sTO}, 0x20000')
    yl = a.newlabel('L_Vyl')
    a.label(yl)
    a(f's_mov_b32 s{sYK}, 1000')
    for r in range(NRO):
        a(f'''v_readlane_b32 s{sT0}, v{vFY}, {r}
              s_mul_i32 s{sT0}, s{sT0}, {NRO}
              s_add_u32 s{sT0}, s{sT0}, {r}
              s_min_u32 s{sYK}, s{sYK}, s{sT0}''')
    a(f'''s_cmp_lt_u32 s{sS}, s{sYK}
          s_cbranch_scc1 {yok}
          buffer_load_dword v{vFY}, v{vFO}, {S(sWS)}, s{sFY} offen sc1
          s_waitcnt vmcnt(0)
          s_sub_u32 s{sTO}, s{sTO}, 1
          s_cbranch_scc0 {yl}
          s_branch {done}''')
    for f in tail: f()
```

```python
from asmlib import *

WS_SIZE = 1 << 28
WF_OFF  = 0
WF_MAT  = 401408
YF_OFF  = 0x1000000
REC_OFF = 0x3000000
REC_STR = 0x13000
R_MEMF  = 0
R_P     = 0x2000
R_MSA   = 0x5000
R_MSX   = 0x7000
R_PX    = 0x9000
OA_OFF  = 0x3600000
G_OFF   = 0x3800000
KVP_OFF = 0x3810000
FL_OFF  = 0x3900000
F_B = 0; F_A = 1024; F_Y = 2048; F_KV = 4096; F_O = 5120; FL_SIZE = 8192
DBG_OFF = 0x3A00000
OOB     = 0x40000000
LDS_SIZE = 151552
L_ROLE  = LDS_SIZE - 16
LOG2E_HEX = 0x3fb8aa3b
ASCALE_HEX = 0x3db8aa3b
NRO = 6; NRX = 4

D_TICK = 0; D_FLAGS_OK = 8; D_SENT = 9; D_OVF = 10

sWS = 4; sXS = 8
sW = 12; sROLE = 13; sS = 14
sTO = 20
sT0 = 24; sT1 = 25; sT2 = 26; sT3 = 27
sR1 = 32; sR2 = 36
sDBG = 40
sM = 42
sXCC = 3

L, N, G = 20, 21, 22
vTID = 119

def lane_setup(a):
    a(f'''v_and_b32 v{L}, 63, v{vTID}
          v_and_b32 v{N}, 15, v{vTID}
          v_bfe_u32 v{G}, v{vTID}, 4, 2''')

def wreg(j, i, n=8, h=0):
    t = j * 7 + i
    if t < 32: f, b = 'a', t * 8
    else: f, b = 'v', 120 + (t - 32) * 8
    return vr(b + 4 * h, n, f)

def srd(a, r, slot, nbytes):
    a(f'''s_load_dwordx2 s[{r}:{r+1}], s[0:1], {slot*8}
          s_mov_b32 s{r+2}, {nbytes}
          s_mov_b32 s{r+3}, 0x20000
          s_waitcnt lgkmcnt(0)''')

def S(r): return f's[{r}:{r+3}]'

def wait_dbg(a, idx, val, abort, t0, t1):
    lp = a.newlabel('L_wd'); dn = a.newlabel('L_wdd')
    a(f'''s_mov_b32 s{sTO}, 0x20000
          v_mov_b32 v{t0}, 0''')
    a.label(lp)
    a(f'''global_load_dword v{t1}, v{t0}, s[{sDBG}:{sDBG+1}] offset:{4*idx} sc1
          s_waitcnt vmcnt(0)
          v_cmp_gt_u32 vcc, {val}, v{t1}
          s_cbranch_vccz {dn}
          s_sleep 2
          s_sub_u32 s{sTO}, s{sTO}, 1
          s_cbranch_scc0 {lp}
          s_branch {abort}''')
    a.label(dn)

def wait_flags(a, soff, nl, width, thr, abort, lane, t, sleep=2):
    lp = a.newlabel('L_wf'); dn = a.newlabel('L_wfd')
    sh = {1: 2, 4: 4}[width]
    a(f'''s_mov_b32 s{sTO}, 0x20000
          v_lshlrev_b32 v{t+4}, {sh}, v{lane}
          v_cmp_gt_u32 s[{sM}:{sM+1}], {nl}, v{lane}''')
    if not isinstance(soff, str):
        a(f's_mov_b32 s{sT3}, {soff}'); soff = f's{sT3}'
    a.label(lp)
    if width == 4:
        a(f'''buffer_load_dwordx4 {vr(t,4)}, v{t+4}, {S(sWS)}, {soff} offen sc1
              s_waitcnt vmcnt(0)
              v_min3_u32 v{t}, v{t}, v{t+1}, v{t+2}
              v_min_u32 v{t}, v{t}, v{t+3}''')
    else:
        a(f'''buffer_load_dword v{t}, v{t+4}, {S(sWS)}, {soff} offen sc1
              s_waitcnt vmcnt(0)''')
    a(f'''v_cmp_gt_u32 vcc, {thr}, v{t}
          s_and_b64 vcc, vcc, s[{sM}:{sM+1}]
          s_cbranch_scc0 {dn}
          s_sleep {sleep}
          s_sub_u32 s{sTO}, s{sTO}, 1
          s_cbranch_scc0 {lp}
          s_branch {abort}''')
    a.label(dn)

def poll_sent(a, loads, regs, abort, t, sleep=1):
    lp = a.newlabel('L_ps'); dn = a.newlabel('L_psd')
    a(f's_mov_b32 s{sTO}, 0x20000')
    a.label(lp)
    for x in loads: a(x)
    a('s_waitcnt vmcnt(0)')
    r = list(regs)
    a(f'v_max_u32 v{t}, v{r[0]}, v{r[1]}')
    for k in range(2, len(r), 2): a(f'v_max3_u32 v{t}, v{t}, v{r[k]}, v{r[k+1]}')
    a(f'''v_cmp_eq_u32 vcc, -1, v{t}
          s_cbranch_vccz {dn}
          s_sleep {sleep}
          s_sub_u32 s{sTO}, s{sTO}, 1
          s_cbranch_scc0 {lp}
          s_branch {abort}''')
    a.label(dn)

def frag_src_lane(a, dst, rowstride, t0, t1, perm=False):
    a(f'''v_lshrrev_b32 v{t0}, 2, v{L}
          v_lshrrev_b32 v{t1}, 5, v{L}
          v_lshlrev_b32 v{t1}, 1, v{t1}
          v_and_b32 v{dst}, 3, v{L}
          v_xor_b32 v{t1}, v{t1}, v{dst}''')
    if perm:
        a(f'''v_and_b32 v{dst}, 12, v{t0}
              v_add_u32 v{t0}, v{t0}, v{dst}''')
    a(f'''s_mov_b32 s{sT3}, {rowstride}
          v_mul_lo_u32 v{dst}, v{t0}, s{sT3}
          v_lshl_add_u32 v{dst}, v{t1}, 4, v{dst}''')

def frag_read_lane(a, dst, t0):
    a(f'''v_lshrrev_b32 v{t0}, 3, v{N}
          v_lshlrev_b32 v{t0}, 1, v{t0}
          v_xor_b32 v{t0}, v{t0}, v{G}
          v_lshlrev_b32 v{dst}, 6, v{N}
          v_lshl_add_u32 v{dst}, v{t0}, 4, v{dst}''')

def mark(a, cfg, k, r=12):
    if not cfg.get('marks'): return
    a(f'''s_memrealtime s[44:45]
          s_lshl_b32 s46, s2, 6
          s_add_u32 s46, s46, {DBG_OFF + 4*k}
          s_cmp_eq_u32 s{sW}, 0
          s_cselect_b32 s46, s46, {OOB}
          s_waitcnt lgkmcnt(0)
          v_mov_b32 v{r}, s44
          v_mov_b32 v{r+1}, 0
          buffer_store_dword v{r}, v{r+1}, {S(sWS)}, s46 offen''')
```

```python
from common import *

L_PA = 0
L_PB = 32768

def p_phase(a, cfg, abort):
    sH, sKK, sCH, sWC, sKE = 14, 15, 16, 17, 18
    vSA, vSB, vSO, vRA, vRB, vL16 = 24, 25, 26, 27, 28, 29
    vAD = 30
    ACC = 40
    FA = 96
    FB = 128
    PK = 184
    lane_setup(a)
    a(f'''s_and_b32 s{sT0}, s2, 7
          s_lshr_b32 s{sT1}, s2, 3
          s_cmp_ge_u32 s{sT1}, 14
          s_cselect_b32 s{sT2}, 1, 0
          s_lshl_b32 s{sH}, s{sT0}, 1
          s_add_u32 s{sH}, s{sH}, s{sT2}
          s_mul_i32 s{sT2}, s{sT2}, 14
          s_sub_u32 s19, s{sT1}, s{sT2}
          s_and_b32 s{sCH}, s19, 1
          s_and_b32 s{sKK}, s19, 14
          s_lshr_b32 s{sT0}, s{sW}, 1
          s_add_u32 s{sKK}, s{sKK}, s{sT0}
          s_and_b32 s{sWC}, s{sW}, 1''')
    frag_src_lane(a, vSA, 8192, 6, 7, perm=True)
    def row_dma(r):
        a(f'''s_lshl_b32 s{sT0}, s{sKK}, 5
              s_lshl_b32 s{sT1}, s{sWC}, 2
              s_add_u32 s{sT0}, s{sT0}, s{sT1}
              s_lshl_b32 s{sT0}, s{sT0}, 13
              s_lshl_b32 s{sT1}, s{sH}, 9
              s_add_u32 s{sT0}, s{sT0}, s{sT1}
              s_lshl_b32 s{sT1}, s{sW}, 13''')
        for ke in range(8):
            a(f'''s_add_u32 m0, s{sT1}, {L_PA + ke*1024 - ke*64}
                  buffer_load_dwordx4 v{vSA}, {S(r)}, s{sT0} offen offset:{ke*64} lds''')
    a(f'''s_load_dwordx2 s[{sR1}:{sR1+1}], s[0:1], 64
          s_load_dwordx2 s[{sR2}:{sR2+1}], s[0:1], 72
          s_mov_b32 s{sR1+2}, 3670016
          s_mov_b32 s{sR1+3}, 0x20000
          s_mov_b32 s{sR2+2}, 3670016
          s_mov_b32 s{sR2+3}, 0x20000
          v_cmp_lt_u32 vcc, 27, v{L}
          v_mov_b32 v6, {896 - 448}
          v_cndmask_b32 v6, 0, v6, vcc
          v_lshl_add_u32 v{vSO}, v{L}, 4, v6
          s_mul_i32 s{sT0}, s{sH}, 229376
          s_mul_i32 s{sT1}, s{sW}, {64*896}
          s_add_u32 s{sT0}, s{sT0}, s{sT1}
          s_mul_i32 s{sT1}, s{sCH}, 448
          s_add_u32 s{sT0}, s{sT0}, s{sT1}
          s_mul_i32 s{sT1}, s{sW}, {64*448}
          s_add_u32 s{sT1}, s{sT1}, {L_PB}
          s_mov_b32 s{sT2}, 0
          s_mov_b32 exec_hi, 0x00ffffff
          s_waitcnt lgkmcnt(0)''')
    lp = a.newlabel('L_pwo')
    a.label(lp)
    a(f'''s_mov_b32 m0, s{sT1}
          s_add_u32 s{sT1}, s{sT1}, 896
          buffer_load_dwordx4 v{vSO}, {S(sR2)}, s{sT0} offen lds
          s_add_u32 s{sT0}, s{sT0}, 1792
          s_add_u32 s{sT2}, s{sT2}, 1
          s_cmp_lt_u32 s{sT2}, 32
          s_cbranch_scc1 {lp}
          s_mov_b64 exec, -1''')
    row_dma(sR1)
    frag_src_lane(a, vSB, 8192, 6, 7)
    frag_read_lane(a, vRA, 6)
    a(f'''s_lshr_b32 s{sT0}, s{sW}, 1
          s_lshl_b32 s{sT0}, s{sT0}, 14
          v_add_u32 v{vRA}, s{sT0}, v{vRA}
          v_lshlrev_b32 v{vL16}, 4, v{L}
          v_lshrrev_b32 v6, 2, v{N}
          v_lshl_add_u32 v6, v{G}, 3, v6
          v_mul_u32_u24 v{vRB}, 448, v6
          v_and_b32 v6, 3, v{N}
          v_lshl_add_u32 v{vRB}, v6, 3, v{vRB}
          s_mul_i32 s{sT0}, s{sWC}, 224
          s_add_u32 s{sT0}, s{sT0}, {L_PB}
          v_add_u32 v{vRB}, s{sT0}, v{vRB}
          s_mul_i32 s{sT1}, s{sH}, 28
          s_mov_b32 s{sT2}, {WF_MAT}''')
    for jt in range(7):
        a(f'''v_add_u32 v6, {16*jt}, v{N}
              v_mul_u32_u24 v7, 2341, v6
              v_lshrrev_b32 v7, 16, v7
              v_mul_u32_u24 v8, 28, v7
              v_sub_u32 v6, v6, v8
              v_add_u32 v6, s{sT1}, v6
              v_mul_lo_u32 v7, v7, s{sT2}
              v_lshrrev_b32 v8, 4, v6
              v_mul_u32_u24 v8, 14336, v8
              v_and_b32 v6, 15, v6
              v_lshl_add_u32 v6, v{G}, 4, v6
              v_lshl_add_u32 v6, v6, 4, v8
              v_add_u32 v{vAD+jt}, v6, v7''')
    def compute(tr):
        def reads(b, ko):
            r = [f'ds_read_b128 {vr(FA+8*b+4*mt,4)}, v{vRA} offset:{mt*8192 + ko*1024}' for mt in range(2)]
            for jt in range(7):
                d = FB + 28*b + 4*jt
                if tr:
                    r += [f'ds_read_b64_tr_b16 {vr(d,2)}, v{vRB} offset:{ko*32*448 + jt*32}',
                          f'ds_read_b64_tr_b16 {vr(d+2,2)}, v{vRB} offset:{ko*32*448 + 4*448 + jt*32}']
                else:
                    r += [f'ds_read_b128 {vr(d,4)}, v{vRB} offset:{jt*8192 + ko*1024}']
            return r
        for r in range(56): a(f'v_mov_b32 v{ACC+r}, 0')
        for x in reads(0, 0): a(x)
        a(f's_mov_b32 s{sKE}, 0')
        lp = a.newlabel('L_pc')
        a.label(lp)
        for b in range(2):
            q = reads(1 - b, 1 + b)
            a('s_waitcnt lgkmcnt(0)')
            for jt in range(7):
                for mt in range(2):
                    d = ACC + 28*mt + 4*jt
                    a(f'v_mfma_f32_16x16x32_bf16 {vr(d,4)}, {vr(FA+8*b+4*mt,4)}, {vr(FB+28*b+4*jt,4)}, {vr(d,4)}')
                    if q: a(q.pop(0))
            for x in q: a(x)
        a(f'''v_add_u32 v{vRA}, 2048, v{vRA}
              v_add_u32 v{vRB}, {64*448 if tr else 2048}, v{vRB}
              s_add_u32 s{sKE}, s{sKE}, 1
              s_cmp_lt_u32 s{sKE}, 4
              s_cbranch_scc1 {lp}
              s_waitcnt lgkmcnt(0)''')
    def pack(jt, scale):
        for mt in range(2):
            d = ACC + 28*mt + 4*jt
            if scale:
                for r in range(4): a(f'v_mul_f32 v{d+r}, s{sT3}, v{d+r}')
            a(f'''v_cvt_pk_bf16_f32 v{PK+4*jt+2*mt}, v{d}, v{d+1}
                  v_cvt_pk_bf16_f32 v{PK+4*jt+2*mt+1}, v{d+2}, v{d+3}''')
    def flag(off_code):
        sk = a.newlabel('L_pf')
        a(f'''s_cmp_lg_u32 s{sW}, 0
              s_cbranch_scc1 {sk}''')
        a(off_code)
        a(f'''v_mov_b32 v6, 0
              v_mov_b32 v7, 1
              s_mov_b64 exec, 1
              buffer_store_dword v7, v6, {S(sWS)}, s{sT0} offen sc1
              s_mov_b64 exec, -1''')
        a.label(sk)
    wait_dbg_w0 = a.newlabel('L_pw0')
    a(f'''s_cmp_lg_u32 s{sW}, 0
          s_cbranch_scc1 {wait_dbg_w0}''')
    wait_dbg(a, D_FLAGS_OK, 1, abort, 6, 7)
    a.label(wait_dbg_w0)
    a('s_waitcnt vmcnt(0)\ns_barrier')
    mark(a, cfg, 1)
    compute(True)
    a(f'''s_lshl_b32 s{sT0}, s{sCH}, 3
          s_lshl_b32 s{sT1}, s{sWC}, 2
          s_add_u32 s{sT0}, s{sT0}, s{sT1}
          s_add_u32 s{sT0}, s{sT0}, 16
          s_mul_i32 s{sT0}, s{sT0}, {WF_MAT}
          s_lshl_b32 s{sT1}, s{sKK}, 10
          s_add_u32 s{sT0}, s{sT0}, s{sT1}''')
    for jt in range(7):
        pack(jt, False)
        a(f'buffer_store_dwordx4 {vr(PK+4*jt,4)}, v{vAD+jt}, {S(sWS)}, s{sT0} offen sc1')
    a(f'''s_load_dwordx2 s[{sR1}:{sR1+1}], s[0:1], 48
          s_load_dwordx2 s[{sR2}:{sR2+1}], s[0:1], 56
          s_waitcnt lgkmcnt(0)
          s_barrier''')
    row_dma(sR1)
    a('s_waitcnt vmcnt(8)\ns_barrier')
    flag(f's_lshl_b32 s{sT0}, s2, 2\ns_add_u32 s{sT0}, s{sT0}, {FL_OFF + F_B}')
    mark(a, cfg, 2)
    a(f'''s_mul_i32 s{sT0}, s{sCH}, {224*8192}
          s_lshl_b32 s{sT1}, s{sH}, 9
          s_add_u32 s{sT0}, s{sT0}, s{sT1}
          s_lshl_b32 s{sT1}, s{sW}, 7
          s_add_u32 s{sT0}, s{sT0}, s{sT1}
          s_lshl_b32 s{sT1}, s{sW}, 11
          s_add_u32 s{sT1}, s{sT1}, {L_PB}
          s_mov_b32 s{sT2}, 0''')
    lp = a.newlabel('L_pwk')
    a.label(lp)
    a(f'''s_mov_b32 m0, s{sT1}
          s_add_u32 s{sT2}, s{sT2}, 1
          buffer_load_dwordx4 v{vSB}, {S(sR2)}, s{sT0} offen lds
          s_add_u32 m0, s{sT1}, {1024-64}
          s_add_u32 s{sT1}, s{sT1}, 8192
          buffer_load_dwordx4 v{vSB}, {S(sR2)}, s{sT0} offen offset:64 lds
          s_add_u32 s{sT0}, s{sT0}, {16*8192}
          s_cmp_lt_u32 s{sT2}, 14
          s_cbranch_scc1 {lp}''')
    frag_read_lane(a, vRB, 6)
    a(f'''v_add_u32 v{vRA}, -8192, v{vRA}
          s_mul_i32 s{sT0}, s{sWC}, {7*8192}
          s_add_u32 s{sT0}, s{sT0}, {L_PB}
          v_add_u32 v{vRB}, s{sT0}, v{vRB}
          s_waitcnt vmcnt(0)
          s_barrier''')
    compute(False)
    a(f'''s_mul_i32 s{sT0}, s{sH}, {WF_MAT}
          s_mul_i32 s{sT1}, s{sCH}, {14*14336}
          s_add_u32 s{sT0}, s{sT0}, s{sT1}
          s_mul_i32 s{sT1}, s{sWC}, {7*14336}
          s_add_u32 s{sT0}, s{sT0}, s{sT1}
          s_lshl_b32 s{sT1}, s{sKK}, 10
          s_add_u32 s{sT0}, s{sT0}, s{sT1}
          s_mov_b32 s{sT3}, {ASCALE_HEX}''')
    for jt in range(7):
        pack(jt, True)
        a(f'buffer_store_dwordx4 {vr(PK+4*jt,4)}, v{vL16}, {S(sWS)}, s{sT0} offen sc1')
        a(f's_add_u32 s{sT0}, s{sT0}, 14336')
    a('s_waitcnt vmcnt(0)\ns_barrier')
    flag(f's_lshl_b32 s{sT0}, s{sH}, 6\ns_lshl_b32 s{sT1}, s19, 2\ns_add_u32 s{sT0}, s{sT0}, s{sT1}\ns_add_u32 s{sT0}, s{sT0}, {FL_OFF + F_A}')

def init_phase(a, cfg):
    lane_setup(a)
    nf = a.newlabel('L_inf'); nm = a.newlabel('L_inm')
    a(f'''v_lshlrev_b32 v24, 4, v{vTID}
          v_mov_b32 v4, 0
          v_mov_b32 v5, 0
          v_mov_b32 v6, 0
          v_mov_b32 v7, 0
          s_cmp_lg_u32 s2, 224
          s_cbranch_scc1 {nf}
          s_mov_b32 s{sT0}, {FL_OFF}
          s_mov_b32 s{sT1}, {FL_OFF + 4096}
          buffer_store_dwordx4 v[4:7], v24, {S(sWS)}, s{sT0} offen sc1
          buffer_store_dwordx4 v[4:7], v24, {S(sWS)}, s{sT1} offen sc1
          s_waitcnt vmcnt(0)
          s_barrier
          v_mov_b32 v8, 1
          global_store_dword v4, v8, s[{sDBG}:{sDBG+1}] offset:{4*D_FLAGS_OK} sc1''')
    a.label(nf)
    a(f'''v_mov_b32 v8, -1
          v_mov_b32 v9, -1
          v_mov_b32 v10, -1
          v_mov_b32 v11, -1
          s_sub_u32 s{sT0}, s2, 224
          s_mul_i32 s{sT0}, s{sT0}, {2*REC_STR}
          s_add_u32 s{sT0}, s{sT0}, {REC_OFF}
          s_mov_b32 s{sT1}, 0''')
    lp = a.newlabel('L_inl')
    a.label(lp)
    a(f'''buffer_store_dwordx4 v[8:11], v24, {S(sWS)}, s{sT0} offen sc1
          s_add_u32 s{sT0}, s{sT0}, 4096
          s_add_u32 s{sT1}, s{sT1}, 1
          s_cmp_lt_u32 s{sT1}, {2*REC_STR//4096}
          s_cbranch_scc1 {lp}
          s_waitcnt vmcnt(0)
          s_barrier
          s_cmp_lg_u32 s2, 224
          s_cbranch_scc1 {nm}''')
    srd(a, sR1, 5, 7168)
    a(f'''v_lshlrev_b32 v12, 2, v{vTID}
          v_lshrrev_b32 v13, 3, v{vTID}
          v_lshlrev_b32 v13, 8, v13
          v_and_b32 v14, 1, v{vTID}
          v_lshl_add_u32 v13, v14, 5, v13
          v_bfe_u32 v15, v{vTID}, 1, 2
          v_lshl_add_u32 v13, v15, 2, v13
          v_lshrrev_b32 v15, 1, v{vTID}
          v_lshlrev_b32 v15, 6, v15
          v_lshl_add_u32 v15, v14, 2, v15
          v_mov_b32 v16, {OOB}
          v_cmp_gt_u32 vcc, 224, v{vTID}
          v_cndmask_b32 v13, v16, v13, vcc
          v_cndmask_b32 v15, v16, v15, vcc
          v_cndmask_b32 v12, v16, v12, vcc
          s_mov_b32 s{sT0}, {REC_OFF + R_MEMF}
          s_mov_b32 s{sT1}, {REC_OFF + R_MSA}
          s_mov_b32 s{sT2}, {REC_OFF + R_MSX}''')
    for m in range(8):
        a(f's_mov_b32 s{sT3}, {m*896}\nbuffer_load_dword v{30+m}, v12, {S(sR1)}, s{sT3} offen')
    a('s_waitcnt vmcnt(0)')
    for m in range(8):
        rs = (4*(m//2) + m % 2) * 16
        a(f'''v_min_u32 v{30+m}, -2, v{30+m}
              buffer_store_dword v{30+m}, v13, {S(sWS)}, s{sT0} offen offset:{rs} sc1
              buffer_store_dword v{30+m}, v13, {S(sWS)}, s{sT1} offen offset:{rs} sc1
              buffer_store_dword v{30+m}, v15, {S(sWS)}, s{sT2} offen offset:{m*8} sc1''')
    a('s_waitcnt vmcnt(0)\ns_barrier')
    a.label(nm)
    sk = a.newlabel('L_ins')
    a(f'''s_cmp_lg_u32 s{sW}, 0
          s_cbranch_scc1 {sk}
          v_mov_b32 v8, 1
          s_mov_b64 exec, 1
          global_atomic_add v4, v8, s[{sDBG}:{sDBG+1}] offset:{4*D_SENT}
          s_mov_b64 exec, -1''')
    a.label(sk)
```

```python
from common import *
import chain
from chain import load_weights, idx_setup, vIDX, vPOLL, vTW

L_XS = 0
sSEG = 14; sXO = 15; sLB = 16; sC = 17; sR = 18; sCNT = 19; sA = 21; sB = 22; sB2 = 23; sD = 28; sE = 29; sF = 30; sGt = 31

def xs_setup(a, vXS, vXR):
    frag_src_lane(a, vXS, 1792, 6, 7)
    frag_read_lane(a, vXR, 6)
    a(f'''s_lshr_b32 s{sT0}, s{sW}, 1
          s_mul_i32 s{sT0}, s{sT0}, 896
          s_and_b32 s{sT1}, s{sW}, 1
          s_mul_i32 s{sT1}, s{sT1}, 448
          s_add_u32 s{sT0}, s{sT0}, s{sT1}
          v_add_u32 v{vXS}, s{sT0}, v{vXS}
          s_mul_i32 s{sLB}, s{sW}, 7168''')

def xs_dma(a, vXS, segreg):
    a(f's_mul_i32 s{sXO}, s{segreg}, 28672')
    for n in range(7):
        a(f'''s_add_u32 m0, s{sLB}, {n*1024 - n*64}
              buffer_load_dwordx4 v{vXS}, {S(sXS)}, s{sXO} offen offset:{n*64} lds''')

def dense(a, ACC, XF, vXR, w_is_A, mid=None):
    def rd(kk): return [f'ds_read_b128 {vr(XF+8*(kk%2)+4*mt,4)}, v{vXR} offset:{(mt*14+kk)*1024}' for mt in range(2)]
    for x in rd(0): a(x)
    for kk in range(14):
        q = rd(kk + 1) if kk < 13 else []
        a('s_waitcnt lgkmcnt(0)')
        for j in range(7):
            for mt in range(2):
                d = vr(ACC + 28*mt + 4*j, 4); xf = vr(XF + 8*(kk%2) + 4*mt, 4); wf = wreg(j, kk//2, 4, kk%2)
                A, B = (wf, xf) if w_is_A else (xf, wf)
                a(f'v_mfma_f32_16x16x32_bf16 {d}, {A}, {B}, {d if kk else 0}')
                if q and j >= 1: a(q.pop(0))
        if mid and kk == 8: mid()

def role_O(a, cfg, done):
    ACC, XF, PK, vAD = 0, 56, 72, 80
    vXS, vXR, vZ, vUR, vPX, vPM, vG, vO1, vO2, vRW, vT = 102, 103, 104, 105, 107, 108, 109, 110, 111, 112, 114
    L_WO = 65536; L_U = 98304; L_R = 106496
    lane_setup(a); idx_setup(a)
    a(f'''s_sub_u32 s{sT0}, s{sROLE}, 32
          s_mul_i32 s{sC}, s{sT0}, 10923
          s_lshr_b32 s{sC}, s{sC}, 16
          s_mul_i32 s{sT1}, s{sC}, {NRO}
          s_sub_u32 s{sR}, s{sT0}, s{sT1}
          v_mov_b32 v{vZ}, 0''')
    xs_setup(a, vXS, vXR)
    a(f's_mov_b32 s{sSEG}, s{sR}')
    xs_dma(a, vXS, sSEG)
    a(f'''v_lshrrev_b32 v10, 1, v{G}
          v_lshlrev_b32 v10, 12, v10
          v_and_b32 v11, 1, v{G}
          v_lshl_add_u32 v10, v11, 8, v10''')
    for j in range(7):
        a(f'''v_add_u32 v6, {16*j}, v{N}
              v_mul_u32_u24 v7, 4682, v6
              v_lshrrev_b32 v7, 16, v7
              v_mul_u32_u24 v8, 14, v7
              v_sub_u32 v6, v6, v8
              v_lshl_add_u32 v6, v6, 4, v10
              v_and_b32 v8, 1, v7
              v_lshl_add_u32 v6, v8, 11, v6
              v_bfe_u32 v8, v7, 1, 1
              v_lshl_add_u32 v6, v8, 9, v6
              v_lshrrev_b32 v8, 2, v7
              v_lshl_add_u32 v{vAD+j}, v8, 10, v6''')
    srd(a, sR1, 3, 401408)
    a(f'''v_mul_u32_u24 v6, 3584, v{G}
          v_lshl_add_u32 v6, v{N}, 1, v6
          v_mov_b32 v8, {OOB}
          v_cmp_gt_u32 vcc, 3, v{G}
          v_cndmask_b32 v7, v8, v6, vcc
          s_mul_i32 s{sT0}, s{sW}, {112*896}
          s_mul_i32 s{sT1}, s{sC}, 56
          s_add_u32 s{sT0}, s{sT0}, s{sT1}
          s_lshl_b32 s{sA}, s{sW}, 13
          s_add_u32 s{sA}, s{sA}, {L_WO}
          v_add_u32 v9, s{sA}, v{vPOLL}''')
    for hs in range(4):
        for half in range(2):
            a(f's_add_u32 s{sT1}, s{sT0}, {(28*hs + 16*half)*896}')
            for nt in range(2):
                for r in range(4):
                    d = 24 + (nt*4+hs)*4 + 2*half + r//2
                    a(f'buffer_load_ushort v{d + (100 if r%2 else 0)}, v{7 if half else 6}, {S(sR1)}, s{sT1} offen offset:{r*896 + nt*28}')
        if hs == 1: a('s_waitcnt vmcnt(0)')
    a('s_waitcnt vmcnt(0)')
    for k in range(32): a(f'v_lshl_or_b32 v{24+k}, v{124+k}, 16, v{24+k}')
    for f in range(8): a(f'ds_write_b128 v9, {vr(24+4*f,4)} offset:{f*1024}')
    a(f'''s_lshl_b32 s{sT0}, s{sW}, 11
          s_add_u32 s{sT0}, s{sT0}, {L_U}
          v_lshlrev_b32 v{vTW}, 4, v{N}
          v_lshl_add_u32 v{vTW}, v{G}, 2, v{vTW}
          v_add_u32 v{vTW}, s{sT0}, v{vTW}
          v_mul_u32_u24 v{vUR}, 448, v{G}
          v_lshl_add_u32 v{vUR}, v{N}, 4, v{vUR}
          v_add_u32 v{vUR}, s{sT0}, v{vUR}
          s_mul_i32 s{sT0}, s{sW}, 10240
          v_lshrrev_b32 v6, 1, v{G}
          v_mul_u32_u24 v{vPX}, 2560, v6
          v_lshl_add_u32 v{vPX}, v11, 8, v{vPX}
          v_lshl_add_u32 v{vPX}, v{N}, 4, v{vPX}
          v_add_u32 v{vPX}, s{sT0}, v{vPX}
          v_mul_u32_u24 v{vPM}, 2560, v{G}
          v_lshl_add_u32 v{vPM}, v{N}, 4, v{vPM}
          v_add_u32 v{vPM}, s{sT0}, v{vPM}
          v_lshlrev_b32 v{vG}, 3, v{N}
          v_mul_u32_u24 v6, 1792, v{N}
          v_lshl_add_u32 v6, v{G}, 3, v6
          s_lshr_b32 s{sT0}, s{sW}, 1
          s_mul_i32 s{sT0}, s{sT0}, 896
          s_and_b32 s{sT1}, s{sW}, 1
          s_mul_i32 s{sT1}, s{sT1}, 28
          s_add_u32 s{sT0}, s{sT0}, s{sT1}
          s_mul_i32 s{sT1}, s{sC}, 56
          s_add_u32 s{sT0}, s{sT0}, s{sT1}
          v_add_u32 v6, s{sT0}, v6
          v_cmp_gt_u32 vcc, 3, v{G}
          v_cndmask_b32 v{vO1}, v8, v6, vcc
          v_cndmask_b32 v{vO2}, v6, v8, vcc
          v_add_u32 v{vRW}, {L_R}, v{vPOLL}
          v_mov_b32 v{vT+5}, v{L}''')
    wait_dbg(a, D_FLAGS_OK, 1, done, 10, 11)
    wait_flags(a, FL_OFF + F_B, 56, 4, 1, done, L, 10, sleep=1)
    mark(a, cfg, 4)
    a(f'''s_add_u32 s{sT0}, s{sC}, 16
          s_mul_i32 s{sT0}, s{sT0}, {WF_MAT}''')
    load_weights(a, rot=False)
    a(f'''s_lshl_b32 s{sF}, s{sC}, 2
          s_add_u32 s{sF}, s{sF}, s{sW}
          s_lshl_b32 s{sE}, s{sF}, 13
          s_add_u32 s{sE}, s{sE}, {YF_OFF}
          s_lshl_b32 s{sF}, s{sF}, 5
          s_lshl_b32 s{sT0}, s{sR}, 2
          s_add_u32 s{sF}, s{sF}, s{sT0}
          s_add_u32 s{sF}, s{sF}, {FL_OFF + F_Y}
          s_mov_b32 s{sCNT}, 0
          s_waitcnt vmcnt(0)''')
    mark(a, cfg, 5)
    top = a.newlabel('L_O1')
    a.label(top)
    a(f'''s_waitcnt vmcnt(7)
          s_barrier
          s_xor_b32 s{sLB}, s{sLB}, 0x8000
          s_add_u32 s{sD}, s{sSEG}, {NRO}''')
    xs_dma(a, vXS, sD)
    def flagprev():
        a(f'''s_waitcnt vmcnt(7)
              v_mov_b32 v{PK}, s{sCNT}
              s_mov_b64 exec, 1
              buffer_store_dword v{PK}, v{vZ}, {S(sWS)}, s{sF} offen sc1
              s_mov_b64 exec, -1''')
    dense(a, ACC, XF, vXR, False, flagprev)
    a(f'''v_xor_b32 v{vXR}, 0x8000, v{vXR}
          s_lshl_b32 s{sT0}, s{sSEG}, 19
          s_add_u32 s{sT0}, s{sT0}, s{sE}''')
    for j in range(7):
        p = PK + 4*(j%2)
        for r in range(4): a(f'v_cvt_pk_bf16_f32 v{p+r}, v{ACC+4*j+r}, v{ACC+28+4*j+r}')
        a(f'buffer_store_dwordx4 {vr(p,4)}, v{vAD+j}, {S(sWS)}, s{sT0} offen sc1')
    a(f'''s_add_u32 s{sCNT}, s{sCNT}, 1
          s_mov_b32 s{sSEG}, s{sD}
          s_cmp_lt_u32 s{sSEG}, 64
          s_cbranch_scc1 {top}
          s_waitcnt vmcnt(0)
          v_mov_b32 v{PK}, s{sCNT}
          s_mov_b64 exec, 1
          buffer_store_dword v{PK}, v{vZ}, {S(sWS)}, s{sF} offen sc1
          s_mov_b64 exec, -1''')
    mark(a, cfg, 6)
    srd(a, sR1, 12, 1835008)
    wait_dbg(a, D_SENT, 32, done, 10, 11)
    a(f's_mov_b32 s{sSEG}, s{sR}')
    MA, TA, PF, AC2, Y, U, GG = 0, 28, 0, 40, 56, 88, 96
    top = a.newlabel('L_O2')
    a.label(top)
    a(f'''s_lshr_b32 s{sT0}, s{sSEG}, 2
          s_lshl_b32 s{sT0}, s{sT0}, 6
          s_add_u32 s{sA}, s{sT0}, {FL_OFF + F_O}
          s_and_b32 s{sB}, s{sSEG}, 3
          s_add_u32 s{sB}, s{sB}, 1''')
    wait_flags(a, f's{sA}', 16, 1, f's{sB}', done, vT+5, vT, sleep=8)
    a(f'''s_lshl_b32 s{sA}, s{sSEG}, 15
          s_lshl_b32 s{sT0}, s{sW}, 13
          s_add_u32 s{sA}, s{sA}, s{sT0}
          s_add_u32 s{sA}, s{sA}, {OA_OFF}
          s_add_u32 s{sB}, s{sA}, 4096
          s_lshl_b32 s{sGt}, s{sSEG}, 7
          s_add_u32 s{sGt}, s{sGt}, {G_OFF}
          s_lshl_b32 s{sT0}, s{sW}, 13
          s_add_u32 s{sT0}, s{sT0}, {L_WO}
          v_add_u32 v{vT}, s{sT0}, v{vPOLL}''')
    for f in range(8):
        a(f'buffer_load_dwordx4 {vr(4*f,4)}, v{vPOLL}, {S(sWS)}, s{sA if f<4 else sB} offen offset:{(f%4)*1024} sc1')
    a(f'buffer_load_dwordx2 {vr(GG,2)}, v{vG}, {S(sWS)}, s{sGt} offen sc1')
    for f in range(8): a(f'ds_read_b128 {vr(Y+4*f,4)}, v{vT} offset:{f*1024}')
    a('s_waitcnt vmcnt(0) lgkmcnt(0)')
    for hs in range(4):
        for qt in range(2):
            for nt in range(2):
                d = vr(AC2 + (qt*2+nt)*4, 4)
                a(f'v_mfma_f32_16x16x32_bf16 {d}, {vr(Y+(nt*4+hs)*4,4)}, {vr((hs*2+qt)*4,4)}, {d if hs else 0}')
    a(f'''s_lshl_b32 s{sA}, s{sSEG}, 19
          s_add_u32 s{sA}, s{sA}, s{sE}
          s_add_u32 s{sB}, s{sA}, 4096
          s_lshl_b32 s{sT0}, s{sW}, 12
          v_add_u32 v{vT}, s{sT0}, v{vRW}''')
    for k in range(4):
        for r in range(4): a(f'v_mul_f32 v{AC2+4*k+r}, v{GG+k//2}, v{AC2+4*k+r}')
        a(f'ds_write_b128 v{vT}, {vr(AC2+4*k,4)} offset:{k*1024}')
    for f in range(8):
        a(f'buffer_load_dwordx4 {vr(Y+4*f,4)}, v{vPOLL}, {S(sWS)}, s{sA if f<4 else sB} offen offset:{(f%4)*1024} sc1')
    a(f'''v_sub_f32 v{GG}, 1.0, v{GG}
          v_sub_f32 v{GG+1}, 1.0, v{GG+1}
          s_mul_i32 s{sD}, s{sSEG}, {REC_STR}
          s_add_u32 s{sA}, s{sD}, {REC_OFF + R_MSA}
          s_add_u32 s{sB}, s{sA}, 4096''')
    poll_sent(a, [f'buffer_load_dwordx4 {vr(MA+4*f,4)}, v{vPOLL}, {S(sWS)}, s{sA if f<4 else sB} offen offset:{(f%4)*1024} sc1' for f in range(7)],
              range(MA, MA+28), done, vT+1, sleep=cfg.get('o_sleep', 4))
    q = []
    for j in range(7):
        d = TA + 4*(j%3)
        for r in range(4): a(f'v_mov_b32 v{d+r}, 0')
        for i in range(7):
            chain.smf(a, d, MA + 4*i, wreg(j, i))
            if i >= 2 and q: a(q.pop(0))
        q = chain.post_ops(j, d)
    for x in q: a(x)
    a(f'''ds_read_b128 {vr(U,4)}, v{vUR}
          ds_read_b128 {vr(U+4,4)}, v{vUR} offset:224
          s_add_u32 s{sA}, s{sD}, {REC_OFF + R_PX}
          s_add_u32 s{sB}, s{sA}, 5120''')
    pl = []
    for qt in range(2):
        pl.append(f'buffer_load_dwordx4 {vr(PF+20*qt,4)}, v{vPM}, {S(sWS)}, s{sA} offen offset:{qt*1280+1024} sc1')
        for i in range(2):
            for hf in range(2):
                pl.append(f'buffer_load_dwordx4 {vr(PF+20*qt+4+(i*2+hf)*4,4)}, v{vPX}, {S(sWS)}, s{sB if hf else sA} offen offset:{qt*1280+i*512} sc1')
    poll_sent(a, pl, range(PF, PF+40), done, vT+1, sleep=1)
    a('s_waitcnt lgkmcnt(0)')
    for qt in range(2):
        for nt in range(2):
            a(f'v_mfma_f32_16x16x32_bf16 {vr(AC2+(qt*2+nt)*4,4)}, {vr(U+4*nt,4)}, {vr(PF+20*qt,4)}, 0')
    for i in range(2):
        for hf in range(2):
            for qt in range(2):
                for nt in range(2):
                    d = vr(AC2 + (qt*2+nt)*4, 4)
                    a(f'v_mfma_f32_16x16x32_bf16 {d}, {vr(Y+((i*2+nt)*2+hf)*4,4)}, {vr(PF+20*qt+4+(i*2+hf)*4,4)}, {d}')
    for k in range(4):
        for r in range(4): a(f'v_mul_f32 v{AC2+4*k+r}, v{GG+k//2}, v{AC2+4*k+r}')
        a(f'ds_write_b128 v{vT}, {vr(AC2+4*k,4)} offset:{16384+k*1024}')
    a(f'''s_lshl_b32 s{sT0}, s{sW}, 10
          v_add_u32 v{vT}, s{sT0}, v{vRW}
          s_mul_i32 s{sA}, s{sSEG}, 28672
          s_waitcnt lgkmcnt(0)
          s_barrier''')
    for p in range(8): a(f'ds_read_b128 {vr(4*p,4)}, v{vT} offset:{p*4096}')
    a('s_waitcnt lgkmcnt(0)\ns_barrier')
    for st in (16, 8, 4):
        for r in range(0, st, 2): a(f'v_pk_add_f32 {vr(r,2)}, {vr(r,2)}, {vr(r+st,2)}')
    a(f'''v_cvt_pk_bf16_f32 v0, v0, v1
          v_cvt_pk_bf16_f32 v1, v2, v3
          buffer_store_dwordx2 v[0:1], v{vO1}, {S(sR1)}, s{sA} offen
          buffer_store_dword v0, v{vO2}, {S(sR1)}, s{sA} offen
          s_add_u32 s{sSEG}, s{sSEG}, {NRO}
          s_cmp_lt_u32 s{sSEG}, 64
          s_cbranch_scc1 {top}
          s_branch {done}''')

def xg_reduce(a, op, regs, tmps):
    for sw in ('v_permlane16_swap_b32', 'v_permlane32_swap_b32'):
        for r, t in zip(regs, tmps): a(f'v_mov_b32 v{t}, v{r}')
        for r, t in zip(regs, tmps): a(f'{sw} v{r}, v{t}')
        for r, t in zip(regs, tmps): a(f'{op} v{r}, v{r}, v{t}')

def role_X(a, cfg, done):
    ACC, XF, TB, SX, KF = 0, 56, 72, 0, 16
    vXS, vXR, vKa, vKb, vMX, vRW, vRM, vPM, vQ, vT = 102, 103, 104, 105, 106, 107, 108, 109, 110, 112
    L_R = 65536; L_M = 81920
    lane_setup(a); idx_setup(a)
    a(f'''s_sub_u32 s{sT0}, s{sROLE}, 128
          s_lshr_b32 s{sC}, s{sT0}, 2
          s_and_b32 s{sR}, s{sT0}, 3''')
    xs_setup(a, vXS, vXR)
    a(f's_mov_b32 s{sSEG}, s{sR}')
    xs_dma(a, vXS, sSEG)
    a(f'''v_lshrrev_b32 v6, 3, v{N}
          v_lshlrev_b32 v6, 1, v6
          v_lshrrev_b32 v7, 1, v{G}
          v_xor_b32 v6, v6, v7
          v_lshlrev_b32 v8, 6, v{N}
          v_lshl_add_u32 v8, v6, 4, v8
          v_and_b32 v9, 1, v{G}
          v_lshl_add_u32 v8, v9, 3, v8
          s_and_b32 s{sT0}, s{sW}, 1
          s_lshl_b32 s{sT0}, s{sT0}, 5
          v_xor_b32 v{vKa}, s{sT0}, v8
          v_xor_b32 v{vKb}, 32, v{vKa}
          s_mul_i32 s{sT0}, s{sW}, 7
          s_lshr_b32 s{sT1}, s{sT0}, 1
          s_lshl_b32 s{sT1}, s{sT1}, 10
          v_add_u32 v{vKa}, s{sT1}, v{vKa}
          s_add_u32 s{sT1}, s{sT0}, 1
          s_lshr_b32 s{sT1}, s{sT1}, 1
          s_lshl_b32 s{sT1}, s{sT1}, 10
          v_add_u32 v{vKb}, s{sT1}, v{vKb}
          s_lshl_b32 s{sT0}, s{sT0}, 8
          v_lshlrev_b32 v{vMX}, 6, v{G}
          v_and_b32 v6, 7, v{N}
          v_lshl_add_u32 v{vMX}, v6, 3, v{vMX}
          v_add_u32 v{vMX}, s{sT0}, v{vMX}
          v_add_u32 v{vRW}, {L_R}, v{vPOLL}
          v_lshlrev_b32 v{vRM}, 8, v7
          v_lshl_add_u32 v{vRM}, v{N}, 4, v{vRM}
          v_lshl_add_u32 v{vRM}, v9, 3, v{vRM}
          s_and_b32 s{sT0}, s{sW}, 1
          s_lshl_b32 s{sT1}, s{sT0}, 10
          s_add_u32 s{sT1}, s{sT1}, {L_M}
          v_add_u32 v{vRM}, s{sT1}, v{vRM}
          v_lshlrev_b32 v{vPM}, 4, v{N}
          v_lshl_add_u32 v{vPM}, v{G}, 2, v{vPM}
          v_lshlrev_b32 v{vQ}, 1, v{N}
          v_add_u32 v{vQ}, s{sT0}, v{vQ}
          v_lshlrev_b32 v6, 3, v{G}
          v_sub_u32 v{vQ}, v{vQ}, v6''')
    wait_dbg(a, D_FLAGS_OK, 1, done, 10, 11)
    a(f'''s_lshl_b32 s{sT2}, s{sC}, 6
          s_add_u32 s{sT2}, s{sT2}, {FL_OFF + F_A}''')
    wait_flags(a, f's{sT2}', 14, 1, 1, done, L, 10)
    mark(a, cfg, 4)
    a(f's_mul_i32 s{sT0}, s{sC}, {WF_MAT}')
    load_weights(a, rot=False)
    wait_dbg(a, D_SENT, 32, done, 10, 11)
    mark(a, cfg, 5)
    top = a.newlabel('L_X1'); skip = a.newlabel('L_Xs'); skip2 = a.newlabel('L_Xs2')
    a.label(top)
    a(f'''s_waitcnt vmcnt(0)
          s_barrier
          s_xor_b32 s{sLB}, s{sLB}, 0x8000
          s_add_u32 s{sD}, s{sSEG}, {NRX}''')
    xs_dma(a, vXS, sD)
    dense(a, ACC, XF, vXR, True)
    for qt in range(2):
        for j in range(7):
            d = ACC + 28*qt + 4*j
            a(f'''v_cvt_pk_bf16_f32 v{TB+14*qt+2*j}, v{d}, v{d+1}
                  v_cvt_pk_bf16_f32 v{TB+14*qt+2*j+1}, v{d+2}, v{d+3}''')
    for j in range(7):
        for kt in range(2):
            a(f'ds_read_b64 {vr(KF+4*j+2*kt,2)}, v{vKb if j%2 else vKa} offset:{kt*14336 + (j//2)*1024}')
    a('s_waitcnt lgkmcnt(0)')
    for j in range(7):
        for qt in range(2):
            for kt in range(2):
                d = vr(SX + (qt*2+kt)*4, 4)
                a(f'v_mfma_f32_16x16x16_bf16 {d}, {vr(KF+4*j+2*kt,2)}, {vr(TB+14*qt+2*j,2)}, {d if j else 0}')
    a(f'''v_xor_b32 v{vXR}, 0x8000, v{vXR}
          v_xor_b32 v{vKa}, 0x8000, v{vKa}
          v_xor_b32 v{vKb}, 0x8000, v{vKb}
          s_lshl_b32 s{sT0}, s{sW}, 12
          v_add_u32 v{vT}, s{sT0}, v{vRW}''')
    for k in range(4): a(f'ds_write_b128 v{vT}, {vr(SX+4*k,4)} offset:{k*1024}')
    a(f'''s_and_b32 s{sT0}, s{sW}, 1
          s_lshl_b32 s{sT0}, s{sT0}, 11
          v_add_u32 v{vT}, s{sT0}, v{vRW}
          s_waitcnt lgkmcnt(0)
          s_barrier''')
    E = 56
    for p in range(4):
        for kt in range(2): a(f'ds_read_b128 {vr(8*p+4*kt,4)}, v{vT} offset:{p*4096 + kt*1024}')
    a('s_waitcnt lgkmcnt(0)')
    for r in range(0, 16, 2): a(f'v_pk_add_f32 {vr(r,2)}, {vr(r,2)}, {vr(r+16,2)}')
    for r in range(0, 8, 2): a(f'v_pk_add_f32 {vr(r,2)}, {vr(r,2)}, {vr(r+8,2)}')
    a(f'v_mov_b32 v{vT+1}, 0xf0000000')
    for kt in range(2):
        for r in range(4):
            a(f'''v_cmp_le_i32 vcc, {2*r+kt}, v{vQ}
                  v_cndmask_b32 v{E+4*kt+r}, v{vT+1}, v{4*kt+r}, vcc''')
    a(f'''s_mul_i32 s{sE}, s{sSEG}, {REC_STR}
          s_add_u32 s{sA}, s{sE}, {REC_OFF + R_MSX}''')
    poll_sent(a, [f'buffer_load_dwordx2 {vr(2*j,2)}, v{vMX}, {S(sWS)}, s{sA} offen offset:{j*256} sc1' for j in range(7)],
              range(0, 14), done, vT+1, sleep=cfg.get('x_sleep', 2))
    for j in range(7):
        for qt in range(2):
            d = vr(16 + 4*qt, 4)
            a(f'v_mfma_f32_16x16x16_bf16 {d}, {vr(2*j,2)}, {vr(TB+14*qt+2*j,2)}, {d if j else 0}')
    a(f'''s_lshl_b32 s{sT0}, s{sW}, 11
          s_add_u32 s{sT0}, s{sT0}, {L_M}
          v_add_u32 v{vT}, s{sT0}, v{vPOLL}
          ds_write_b128 v{vT}, v[16:19]
          ds_write_b128 v{vT}, v[20:23] offset:1024
          s_waitcnt lgkmcnt(0)
          s_barrier
          s_cmp_ge_u32 s{sW}, 2
          s_cbranch_scc1 {skip}''')
    for p in range(4): a(f'ds_read_b64 {vr(2*p,2)}, v{vRM} offset:{p*2048}')
    a(f'''v_max3_f32 v10, v{E}, v{E+1}, v{E+2}
          v_max3_f32 v10, v10, v{E+3}, v{E+4}
          v_max3_f32 v10, v10, v{E+5}, v{E+6}
          v_max_f32 v10, v10, v{E+7}
          s_waitcnt lgkmcnt(0)
          v_pk_add_f32 v[0:1], v[0:1], v[2:3]
          v_pk_add_f32 v[4:5], v[4:5], v[6:7]
          v_pk_add_f32 {vr(E+8,2)}, v[0:1], v[4:5]
          v_max3_f32 v10, v10, v{E+8}, v{E+9}''')
    xg_reduce(a, 'v_max_f32', [10], [11])
    for k in range(10): a(f'v_sub_f32 v{E+k}, v{E+k}, v10')
    for k in range(10): a(f'v_exp_f32 v{E+k}, v{E+k}')
    a(f'''v_pk_add_f32 v[0:1], {vr(E,2)}, {vr(E+2,2)}
          v_pk_add_f32 v[2:3], {vr(E+4,2)}, {vr(E+6,2)}
          v_pk_add_f32 v[0:1], v[0:1], {vr(E+8,2)}
          v_pk_add_f32 v[0:1], v[0:1], v[2:3]
          v_add_f32 v10, v0, v1''')
    xg_reduce(a, 'v_add_f32', [10], [11])
    a('v_rcp_f32 v10, v10')
    for k in range(10): a(f'v_mul_f32 v{E+k}, v{E+k}, v10')
    for r in range(4): a(f'v_cvt_pk_bf16_f32 v{r}, |v{E+r}|, |v{E+4+r}|')
    a(f'''v_cvt_pk_bf16_f32 v4, |v{E+8}|, |v{E+9}|
          s_mul_i32 s{sT0}, s{sC}, 2560
          s_mul_i32 s{sT1}, s{sW}, 1280
          s_add_u32 s{sT0}, s{sT0}, s{sT1}
          s_add_u32 s{sT0}, s{sT0}, s{sE}
          s_add_u32 s{sT0}, s{sT0}, {REC_OFF + R_PX}
          buffer_store_dwordx4 v[0:3], v{vPOLL}, {S(sWS)}, s{sT0} offen sc1
          buffer_store_dword v4, v{vPM}, {S(sWS)}, s{sT0} offen offset:1024 sc1''')
    a.label(skip)
    a(f'''s_mov_b32 s{sSEG}, s{sD}
          s_cmp_lt_u32 s{sSEG}, 64
          s_cbranch_scc1 {top}
          s_branch {done}''')
```

```python
import sys, json
from common import *
import chain, pre, workers, ba

NAME = 'gated_mix__linear_kernel_hedgehog__memory_aug_recurrent_mem_tr__prompt'
def generate(cfg):
    a = Asm()
    K = NAME + '_kernel'
    hdr = open('cdna_kernels/' + NAME + '.s.ref').read().split('; Override launch')[0]
    a.raw(hdr.rstrip())
    a.raw(f'; @launch grid=(256,1,1) block=(256,1,1) lds={LDS_SIZE}')
    a.raw('.amdgcn_target "amdgcn-amd-amdhsa--gfx950"\n.text\n.globl %s\n.p2align 8\n.type %s,@function\n%s:' % (K, K, K))
    a(f'''s_cmp_ge_u32 s2, 256
          s_cbranch_scc1 L_end
          s_load_dwordx2 s[{sXS}:{sXS+1}], s[0:1], 0
          s_load_dwordx2 s[{sDBG}:{sDBG+1}], s[0:1], 104
          s_load_dwordx2 s[{sWS}:{sWS+1}], s[0:1], 112
          s_getreg_b32 s{sXCC}, hwreg(HW_REG_XCC_ID, 0, 4)
          s_and_b32 s{sXCC}, s{sXCC}, 7
          s_mov_b32 s{sWS+2}, {WS_SIZE}
          s_mov_b32 s{sWS+3}, 0x20000
          s_mov_b32 s{sXS+2}, 1835008
          s_mov_b32 s{sXS+3}, 0x20000
          v_mov_b32 v{vTID}, v0
          v_lshrrev_b32 v1, 6, v0
          v_readfirstlane_b32 s{sW}, v1
          s_lshl_b32 s{sT0}, s{sXCC}, 2
          v_mov_b32 v1, s{sT0}
          v_mov_b32 v2, 1
          v_mov_b32 v118, 0
          s_waitcnt lgkmcnt(0)
          s_cmp_lg_u32 s{sW}, 0
          s_cbranch_scc1 L_notick
          s_mov_b64 exec, 1
          global_atomic_add v118, v1, v2, s[{sDBG}:{sDBG+1}] sc0
          s_mov_b64 exec, -1
L_notick:''')
    mark(a, cfg, 0)
    a(f'''s_cmp_ge_u32 s2, 224
          s_cbranch_scc1 L_init''')
    pre.p_phase(a, cfg, 'L_end')
    a('s_branch L_role')
    a.label('L_init')
    pre.init_phase(a, cfg)
    a.label('L_role')
    mark(a, cfg, 3)
    a(f'''s_cmp_lg_u32 s{sW}, 0
          s_cbranch_scc1 L_rwait
          s_waitcnt vmcnt(0)
          v_readfirstlane_b32 s{sT0}, v118
          s_lshl_b32 s{sROLE}, s{sXCC}, 5
          s_add_u32 s{sROLE}, s{sROLE}, s{sT0}
          s_cmp_lt_u32 s{sT0}, 32
          s_cbranch_scc1 L_rpub
          v_mov_b32 v1, 0
          v_mov_b32 v2, 1
          s_mov_b64 exec, 1
          global_atomic_add v3, v1, v2, s[{sDBG}:{sDBG+1}] offset:{4*D_OVF} sc0
          s_mov_b64 exec, -1
          v_lshlrev_b32 v1, 2, v{vTID}
          v_and_b32 v1, 28, v1
          s_mov_b32 s{sTO}, 0x20000
L_rall:
          global_load_dword v2, v1, s[{sDBG}:{sDBG+1}] sc1
          s_waitcnt vmcnt(0)
          s_mov_b32 s{sT0}, 0''')
    for k in range(8):
        a(f'v_readlane_b32 s{sT1}, v2, {k}\ns_add_u32 s{sT0}, s{sT0}, s{sT1}')
    a(f'''s_cmp_ge_u32 s{sT0}, 256
          s_cbranch_scc1 L_rgot
          s_sleep 2
          s_sub_u32 s{sTO}, s{sTO}, 1
          s_cbranch_scc0 L_rall
L_rgot:
          v_readfirstlane_b32 s{sT0}, v3
          s_mov_b32 s{sROLE}, 256''')
    for k in range(8):
        nx = a.newlabel('L_rn')
        a(f'''v_readlane_b32 s{sT1}, v2, {k}
              s_min_u32 s{sT1}, s{sT1}, 32
              s_sub_u32 s{sT2}, 32, s{sT1}
              s_cmp_lt_u32 s{sT0}, s{sT2}
              s_cbranch_scc0 {nx}
              s_add_u32 s{sROLE}, s{sT1}, s{sT0}
              s_add_u32 s{sROLE}, s{sROLE}, {32*k}
              s_branch L_rpub''')
        a.label(nx)
        a(f's_sub_u32 s{sT0}, s{sT0}, s{sT2}')
    a(f'''L_rpub:
          v_mov_b32 v1, {L_ROLE}
          v_mov_b32 v2, s{sROLE}
          ds_write_b32 v1, v2
          s_waitcnt lgkmcnt(0)
L_rwait:
          s_barrier
          v_mov_b32 v1, {L_ROLE}
          ds_read_b32 v2, v1
          s_waitcnt lgkmcnt(0)
          v_readfirstlane_b32 s{sROLE}, v2
          s_nop 3
          s_cmp_lt_u32 s{sROLE}, 16
          s_cbranch_scc1 L_S
          s_cmp_lt_u32 s{sROLE}, 32
          s_cbranch_scc1 L_V
          s_cmp_lt_u32 s{sROLE}, 128
          s_cbranch_scc1 L_O
          s_cmp_lt_u32 s{sROLE}, 192
          s_cbranch_scc1 L_X
          s_cmp_lt_u32 s{sROLE}, 256
          s_cbranch_scc1 L_BA
          s_branch L_end''')
    a.label('L_S'); chain.role_S(a, cfg, 'L_fin')
    a.label('L_V'); chain.role_V(a, cfg, 'L_fin')
    a.label('L_O'); workers.role_O(a, cfg, 'L_fin')
    a.label('L_X'); workers.role_X(a, cfg, 'L_fin')
    a.label('L_BA'); ba.role_BA(a, cfg, 'L_fin')
    a.label('L_fin')
    if cfg.get('marks'):
        a('s_waitcnt vmcnt(0) lgkmcnt(0)')
        mark(a, cfg, 7)
        a(f'''s_add_u32 s46, s46, 4
              v_mov_b32 v12, s{sROLE}
              buffer_store_dword v12, v13, {S(sWS)}, s46 offen
              s_add_u32 s46, s46, 4
              v_mov_b32 v14, s{sTO}
              buffer_store_dword v14, v13, {S(sWS)}, s46 offen''')
    a('L_end:\ns_endpgm')
    a.raw('''.section .rodata,"a"
.p2align 6
.amdhsa_kernel %s
  .amdhsa_next_free_vgpr 512
  .amdhsa_next_free_sgpr 96
  .amdhsa_accum_offset 256
  .amdhsa_group_segment_fixed_size 0
  .amdhsa_kernarg_size 120
  .amdhsa_user_sgpr_count 2
  .amdhsa_user_sgpr_kernarg_segment_ptr 1
  .amdhsa_system_sgpr_workgroup_id_x 1
  .amdhsa_float_denorm_mode_32 3
.end_amdhsa_kernel''' % K)
    return a

if __name__ == '__main__':
    cfg = json.loads(sys.argv[1]) if len(sys.argv) > 1 else {}
    out = sys.argv[2] if len(sys.argv) > 2 else 'cdna_kernels/' + NAME + '.s'
    a = generate(cfg)
    open(out, 'w').write(a.text())
    print('instructions', len(a.ins), 'nops inserted', a.nops_inserted)
```

```python
from common import *

L_MEM = 0
L_T   = 8192
L_RED = 16384
L_X   = 65536

MA = 0; ACC = 28; XB = 56; SACC = 88
vIDX, vPOLL, vLM, vLA, vLB, vLC, vTW, vTR, vMB, vSW, vSW2, vSR, vPS, vX, vX2, vXR, vPF3, vPF2, vT0, vT1 = range(100, 120)
sHO = 15; sHO2 = 16; sXO = 17; sYO = 18; sYO2 = 19; sTHR = 21
sVALID = 22
sMSO = 28; sPFY = 29; sPO = 30; sLX = 31
sFAST = 44; sSLOW = 45; sYK = 34; sFY = 35; sMODE = 46
ST0 = 48

def slot_map(w):
    if w < 3: return [2*w, 2*w+1, 2*((w+1)%3), 2*((w+1)%3)+1, 2*((w+2)%3), 2*((w+2)%3)+1, 6]
    return [6, 0, 2, 3, 4, 5, 1]
def pack_map(w): return sum(k << (4*i) for i, k in enumerate(slot_map(w)))

def load_weights(a, rot=True, tiles=range(7), start=None):
    a(f'''s_mul_i32 s{sT1}, s{sW}, {7*14*1024}
          s_add_u32 s{sT1}, s{sT1}, s{sT0}''')
    if rot:
        a(f'''s_mov_b32 s{sT3}, {pack_map(0)}
              s_cmp_eq_u32 s{sW}, 1
              s_cselect_b32 s{sT3}, {pack_map(1)}, s{sT3}
              s_cmp_eq_u32 s{sW}, 2
              s_cselect_b32 s{sT3}, {pack_map(2)}, s{sT3}
              s_cmp_eq_u32 s{sW}, 3
              s_cselect_b32 s{sT3}, {pack_map(3)}, s{sT3}''')
    if start:
        lp = a.newlabel('L_lw'); a(f's_mov_b32 s{sT0}, 0'); a.label(lp)
    for i in range(7):
        if start:
            sk = a.newlabel('L_lws')
            a(f'''s_cmp_lt_u32 {i}, {start}
                  s_cselect_b32 s{sT3}, 1, 0
                  s_cmp_lg_u32 s{sT3}, s{sT0}
                  s_cbranch_scc1 {sk}''')
        if rot:
            a(f's_bfe_u32 s{sT2}, s{sT3}, {(4 << 16) | (4*i)}')
            if i in (2, 4, 6):
                a(f'''s_lshl_b32 s{sT0}, s{sT2}, 10
                      v_add_u32 v{ {2: vLA, 4: vLB, 6: vLC}[i] }, s{sT0}, v{vPOLL}''')
            a(f'''s_lshl_b32 s{sT2}, s{sT2}, 11
                  s_add_u32 s{sT2}, s{sT2}, s{sT1}''')
        else:
            a(f's_add_u32 s{sT2}, s{sT1}, {i*2048}')
        for j in range(7):
            if j: a(f's_add_u32 s{sT2}, s{sT2}, {14*1024}')
            if j not in tiles: continue
            a(f'buffer_load_dwordx4 {wreg(j,i,4,0)}, v{vPOLL}, {S(sWS)}, s{sT2} offen sc1')
            a(f'buffer_load_dwordx4 {wreg(j,i,4,1)}, v{vPOLL}, {S(sWS)}, s{sT2} offen offset:1024 sc1')
        if start: a.label(sk)
    if start:
        a(f's_add_u32 s{sT0}, s{sT0}, 1\ns_cmp_lt_u32 s{sT0}, 2\ns_cbranch_scc1 {lp}')

def idx_setup(a):
    a(f'''v_lshlrev_b32 v{vPOLL}, 4, v{L}
          v_mov_b32 v{vIDX}, 0x4444
          v_mov_b32 v1, 0xeeee
          v_and_b32 v2, 2, v{N}
          v_cmp_ne_u32 vcc, 0, v2
          v_cndmask_b32 v{vIDX}, v{vIDX}, v1, vcc''')

def common_setup(a):
    idx_setup(a)
    a(f'''s_lshl_b32 s{sT0}, s{sW}, 11
          v_add_u32 v{vLM}, s{sT0}, v{vPOLL}
          v_lshrrev_b32 v4, 5, v{L}
          v_and_b32 v5, 31, v{L}''')

def red_read_addr(a, colreg):
    a(f'''v_lshlrev_b32 v{vSR}, 8, v4
          v_lshl_add_u32 v{vSR}, v{colreg}, 3, v{vSR}
          s_lshl_b32 s{sT1}, s{sW}, 9
          s_add_u32 s{sT1}, s{sT1}, {L_RED}
          v_add_u32 v{vSR}, s{sT1}, v{vSR}''')

def warm(a, n):
    for _ in range(n): a(f'v_mov_b32 v{vT1}, v{vT1}\ns_nop 2')

def smf(a, d, A, B): a(f'v_smfmac_f32_16x16x64_bf16 {vr(d,4)}, {vr(A,4)}, {B}, v{vIDX}')

def post_ops(j, d=None):
    d = ACC + 4 * j if d is None else d
    return [f'v_add_f32 v{d}, v{d}, v{d+2}', f'v_add_f32 v{d+1}, v{d+1}, v{d+3}',
            f'v_cvt_pk_bf16_f32 v{d}, v{d}, v{d+1}', f'ds_write_b32 v{vTW}, v{d} offset:{j*256}']

def stage1(a, early, extra, cfg, depth, abort, tail):
    lp = a.newlabel('L_mp'); rt = a.newlabel('L_mretry')
    ld = [f'buffer_load_dwordx4 {vr(MA,4)}, v{vPOLL}, {S(sWS)}, s{sHO} offen sc1',
          f'buffer_load_dwordx4 {vr(MA+4,4)}, v{vPOLL}, {S(sWS)}, s{sHO2} offen sc1']
    a(f's_mov_b32 s{sTO}, 0x40000')
    for d in range(depth - 1):
        for x in ld: a(x)
        warm(a, cfg.get('stag', 6))
    a.label(lp)
    for x in ld: a(x)
    warm(a, cfg.get('pw', 1))
    a(f'''s_waitcnt vmcnt({2*(depth-1)+1})
          v_max3_u32 v{vT0}, v{MA}, v{MA+1}, v{MA+2}
          v_max_u32 v{vT0}, v{vT0}, v{MA+3}
          s_waitcnt vmcnt({2*(depth-1)})
          v_max3_u32 v{vT0}, v{vT0}, v{MA+4}, v{MA+5}
          v_max3_u32 v{vT0}, v{vT0}, v{MA+6}, v{MA+7}
          v_cmp_eq_u32 vcc, -1, v{vT0}''')
    wr = [f'ds_write_b128 v{vLM}, {vr(MA,4)}', f'ds_write_b128 v{vLM}, {vr(MA+4,4)} offset:1024']
    a(wr[0])
    a(f's_cbranch_vccnz {rt}')
    stamp(a, cfg, 0)
    q = wr[1:] + list(early)
    def retry():
        a.label(rt)
        a(f'''s_sub_u32 s{sTO}, s{sTO}, 1
              s_cbranch_scc0 {lp}
              s_branch {abort}''')
    tail.append(retry)
    rd = [f'ds_read_b128 {vr(MA+8,4)}, v{vLA}', f'ds_read_b128 {vr(MA+12,4)}, v{vLA} offset:1024',
          f'ds_read_b128 {vr(MA+16,4)}, v{vLB}', f'ds_read_b128 {vr(MA+20,4)}, v{vLB} offset:1024',
          f'ds_read_b128 {vr(MA+24,4)}, v{vLC}']
    def pop():
        x = q.pop(0)
        if x: a(x)
    k = 0
    for i in range(2):
        for j in range(7):
            smf(a, ACC + 4 * j, MA + 4 * i, wreg(j, i))
            k += 1
            if k == cfg.get('barpos', 8):
                a('s_waitcnt lgkmcnt(0)\ns_barrier')
                for x in rd[:2]: a(x)
                q = rd[2:] + q
            elif q: pop()
    assert not any(x in rd for x in q)
    for j in range(7):
        for i in range(2, 7):
            if j == 0: a(f's_waitcnt lgkmcnt({6-i})')
            smf(a, ACC + 4 * j, MA + 4 * i, wreg(j, i))
            if j > 0 and i == 3: q = q + post_ops(j - 1) + extra.get(j, [])
            for _ in range(2 if len(q) > 5 else 1):
                if q: pop()
    while q: pop()

def zero_acc(a, regs):
    for r in regs: a(f'v_mov_b32 v{r}, 0')

def chain_mode(a, cfg, abort):
    lp = a.newlabel('L_cm'); dn = a.newlabel('L_cmd')
    a(f'''s_mov_b32 s{sTO}, 0x20000
          v_mov_b32 v10, 0''')
    a.label(lp)
    a(f'''global_load_dwordx2 v[12:13], v10, s[{sDBG}:{sDBG+1}] offset:{4*D_MODE} sc1
          s_waitcnt vmcnt(0)
          v_readfirstlane_b32 s{sT0}, v12
          v_readfirstlane_b32 s{sT2}, v13
          s_and_b32 s{sT1}, s{sT0}, 255
          s_add_u32 s{sT1}, s{sT1}, s{sT2}
          s_cmp_ge_u32 s{sT1}, 49
          s_cbranch_scc1 {dn}
          s_sleep 2
          s_sub_u32 s{sTO}, s{sTO}, 1
          s_cbranch_scc0 {lp}
          s_branch {abort}''')
    a.label(dn)
    a(f'''s_lshl_b32 s{sT1}, s{sMODE}, 5
          s_cmp_lg_u32 s{sT0}, s{sT1}
          s_cselect_b32 s{sMODE}, 1, 0''')
    if cfg.get('force_slow'): a(f's_mov_b32 s{sMODE}, 1')

def chain_start(a, abort):
    sk = a.newlabel('L_go')
    a(f'''s_cmp_lg_u32 s{sW}, 0
          s_cbranch_scc1 {sk}
          v_mov_b32 v10, 0
          v_mov_b32 v11, 1
          s_mov_b64 exec, 1
          global_atomic_add v10, v11, s[{sDBG}:{sDBG+1}] offset:{4*D_GO}
          s_mov_b64 exec, -1''')
    a.label(sk)
    a(f'''s_lshl_b32 s{sT0}, s{sW}, 11
          s_add_u32 s{sHO}, s{sT0}, {REC_OFF}
          s_add_u32 s{sHO2}, s{sHO}, 1024
          s_cmp_eq_u32 s{sW}, 3
          s_cselect_b32 s{sHO2}, {REC_OFF}, s{sHO2}
          s_mov_b32 s{sS}, 0''')

def mode_offsets(a, off, cfg):
    a(f'''s_mov_b32 s{sT0}, {off}
          s_mov_b32 s{sT1}, {OOB}
          s_cmp_eq_u32 s{sMODE}, 0
          s_cselect_b32 s{sFAST}, s{sT0}, s{sT1}
          s_cselect_b32 s{sSLOW}, s{sT1}, s{sT0}''')

def stamp(a, cfg, k):
    if cfg.get('stamps') and k in cfg['stamps']:
        a(f's_memtime s[{ST0+2*k}:{ST0+1+2*k}]')

def dump_stamps(a, cfg):
    if not cfg.get('stamps'): return
    a(f'''s_waitcnt lgkmcnt(0)
          s_lshl_b32 s{sT0}, s{sROLE}, 2
          s_add_u32 s{sT0}, s{sT0}, s{sW}
          s_lshl_b32 s{sT0}, s{sT0}, 6
          s_add_u32 s{sT0}, s{sT0}, s{sS}
          s_lshl_b32 s{sT0}, s{sT0}, 4
          s_add_u32 s{sT0}, s{sT0}, {DBG_OFF + 0x10000}''')
    for k in range(4): a(f'v_mov_b32 v{MA+24+k}, s{ST0+2*k}')
    a(f'v_mov_b32 v{MA+23}, 0')
    a(f'buffer_store_dwordx4 {vr(MA+24,4)}, v{MA+23}, {S(sWS)}, s{sT0} offen')

def red_sum(a, t, cfg, scale=None):
    warm(a, cfg.get('w2', 2))
    a(f's_waitcnt lgkmcnt(0)\nv_mov_b32 v{vT1}, v{vT1}\ns_barrier')
    for wv in range(4):
        a(f'ds_read_b64 {vr(t+2*wv,2)}, v{vSR} offset:{2048*wv}')
        if wv == 0: a(f'v_mov_b32 v{vT1}, v{vT1}')
    warm(a, cfg.get('w3', 2))
    a(f'''s_waitcnt lgkmcnt(2)
          v_pk_add_f32 {vr(t,2)}, {vr(t,2)}, {vr(t+2,2)}''')
    if scale: a(f'v_pk_mul_f32 {vr(t,2)}, {vr(t,2)}, {scale}')
    a(f'''s_waitcnt lgkmcnt(0)
          v_pk_add_f32 {vr(t+4,2)}, {vr(t+4,2)}, {vr(t+6,2)}''')
    if scale: a(f'v_pk_fma_f32 {vr(t,2)}, {vr(t+4,2)}, {scale}, {vr(t,2)}')
    else: a(f'v_pk_add_f32 {vr(t,2)}, {vr(t,2)}, {vr(t+4,2)}')

def x_dma():
    out = []
    for aa in range(2):
        for nt in range(2):
            for hf in range(2):
                f = (aa*2+nt)*2+hf
                vo = vX2 if (aa == 1 and hf == 1) else vX
                off = nt*896+128*aa+64*hf
                out.append(f's_add_u32 m0, s{sLX}, {f*1024 - off}\nbuffer_load_dwordx4 v{vo}, {S(sXS)}, s{sXO} offen offset:{off} lds')
    return out


def inv_pack(w):
    m = slot_map(w); return sum(m.index(k) << (4*k) for k in range(7))

def local_a(a, cfg, isS, abort):
    NT = 4 if isS else 3; J0 = 0 if isS else 4
    A0, A1, PK, FA, CF = 0, 32, 64, 96, 120
    vSA, vSB, vRD, vRR, vL16 = 112, 113, 114, 115, 116
    sHd, sKS, sRO, sSL, sWO, sWO2, sINV, sSC = 14, 15, 16, 17, 18, 19, 21, 22
    mark(a, cfg, 10)
    lane_setup(a)
    a(f'''s_load_dwordx2 s[{sR1}:{sR1+1}], s[0:1], 48
          s_load_dwordx2 s[{sR2}:{sR2+1}], s[0:1], 56
          s_mov_b32 s{sR1+2}, 3670016
          s_mov_b32 s{sR1+3}, 0x20000
          s_mov_b32 s{sR2+2}, 3670016
          s_mov_b32 s{sR2+3}, 0x20000
          s_and_b32 s{sHd}, s{sROLE}, 15''')
    sk0 = a.newlabel('L_la0')
    a(f'''s_mul_i32 s{sT0}, s{sXCC}, s{sXCC}
          s_lshl_b32 s{sT0}, s{sT0}, 16
          s_lshl_b32 s{sMODE}, s{sXCC}, 8
          s_add_u32 s{sMODE}, s{sMODE}, s{sT0}
          s_add_u32 s{sMODE}, s{sMODE}, 1
          s_cmp_lg_u32 s{sW}, 0
          s_cbranch_scc1 {sk0}
          v_mov_b32 v6, 0
          v_mov_b32 v7, s{sMODE}
          s_mov_b64 exec, 1
          global_atomic_add v6, v7, s[{sDBG}:{sDBG+1}] offset:{4*D_MODE}
          s_mov_b64 exec, -1''')
    a.label(sk0)
    if not isS:
        a(f'''v_lshrrev_b32 v6, 2, v{L}
              v_lshlrev_b32 v6, 13, v6
              v_and_b32 v7, 3, v{L}
              v_lshl_add_u32 v6, v7, 7, v6
              s_lshl_b32 s{sT1}, s{sHd}, 9
              s_mul_i32 s{sT0}, s{sW}, {112*8192}
              s_add_u32 s{sT0}, s{sT0}, s{sT1}
              s_add_u32 s{sT0}, s{sT0}, {32*8192}
              s_add_u32 s{sT2}, s{sT0}, {16*8192}
              s_lshl_b32 s{sT3}, s{sW}, 17
              s_add_u32 s{sT1}, s{sT1}, s{sT3}
              s_add_u32 s{sT1}, s{sT1}, {32*8192}
              s_waitcnt lgkmcnt(0)
              buffer_load_dword v116, v6, {S(sR2)}, s{sT0} offen
              buffer_load_dword v116, v6, {S(sR2)}, s{sT2} offen''')
        for k in range(cfg.get('vtouch', 3)):
            a(f'buffer_load_dword v116, v6, {S(sR1)}, s{sT1} offen\ns_add_u32 s{sT1}, s{sT1}, {64*8192}')
        a(f'''v_lshlrev_b32 v6, 7, v{L}
              s_mul_i32 s{sT0}, s{sHd}, 3584
              v_min_u32 v6, 3456, v6
              buffer_load_dword v116, v6, {S(sXS)}, s{sT0} offen''')
        v_fill(a, cfg, sHd, sKS)
        wait_dbg(a, D_FLAGS_OK, 1, abort, 10, 11)
        mark(a, cfg, 1)
        return
    frag_src_lane(a, vSB, 8192, 6, 7)
    frag_src_lane(a, vSA, 8192, 6, 7, perm=True)
    frag_read_lane(a, vRD, 6)
    a(f'''v_lshlrev_b32 v{vL16}, 4, v{L}
          s_mul_i32 s{sT0}, s{sW}, {112*8192}
          s_lshl_b32 s{sT1}, s{sHd}, 9
          s_add_u32 s{sT0}, s{sT0}, s{sT1}
          s_add_u32 s{sT0}, s{sT0}, {J0*16*8192}
          s_lshl_b32 s{sT2}, s{sW}, 15
          s_lshr_b32 s{sRO}, s{sW}, 1
          s_lshl_b32 s{sRO}, s{sRO}, 15
          s_and_b32 s{sT3}, s{sW}, 1
          s_lshl_b32 s{sT3}, s{sT3}, 8
          s_add_u32 s{sRO}, s{sRO}, s{sT3}
          s_add_u32 s{sRO}, s{sRO}, s{sT1}
          s_add_u32 s{sRO}, s{sRO}, {0 if isS else 7*32*8192}
          s_lshl_b32 s{sSL}, s{sW}, 12
          s_add_u32 s{sSL}, s{sSL}, {8*16384}
          s_waitcnt lgkmcnt(0)''')
    RS = cfg.get('ring', 5)
    RB = (9 - RS) * 16384
    def rows_q():
        q = [f'''s_add_u32 m0, s{sSL}, {k*1024 - k*64}
                  buffer_load_dwordx4 v{vSA}, {S(sR1)}, s{sRO} offen offset:{k*64} lds''' for k in range(4)]
        wrap = '' if isS else f's_cmp_ge_u32 s{sRO}, 3670016\ns_cselect_b32 s{sT3}, 3670016, 0\ns_sub_u32 s{sRO}, s{sRO}, s{sT3}\n'
        q.append(f'''s_add_u32 s{sRO}, s{sRO}, {32*8192}
              {wrap}              s_add_u32 s{sSL}, s{sSL}, 16384
              s_cmp_ge_u32 s{sSL}, {9*16384}
              s_cselect_b32 s{sT3}, {RS*16384}, 0
              s_sub_u32 s{sSL}, s{sSL}, s{sT3}''')
        return q
    def rows():
        for x in rows_q(): a(x)
    for j in range(NT):
        for ke in range(8):
            a(f'''s_add_u32 m0, s{sT2}, {(j*8+ke)*1024 - ke*64}
                  buffer_load_dwordx4 v{vSB}, {S(sR2)}, s{sT0} offen offset:{ke*64} lds''')
        a(f's_add_u32 s{sT0}, s{sT0}, {16*8192}')
    rows()
    a(f'''v_add_u32 v{vRR}, s{sT2}, v{vRD}
''')
    mark(a, cfg, 11)
    a(f'''v_mov_b32 v117, 0
          global_load_dword v118, v117, s[{sDBG}:{sDBG+1}] offset:{4*D_FLAGS_OK} sc1
          s_waitcnt vmcnt(1)''')
    mark(a, cfg, 1)
    for f in range(NT * 8):
        a(f'ds_read_b128 {vr(CF+4*f,4)}, v{vRR} offset:{f*1024}')
        if f % 8 == 7: a('s_waitcnt lgkmcnt(0)')
    a('s_barrier')
    a(f's_mov_b32 s{sWO2}, {OOB}')
    for k in range(RS - 2):
        rows()
    a(f'''v_add_u32 v{vRR}, {8*16384}, v{vRD}
          s_mov_b32 s{sKS}, 0''')
    if isS:
        a(f'''s_mov_b32 s{sINV}, {inv_pack(0)}
              s_cmp_eq_u32 s{sW}, 1
              s_cselect_b32 s{sINV}, {inv_pack(1)}, s{sINV}
              s_cmp_eq_u32 s{sW}, 2
              s_cselect_b32 s{sINV}, {inv_pack(2)}, s{sINV}
              s_cmp_eq_u32 s{sW}, 3
              s_cselect_b32 s{sINV}, {inv_pack(3)}, s{sINV}
              s_lshl_b32 s{sINV}, s{sINV}, 4
              s_or_b32 s{sINV}, s{sINV}, 7''')
    a(f'''s_mul_i32 s{sWO}, s{sHd}, {WF_MAT}
          s_mul_i32 s{sT1}, s{sW}, {7*14336}
          s_add_u32 s{sWO}, s{sWO}, s{sT1}
          s_mov_b32 s{sWO2}, {OOB}''')
    def pack(acc, hf):
        q = []
        for j in range(NT):
            for mt in range(2):
                d = acc + (j*2+mt)*4; o = PK + 16*hf + 4*j + 2*mt
                q += [f'v_cvt_pk_bf16_f32 v{o}, v{d}, v{d+1}', f'v_cvt_pk_bf16_f32 v{o+1}, v{d+2}, v{d+3}']
        return q
    def block(acc, q):
        def rd(ke, reg): return [f'ds_read_b128 {vr(FA+8*(ke%2)+4*mt,4)}, v{reg} offset:{mt*8192 + (ke%8)*1024}' for mt in range(2)]
        dq = rows_q()
        if cfg.get('nodma'): dq = dq[4:]
        for ke in range(8):
            if ke == 7:
                a(f'''v_add_u32 v{vRR}, 16384, v{vRR}
                      v_add_u32 v{vSB}, {-RS*16384}, v{vRR}
                      v_cmp_le_u32 vcc, {9*16384}, v{vRR}
                      v_cndmask_b32 v{vRR}, v{vRR}, v{vSB}, vcc
                      s_waitcnt vmcnt({4*(RS-2)}) lgkmcnt(0)
                      s_barrier''')
            else: a('s_waitcnt lgkmcnt(0)')
            r = rd(ke + 1, vRR)
            n = 0
            for j in range(NT):
                for mt in range(2):
                    d = vr(acc + (j*2+mt)*4, 4)
                    a(f'v_mfma_f32_16x16x32_bf16 {d}, {vr(FA+8*(ke%2)+4*mt,4)}, {vr(CF+(j*8+ke)*4,4)}, {d if ke else 0}')
                    n += 1
                    if r: a(r.pop(0))
                    elif cfg.get('dstag') and n == 3 and ke < 4:
                        sk = a.newlabel('L_lds')
                        a(f's_cmp_lg_u32 s{sW}, {ke}\ns_cbranch_scc1 {sk}')
                        for x in rows_q(): a(x)
                        a.label(sk); dq = []
                    elif n == 3 and dq and ke < 7: a(dq.pop(0))
                    elif q: a(q.pop(0))
        assert not q and not dq
    def commit():
        end = a.newlabel('L_lce'); lab = [a.newlabel('L_lc') for _ in range(7)]
        a(f's_and_b32 s{sT0}, s{sINV}, 15\ns_lshr_b32 s{sINV}, s{sINV}, 4')
        for i in range(7): a(f's_cmp_eq_u32 s{sT0}, {i}\ns_cbranch_scc1 {lab[i]}')
        a(f's_branch {end}')
        for i in range(7):
            a.label(lab[i])
            for j in range(4):
                for hf in range(2):
                    for r in range(4): a(f'v_accvgpr_write_b32 a{(j*7+i)*8 + 4*hf + r}, v{PK+16*hf+4*j+r}')
            if i < 6: a(f's_branch {end}')
        a.label(end)
    mark(a, cfg, 12)
    for mt in range(2): a(f'ds_read_b128 {vr(FA+4*mt,4)}, v{vRR} offset:{mt*8192}')
    lp = a.newlabel('L_la'); ex = a.newlabel('L_lax'); cm = a.newlabel('L_lcm')
    a.label(lp)
    block(A0, pack(A1, 1))
    a.label(cm)
    if isS: commit()
    a(f's_cmp_ge_u32 s{sKS}, 7\ns_cbranch_scc1 {ex}')
    block(A1, pack(A0, 0))
    a(f'''s_add_u32 s{sKS}, s{sKS}, 1
          s_cmp_lt_u32 s{sKS}, 7
          s_cbranch_scc1 {lp}''')
    for x in pack(A1, 1): a(x)
    a(f's_branch {cm}')
    a.label(ex)
    mark(a, cfg, 2)
    ok = a.newlabel('L_lok')
    a(f'''v_cmp_ne_u32 vcc, 0, v118
          s_cbranch_vccnz {ok}''')
    wait_dbg(a, D_FLAGS_OK, 1, abort, 10, 11)
    a.label(ok)

def v_fill(a, cfg, sHd, sKS):
    a(f'''s_mul_i32 s{sT0}, s{sHd}, {4*REC_STR}
          s_add_u32 s{sT0}, s{sT0}, {REC_OFF}
          v_lshlrev_b32 v6, 4, v{vTID}
          v_mov_b32 v7, {OOB}
          s_cmp_eq_u32 s{sHd}, 0
          s_cselect_b64 vcc, -1, 0
          v_cndmask_b32 v7, v6, v7, vcc
          v_mov_b32 v8, -1
          v_mov_b32 v9, -1
          v_mov_b32 v10, -1
          v_mov_b32 v11, -1
          s_mov_b32 s{sKS}, 0''')
    fl = a.newlabel('L_lf')
    a.label(fl)
    for k in range(7):
        a(f'''buffer_store_dwordx4 v[8:11], v{7 if k < 2 else 6}, {S(sWS)}, s{sT0} offen sc1
              s_add_u32 s{sT0}, s{sT0}, {4096 if k < 6 else REC_STR - 6*4096}''')
    a(f'''v_mov_b32 v7, v6
          s_add_u32 s{sKS}, s{sKS}, 1
          s_cmp_lt_u32 s{sKS}, 4
          s_cbranch_scc1 {fl}''')

def v_mem0(a, cfg):
    nm = a.newlabel('L_lm0')
    a(f'''s_cmp_lg_u32 s{sROLE}, 255
          s_cbranch_scc1 {nm}''')
    srd(a, sR2, 5, 7168)
    a(f'''v_lshlrev_b32 v12, 2, v{vTID}
          v_lshrrev_b32 v13, 3, v{vTID}
          v_lshlrev_b32 v13, 8, v13
          v_and_b32 v14, 1, v{vTID}
          v_lshl_add_u32 v13, v14, 5, v13
          v_bfe_u32 v15, v{vTID}, 1, 2
          v_lshl_add_u32 v13, v15, 2, v13
          v_mov_b32 v7, {OOB}
          v_cmp_gt_u32 vcc, 224, v{vTID}
          v_cndmask_b32 v13, v7, v13, vcc
          v_cndmask_b32 v12, v7, v12, vcc
          s_mov_b32 s{sT0}, {REC_OFF + R_MEMF}''')
    for m in range(8):
        a(f's_mov_b32 s{sT3}, {m*896}\nbuffer_load_dword v{30+m}, v12, {S(sR2)}, s{sT3} offen')
    a('s_waitcnt vmcnt(0)')
    for m in range(8):
        rs = (4*(m//2) + m % 2) * 16
        a(f'''v_min_u32 v{30+m}, -2, v{30+m}
              buffer_store_dword v{30+m}, v13, {S(sWS)}, s{sT0} offen offset:{rs} sc1''')
    a(f'''s_waitcnt vmcnt(0)
          s_barrier
          s_cmp_lg_u32 s{sW}, 0
          s_cbranch_scc1 {nm}
          v_mov_b32 v6, 0
          v_mov_b32 v7, 1
          s_mov_b64 exec, 1
          global_atomic_add v6, v7, s[{sDBG}:{sDBG+1}] offset:{4*D_SENT}
          s_mov_b64 exec, -1''')
    a.label(nm)

def role_S(a, cfg, done):
    local_a(a, cfg, True, done)
    lane_setup(a); common_setup(a)
    a(f'''s_lshl_b32 s{sT2}, s{sROLE}, 6
          s_add_u32 s{sT2}, s{sT2}, {FL_OFF + F_A}''')
    wait_flags(a, f's{sT2}', 7, 1, 1, done, L, 10, sleep=1)
    a('s_barrier')
    mark(a, cfg, 4)
    a(f's_mul_i32 s{sT0}, s{sROLE}, {WF_MAT}')
    load_weights(a, tiles=(4, 5, 6))
    a(f'''s_lshl_b32 s{sT0}, s{sW}, 11
          s_add_u32 s{sT1}, s{sT0}, {L_T}
          v_lshrrev_b32 v6, 3, v{N}
          v_and_b32 v7, 3, v{N}
          v_lshl_add_u32 v6, v6, 2, v7
          v_lshlrev_b32 v{vTW}, 5, v6
          v_lshl_add_u32 v{vTW}, v{G}, 3, v{vTW}
          v_and_b32 v6, 4, v{N}
          v_add_u32 v{vTW}, v6, v{vTW}
          v_add_u32 v{vTW}, s{sT1}, v{vTW}
          v_lshlrev_b32 v{vTR}, 8, v{G}
          v_lshl_add_u32 v{vTR}, v{N}, 3, v{vTR}
          v_add_u32 v{vTR}, s{sT1}, v{vTR}''')
    a(f'''s_mul_i32 s{sT2}, s{sW}, {7*256}
          v_and_b32 v7, 1, v{N}
          v_lshrrev_b32 v6, 1, v{G}
          v_lshlrev_b32 v{vMB}, 8, v6
          v_bfe_u32 v6, v{N}, 1, 2
          v_lshl_add_u32 v6, v6, 2, v7
          v_lshl_add_u32 v{vMB}, v6, 4, v{vMB}
          v_and_b32 v6, 1, v{G}
          v_lshl_add_u32 v{vMB}, v6, 3, v{vMB}
          v_add_u32 v{vMB}, s{sT2}, v{vMB}
          s_add_u32 s{sT1}, s{sT0}, {L_RED}
          v_lshlrev_b32 v6, 9, v{G}
          v_add_u32 v6, s{sT1}, v6
          v_lshl_add_u32 v{vSW}, v{N}, 3, v6
          v_lshl_add_u32 v{vSW2}, v{N}, 2, v6
          v_add_u32 v{vSW2}, 128, v{vSW2}''')
    a(f'''v_and_b32 v8, 8, v5
          v_and_b32 v6, 3, v5
          v_lshl_add_u32 v8, v6, 1, v8
          v_bfe_u32 v6, v5, 2, 1
          v_add_u32 v8, v8, v6
          v_cmp_gt_u32 vcc, 16, v5
          v_cndmask_b32 v8, v5, v8, vcc
          v_mov_b32 v9, 28
          v_cmp_gt_u32 s[{sVALID}:{sVALID+1}], 20, v5
          v_cndmask_b32 v8, v9, v8, s[{sVALID}:{sVALID+1}]''')
    red_read_addr(a, 8)
    a(f'''v_bfe_u32 v7, v5, 3, 1
          v_lshlrev_b32 v7, 8, v7
          v_lshl_add_u32 v7, v6, 5, v7
          s_lshl_b32 s{sT1}, s{sW}, 6
          v_add_u32 v7, s{sT1}, v7
          s_lshl_b32 s{sT1}, s{sW}, 5
          s_add_u32 s{sT1}, s{sT1}, 512
          v_mov_b32 v9, s{sT1}
          v_cndmask_b32 v{vPS}, v9, v7, vcc
          v_lshl_add_u32 v{vPS}, v4, 4, v{vPS}
          v_and_b32 v6, 3, v5
          v_lshl_add_u32 v{vPS}, v6, 2, v{vPS}
          s_mul_i32 s{sT1}, s{sROLE}, 640
          v_add_u32 v{vPS}, s{sT1}, v{vPS}
          v_mov_b32 v8, {OOB}
          v_cndmask_b32 v{vPS}, v8, v{vPS}, s[{sVALID}:{sVALID+1}]''')
    frag_src_lane(a, vX, 1792, 6, 7)
    a(f'''s_mul_i32 s{sT1}, s{sW}, 224
          v_add_u32 v{vX}, s{sT1}, v{vX}
          v_cmp_gt_u32 vcc, 2, v7
          v_cndmask_b32 v{vX2}, v8, v{vX}, vcc''')
    frag_read_lane(a, vXR, 6)
    a(f'''s_lshl_b32 s{sLX}, s{sW}, 13
          s_add_u32 s{sLX}, s{sLX}, {L_X}
          v_add_u32 v{vXR}, s{sLX}, v{vXR}''')
    a(f'''s_mul_i32 s{sT1}, s{sROLE}, 640
          s_add_u32 s{sT1}, s{sT1}, {REC_STR}
          v_lshlrev_b32 v6, 7, v{L}
          v_add_u32 v{vPF3}, s{sT1}, v6
          s_lshl_b32 s{sT1}, s{sROLE}, 9
          s_add_u32 s{sT1}, s{sT1}, {2*REC_STR - R_P - 8*128}
          v_add_u32 v7, s{sT1}, v6
          v_cmp_gt_u32 vcc, 8, v{L}
          v_cndmask_b32 v{vPF3}, v7, v{vPF3}, vcc
          v_cmp_gt_u32 vcc, 12, v{L}
          v_cndmask_b32 v{vPF3}, v8, v{vPF3}, vcc
          s_mul_i32 s{sT1}, s{sROLE}, {14*128}
          s_add_u32 s{sT1}, s{sT1}, 28672
          v_add_u32 v{vPF2}, s{sT1}, v6
          v_cmp_gt_u32 vcc, 14, v{L}
          v_cndmask_b32 v{vPF2}, v8, v{vPF2}, vcc''')
    a(f'''v_mov_b32 v6, 0
          ds_write_b32 v{vTW}, v6 offset:{7*256}
          v_mov_b32 v8, 0xf0000000
          v_mov_b32 v9, v8
          v_and_b32 v6, 7, v{L}
          v_lshlrev_b32 v6, 8, v6
          s_add_u32 s{sT1}, s{sT0}, {L_RED + 28*8}
          v_add_u32 v6, s{sT1}, v6
          ds_write_b64 v6, v[8:9]
          s_mov_b32 s{sXO}, 0
          s_mov_b32 s{sTHR}, 0x42200000
          s_mov_b32 s{sYK}, {ASCALE_HEX}
          s_mov_b32 s{sYK+1}, {ASCALE_HEX}
          s_mov_b32 s{sPO}, {REC_OFF + R_P}
          s_lshl_b32 s{sPFY}, s{sROLE}, 15
          s_lshl_b32 s{sT1}, s{sW}, 13
          s_add_u32 s{sPFY}, s{sPFY}, s{sT1}
          s_add_u32 s{sPFY}, s{sPFY}, {YF_OFF + 2*16*32768}''')
    for x in x_dma(): a(x)
    chain_mode(a, cfg, done)
    chain_start(a, done)
    mode_offsets(a, REC_OFF + R_P, cfg)
    a(f'''s_add_u32 s{sMSO}, s{sHO}, {R_MSA}
          s_add_u32 s{sYO}, s{sHO2}, {R_MSA}
          s_cmp_eq_u32 s{sROLE}, 0
          s_cselect_b32 s{sMSO}, s{sMSO}, {OOB}
          s_cmp_eq_u32 s{sROLE}, 1
          s_cselect_b32 s{sYO}, s{sYO}, {OOB}''')
    mark(a, cfg, 5)
    top = a.newlabel('L_Stop'); slow = a.newlabel('L_Sslow'); back = a.newlabel('L_Sback')
    a.label(top)
    a(f's_add_u32 s{sXO}, s{sXO}, 28672\ns_xor_b32 s{sLX}, s{sLX}, 0x8000')
    for f in range(8): a(f'ds_read_b128 {vr(XB+4*f,4)}, v{vXR} offset:{f*1024}')
    a(f'v_xor_b32 v{vXR}, 0x8000, v{vXR}')
    z = [f'v_mov_b32 v{r}, 0' for r in list(range(ACC, ACC + 28)) + list(range(SACC, SACC + 12))]
    for x in x_dma():
        a(x)
        for _ in range(5): a(z.pop(0))
    a('s_waitcnt lgkmcnt(0)')
    for f in range(8): a(f'v_swap_b32 v{XB+4*f+1}, v{XB+4*f+2}')
    tail = []
    early = [''] * 8 + [
             f'buffer_load_dword v{vT1}, v{vPF3}, {S(sWS)}, s{sPO} offen sc1', '',
             f'buffer_load_dword v{vT1}, v{vPF2}, {S(sXS)}, s{sXO} offen', f'v_lshlrev_b32 v{vT0}, 3, v{vPOLL}',
             f'buffer_load_dword v{vT0}, v{vT0}, {S(sWS)}, s{sPFY} offen sc1']
    if cfg.get('pub', 'Searly') == 'Searly':
        early[2] = f'buffer_store_dwordx4 {vr(MA,4)}, v{vPOLL}, {S(sWS)}, s{sMSO} offen sc1'
        early[4] = f'buffer_store_dwordx4 {vr(MA+4,4)}, v{vPOLL}, {S(sWS)}, s{sYO} offen sc1'
    def mbread(d, aa):
        return [f'ds_read2_b64 {vr(d,4)}, v{vMB} offset0:{128*aa} offset1:{128*aa+4}', f'ds_read2_b64 {vr(d+4,4)}, v{vMB} offset0:{128*aa+64} offset1:{128*aa+68}']
    def s_step(aa, TA, MBr):
        return [f'v_smfmac_f32_16x16x64_bf16 {vr(SACC,4)}, {vr(TA,4)}, {vr(XB+aa*16,8)}, v{vIDX}',
                f'v_smfmac_f32_16x16x64_bf16 {vr(SACC+4,4)}, {vr(TA,4)}, {vr(XB+aa*16+8,8)}, v{vIDX}',
                f'v_smfmac_f32_16x16x64_bf16 {vr(SACC+8,4)}, {vr(TA,4)}, {vr(MBr,8)}, v{vIDX}']
    def trread(aa, d):
        return [f'ds_read_b64_tr_b16 {vr(d,2)}, v{vTR} offset:{aa*1024}', f'ds_read_b64_tr_b16 {vr(d+2,2)}, v{vTR} offset:{aa*1024+128}']
    extra = {2: mbread(ACC, 0), 4: mbread(ACC + 8, 1), 5: trread(0, ACC + 16)}
    stage1(a, early, extra, cfg, 2, done, tail)
    s0 = s_step(0, ACC + 16, ACC)
    a('s_waitcnt lgkmcnt(1)')
    a(s0[0]); a(s0[1])
    for x in post_ops(6): a(x)
    for x in trread(1, ACC + 20): a(x)
    a(s0[2])
    pub = f'''buffer_store_dwordx4 {vr(MA,4)}, v{vPOLL}, {S(sWS)}, s{sMSO} offen sc1
          buffer_store_dwordx4 {vr(MA+4,4)}, v{vPOLL}, {S(sWS)}, s{sYO} offen sc1'''
    if cfg.get('pub', 'Searly') == 'Smid': a(pub)
    else: warm(a, cfg.get('w1', 2))
    a('s_waitcnt lgkmcnt(0)')
    s1 = s_step(1, ACC + 20, ACC + 8)
    a(s1[2]); a(s1[0]); a(s1[1])
    d = SACC; t = ACC
    a(f'''v_add_f32 v{d+8}, v{d+8}, v{d+10}
          v_add_f32 v{d+9}, v{d+9}, v{d+11}
          ds_write2_b32 v{vSW2}, v{d+8}, v{d+9} offset0:0 offset1:64
          v_add_f32 v{t}, v{d}, v{d+2}
          v_add_f32 v{t+2}, v{d+1}, v{d+3}
          v_add_f32 v{t+1}, v{d+4}, v{d+6}
          v_add_f32 v{t+3}, v{d+5}, v{d+7}
          ds_write2_b64 v{vSW}, {vr(t,2)}, {vr(t+2,2)} offset0:0 offset1:32''')
    t = ACC + 8
    red_sum(a, t, cfg, f's[{sYK}:{sYK+1}]')
    a(f'''v_exp_f32 v{t+2}, v{t}
          v_exp_f32 v{t+3}, v{t+1}
          v_max_f32 v{t+6}, |v{t}|, |v{t+1}|
          v_add_f32 v{t+4}, v{t+2}, v{t+3}
          v_cmp_lt_f32 vcc, s{sTHR}, v{t+6}''')
    def butterfly(op, r, tmp, mid=None):
        for k, m in enumerate(('quad_perm:[1,0,3,2]', 'quad_perm:[2,3,0,1]', 'row_half_mirror', 'row_mirror')):
            a.I(f'{op}_dpp v{r}, v{r}, v{r} {m} row_mask:0xf bank_mask:0xf')
            if k == 2 and mid: a(mid)
        a(f'v_mov_b32 v{tmp}, v{r}')
        a(f'v_permlane16_swap_b32 v{r}, v{tmp}')
        a(f'{op} v{r}, v{r}, v{tmp}')
    butterfly('v_add_f32', t + 4, t + 5, f's_and_b64 vcc, vcc, s[{sVALID}:{sVALID+1}]\ns_cbranch_scc1 {slow}')
    a.label(back)
    a(f'''v_rcp_f32 v{t+4}, v{t+4}
          v_mul_f32 v{t+2}, v{t+2}, v{t+4}
          v_mul_f32 v{t+3}, v{t+3}, v{t+4}
          v_cvt_pk_bf16_f32 v{t+2}, |v{t+2}|, |v{t+3}|
          buffer_store_dword v{t+2}, v{vPS}, {S(sWS)}, s{sFAST} offen
          buffer_store_dword v{t+2}, v{vPS}, {S(sWS)}, s{sSLOW} offen sc1''')
    stamp(a, cfg, 3)
    if cfg.get('pub', 'Searly') == 'Send': a(pub)
    dump_stamps(a, cfg)
    a(f'''s_add_u32 s{sHO}, s{sHO}, {REC_STR}
          s_add_u32 s{sHO2}, s{sHO2}, {REC_STR}
          s_add_u32 s{sPO}, s{sPO}, {REC_STR}
          s_add_u32 s{sFAST}, s{sFAST}, {REC_STR}
          s_add_u32 s{sSLOW}, s{sSLOW}, {REC_STR}
          s_add_u32 s{sMSO}, s{sMSO}, {REC_STR}
          s_add_u32 s{sYO}, s{sYO}, {REC_STR}
          s_add_u32 s{sPFY}, s{sPFY}, {16*32768}
          s_add_u32 s{sS}, s{sS}, 1
          s_cmp_lt_u32 s{sS}, 63
          s_cbranch_scc1 {top}
          s_branch {done}''')
    a.label(slow)
    a(f'v_max_f32 v{t+4}, v{t}, v{t+1}')
    butterfly('v_max_f32', t + 4, t + 5)
    a(f'''v_sub_f32 v{t}, v{t}, v{t+4}
          v_sub_f32 v{t+1}, v{t+1}, v{t+4}
          v_exp_f32 v{t+2}, v{t}
          v_exp_f32 v{t+3}, v{t+1}
          v_add_f32 v{t+4}, v{t+2}, v{t+3}''')
    butterfly('v_add_f32', t + 4, t + 5)
    a(f's_branch {back}')
    for f in tail: f()

def role_V(a, cfg, done):
    vUW, vUR, vPP, vPP2, vMS, vMN, vOUT, vFY, vFO = vTW, vTR, vMB, vSW2, vPS, vX, vX2, vPF3, vPF2
    local_a(a, cfg, False, done)
    sk = a.newlabel('L_vs')
    a(f'''s_waitcnt vmcnt(0)
          s_barrier
          s_cmp_lg_u32 s{sW}, 0
          s_cbranch_scc1 {sk}
          v_mov_b32 v6, 0
          v_mov_b32 v7, 1
          s_mov_b64 exec, 1
          global_atomic_add v6, v7, s[{sDBG}:{sDBG+1}] offset:{4*D_SENT}
          s_mov_b64 exec, -1''')
    a.label(sk)
    mark(a, cfg, 6)
    lane_setup(a); common_setup(a)
    a(f'''s_lshl_b32 s{sT0}, s{sW}, 11
          s_add_u32 s{sT1}, s{sT0}, {L_T}
          v_lshlrev_b32 v{vUW}, 4, v{N}
          v_lshl_add_u32 v{vUW}, v{G}, 2, v{vUW}
          v_add_u32 v{vUW}, s{sT1}, v{vUW}
          v_mul_u32_u24 v{vUR}, 448, v{G}
          v_lshl_add_u32 v{vUR}, v{N}, 4, v{vUR}
          v_add_u32 v{vUR}, s{sT1}, v{vUR}
          s_mul_i32 s{sT1}, s{sW}, 2560
          v_mul_u32_u24 v6, 640, v{G}
          v_add_u32 v6, s{sT1}, v6
          v_lshl_add_u32 v{vPP}, v{N}, 4, v6
          v_lshrrev_b32 v7, 2, v{N}
          v_and_b32 v9, 1, v{N}
          v_lshl_add_u32 v7, v7, 1, v9
          v_lshl_add_u32 v{vPP2}, v7, 4, v6
          v_mov_b32 v8, {OOB}
          v_and_b32 v9, 2, v{N}
          v_cmp_eq_u32 vcc, 0, v9
          v_cndmask_b32 v{vPP2}, v8, v{vPP2}, vcc''')
    a(f'''s_add_u32 s{sT1}, s{sT0}, {L_RED}
          v_lshlrev_b32 v6, 9, v{G}
          v_add_u32 v6, s{sT1}, v6
          v_add_u32 v7, 20, v{N}
          v_cmp_gt_u32 vcc, 14, v{N}
          v_cndmask_b32 v7, v7, v{N}, vcc
          v_lshl_add_u32 v{vSW}, v7, 2, v6''')
    red_read_addr(a, N)
    a(f'''s_sub_u32 s{sT1}, s{sROLE}, 16
          s_mul_i32 s{sT2}, s{sT1}, 28
          v_lshlrev_b32 v6, 1, v5
          v_add_u32 v6, s{sT2}, v6
          v_lshrrev_b32 v7, 4, v6
          v_lshlrev_b32 v{vMS}, 8, v7
          v_and_b32 v9, 2, v6
          v_add_u32 v7, v9, v4
          v_lshl_add_u32 v{vMS}, v7, 4, v{vMS}
          v_and_b32 v7, 12, v6
          v_add_u32 v{vMS}, v7, v{vMS}
          s_lshl_b32 s{sT2}, s{sW}, 6
          v_add_u32 v{vMS}, s{sT2}, v{vMS}
          v_cmp_gt_u32 vcc, 14, v5
          v_cndmask_b32 v{vMS}, v8, v{vMS}, vcc
          s_lshl_b32 s{sYO}, s{sT1}, 15
          s_lshl_b32 s{sT2}, s{sW}, 13
          s_add_u32 s{sYO}, s{sYO}, s{sT2}
          s_add_u32 s{sYO}, s{sYO}, {YF_OFF}
          s_add_u32 s{sYO2}, s{sYO}, 4096
          s_mov_b32 s{sPO}, {REC_OFF + R_P}
          s_mov_b32 s{sMSO}, {OOB}
          s_lshl_b32 s{sFY}, s{sT1}, 2
          s_add_u32 s{sFY}, s{sFY}, s{sW}
          s_lshl_b32 s{sFY}, s{sFY}, 5
          s_add_u32 s{sFY}, s{sFY}, {FL_OFF + F_Y}
          v_and_b32 v{vFO}, 7, v{L}
          v_lshlrev_b32 v{vFO}, 2, v{vFO}
          v_mov_b32 v{vFY}, 0
          s_mov_b32 s{sYK}, 0''')
    wait_flags(a, FL_OFF + F_B, 56, 4, 1, done, L, 10, sleep=1)
    mark(a, cfg, 4)
    a(f's_mul_i32 s{sT0}, s{sROLE}, {WF_MAT}')
    load_weights(a)
    chain_mode(a, cfg, done)
    chain_start(a, done)
    mode_offsets(a, REC_OFF + REC_STR + R_MEMF, cfg)
    a(f'''s_add_u32 s{sPFY}, s{sHO}, {R_MSA}
          s_add_u32 s{sLX}, s{sHO2}, {R_MSA}
          s_cmp_eq_u32 s{sROLE}, 16
          s_cselect_b32 s{sPFY}, s{sPFY}, {OOB}
          s_cmp_eq_u32 s{sROLE}, 17
          s_cselect_b32 s{sLX}, s{sLX}, {OOB}''')
    mark(a, cfg, 5)
    top = a.newlabel('L_Vtop'); yok = a.newlabel('L_Vyok'); ychk = a.newlabel('L_Vychk')
    a.label(top)
    zero_acc(a, range(ACC, ACC + 28))
    a(f'''s_cmp_lt_u32 s{sS}, s{sYK}
          s_cbranch_scc0 {ychk}''')
    a.label(yok)
    early = []; tail = []
    for f in range(8):
        early.append(f'buffer_load_dwordx4 {vr(XB+4*f,4)}, v{vPOLL}, {S(sWS)}, s{sYO if f<4 else sYO2} offen offset:{(f%4)*1024} sc1')
    if cfg.get('pub', 'Searly') == 'V':
        early = [f'buffer_store_dwordx4 {vr(MA,4)}, v{vPOLL}, {S(sWS)}, s{sPFY} offen sc1',
                 f'buffer_store_dwordx4 {vr(MA+4,4)}, v{vPOLL}, {S(sWS)}, s{sLX} offen sc1'] + early
    early += [f's_add_u32 s{sT0}, s{sS}, 3\ns_cmp_ge_u32 s{sT0}, s{sYK}\ns_cselect_b32 s{sT0}, s{sFY}, {OOB}\nbuffer_load_dword v{vFY}, v{vFO}, {S(sWS)}, s{sT0} offen sc1']
    stage1(a, early, {}, cfg, 1, done, tail)
    for x in post_ops(6): a(x)
    a(f'''ds_read_b128 {vr(SACC,4)}, v{vUR}
          ds_read_b128 {vr(SACC+4,4)}, v{vUR} offset:224''')
    PA = MA + 8
    pl = [f'buffer_load_dwordx4 {vr(PA,4)}, v{vPP2}, {S(sWS)}, s{sPO} offen offset:512 sc1',
          f'buffer_load_dwordx4 {vr(PA+4,4)}, v{vPP}, {S(sWS)}, s{sPO} offen sc1',
          f'buffer_load_dwordx4 {vr(PA+8,4)}, v{vPP}, {S(sWS)}, s{sPO} offen offset:256 sc1']
    a('s_waitcnt lgkmcnt(0)')
    lp = a.newlabel('L_pp'); rt = a.newlabel('L_pretry')
    a(f's_mov_b32 s{sTO}, 0x40000')
    for x in pl: a(x)
    warm(a, cfg.get('stag', 6))
    a.label(lp)
    for x in pl: a(x)
    warm(a, cfg.get('vpw', 2))
    d = ACC
    mf = [f'v_mfma_f32_16x16x32_bf16 {vr(d+4*nt,4)}, {vr(PA,4)}, {vr(SACC+4*nt,4)}, 0' for nt in range(2)]
    for i in range(2):
        mf += [f'v_smfmac_f32_16x16x64_bf16 {vr(d+4*nt,4)}, {vr(PA+4+4*i,4)}, {vr(XB+(i*2+nt)*8,8)}, v{vIDX}' for nt in range(2)]
    a(f'''s_waitcnt vmcnt(5)
          v_max3_u32 v{vT0}, v{PA}, v{PA+1}, v{PA+2}
          v_max_u32 v{vT0}, v{vT0}, v{PA+3}''')
    stamp(a, cfg, 2)
    for i in range(2):
        r = PA + 4 + 4*i
        a(f'''s_waitcnt vmcnt({4-i})
              v_max3_u32 v{vT0}, v{vT0}, v{r}, v{r+1}
              v_max3_u32 v{vT0}, v{vT0}, v{r+2}, v{r+3}''')
    a(f'v_cmp_eq_u32 vcc, -1, v{vT0}')
    a(mf[0]); a(mf[1])
    a(f's_cbranch_vccnz {rt}')
    def retry():
        a.label(rt)
        a(f'''s_sub_u32 s{sTO}, s{sTO}, 1
              s_cbranch_scc0 {lp}
              s_branch {done}''')
    tail.append(retry)
    for x in mf[2:]: a(x)
    a(f'''v_add_f32 v{d}, v{d}, v{d+2}
          v_add_f32 v{d+1}, v{d+1}, v{d+3}
          ds_write2_b32 v{vSW}, v{d}, v{d+1} offset0:0 offset1:64
          v_add_f32 v{d+4}, v{d+4}, v{d+6}
          v_add_f32 v{d+5}, v{d+5}, v{d+7}
          ds_write2_b32 v{vSW}, v{d+4}, v{d+5} offset0:14 offset1:78''')
    t = ACC + 12
    red_sum(a, t, cfg)
    a(f'''v_cvt_pk_bf16_f32 v{vOUT}, v{t}, v{t+1}
          v_min_u32 v{vOUT}, -2, v{vOUT}
          buffer_store_dword v{vOUT}, v{vMS}, {S(sWS)}, s{sFAST} offen
          buffer_store_dword v{vOUT}, v{vMS}, {S(sWS)}, s{sSLOW} offen sc1''')
    stamp(a, cfg, 3)
    dump_stamps(a, cfg)
    a(f'''s_add_u32 s{sHO}, s{sHO}, {REC_STR}
          s_add_u32 s{sHO2}, s{sHO2}, {REC_STR}
          s_add_u32 s{sPO}, s{sPO}, {REC_STR}
          s_add_u32 s{sFAST}, s{sFAST}, {REC_STR}
          s_add_u32 s{sSLOW}, s{sSLOW}, {REC_STR}
          s_add_u32 s{sYO}, s{sYO}, {16*32768}
          s_add_u32 s{sYO2}, s{sYO2}, {16*32768}
          s_add_u32 s{sMSO}, s{sPO}, {R_MSA - R_P}
          s_add_u32 s{sPFY}, s{sPFY}, {REC_STR}
          s_add_u32 s{sLX}, s{sLX}, {REC_STR}
          s_add_u32 s{sS}, s{sS}, 1
          s_cmp_lt_u32 s{sS}, 63
          s_cbranch_scc1 {top}
          buffer_store_dword v{vOUT}, v{vMS}, {S(sWS)}, s{sMSO} offen sc1
          s_branch {done}''')
    a.label(ychk)
    a(f's_mov_b32 s{sTO}, 0x20000')
    yl = a.newlabel('L_Vyl')
    a.label(yl)
    a(f's_mov_b32 s{sYK}, 1000')
    for r in range(NRO):
        a(f'''v_readlane_b32 s{sT0}, v{vFY}, {r}
              s_mul_i32 s{sT0}, s{sT0}, {NRO}
              s_add_u32 s{sT0}, s{sT0}, {r}
              s_min_u32 s{sYK}, s{sYK}, s{sT0}''')
    a(f'''s_cmp_lt_u32 s{sS}, s{sYK}
          s_cbranch_scc1 {yok}
          buffer_load_dword v{vFY}, v{vFO}, {S(sWS)}, s{sFY} offen sc1
          s_waitcnt vmcnt(0)
          s_sub_u32 s{sTO}, s{sTO}, 1
          s_cbranch_scc0 {yl}
          s_branch {done}''')
    for f in tail: f()
```

```python
from asmlib import *

WS_SIZE = 1 << 28
WF_OFF  = 0
WF_MAT  = 401408
YF_OFF  = 0x1000000
REC_OFF = 0x3000000
REC_STR = 0x11000
R_MEMF  = 0
R_P     = 0x2000
R_MSA   = 0x5000
R_PX    = 0x7000
OA_OFF  = 0x3600000
G_OFF   = 0x3800000
KVP_OFF = 0x3810000
FL_OFF  = 0x3900000
F_B = 0; F_A = 1024; F_Y = 2048; F_KV = 4096; F_O = 5120; F_L = 6144; FL_SIZE = 8192
DBG_OFF = 0x3A00000
WL_OFF  = 0x4000000
OOB     = 0x40000000
LDS_SIZE = 151552
L_ROLE  = LDS_SIZE - 16
LOG2E_HEX = 0x3fb8aa3b
ASCALE_HEX = 0x3db8aa3b
NRO = 6; NRX = 4

D_MODE = 0; D_SENT = 1; D_FLAGS_OK = 32; D_SENT2 = 33; D_GO = 34

sWS = 4; sXS = 8
sW = 12; sROLE = 13; sS = 14
sTO = 20
sT0 = 24; sT1 = 25; sT2 = 26; sT3 = 27
sR1 = 32; sR2 = 36
sDBG = 40
sM = 42
sXCC = 3
sX0 = 47
sPT = 46

L, N, G = 20, 21, 22
vTID = 119

def lane_setup(a):
    a(f'''v_and_b32 v{L}, 63, v{vTID}
          v_and_b32 v{N}, 15, v{vTID}
          v_bfe_u32 v{G}, v{vTID}, 4, 2''')

def wreg(j, i, n=8, h=0):
    t = j * 7 + i
    if t < 32: f, b = 'a', t * 8
    else: f, b = 'v', 120 + (t - 32) * 8
    return vr(b + 4 * h, n, f)

def srd(a, r, slot, nbytes):
    a(f'''s_load_dwordx2 s[{r}:{r+1}], s[0:1], {slot*8}
          s_mov_b32 s{r+2}, {nbytes}
          s_mov_b32 s{r+3}, 0x20000
          s_waitcnt lgkmcnt(0)''')

def S(r): return f's[{r}:{r+3}]'

def wait_dbg(a, idx, val, abort, t0, t1, sleep=2):
    lp = a.newlabel('L_wd'); dn = a.newlabel('L_wdd')
    a(f'''s_mov_b32 s{sTO}, 0x20000
          v_mov_b32 v{t0}, 0''')
    a.label(lp)
    a(f'''global_load_dword v{t1}, v{t0}, s[{sDBG}:{sDBG+1}] offset:{4*idx} sc1
          s_waitcnt vmcnt(0)
          v_cmp_gt_u32 vcc, {val}, v{t1}
          s_cbranch_vccz {dn}
          s_sleep {sleep}
          s_sub_u32 s{sTO}, s{sTO}, 1
          s_cbranch_scc0 {lp}
          s_branch {abort}''')
    a.label(dn)

def wait_flags(a, soff, nl, width, thr, abort, lane, t, sleep=2):
    lp = a.newlabel('L_wf'); dn = a.newlabel('L_wfd')
    sh = {1: 2, 4: 4}[width]
    a(f'''s_mov_b32 s{sTO}, 0x20000
          v_lshlrev_b32 v{t+4}, {sh}, v{lane}
          v_cmp_gt_u32 s[{sM}:{sM+1}], {nl}, v{lane}''')
    if not isinstance(soff, str):
        a(f's_mov_b32 s{sT3}, {soff}'); soff = f's{sT3}'
    a.label(lp)
    if width == 4:
        a(f'''buffer_load_dwordx4 {vr(t,4)}, v{t+4}, {S(sWS)}, {soff} offen sc1
              s_waitcnt vmcnt(0)
              v_min3_u32 v{t}, v{t}, v{t+1}, v{t+2}
              v_min_u32 v{t}, v{t}, v{t+3}''')
    else:
        a(f'''buffer_load_dword v{t}, v{t+4}, {S(sWS)}, {soff} offen sc1
              s_waitcnt vmcnt(0)''')
    a(f'''v_cmp_gt_u32 vcc, {thr}, v{t}
          s_and_b64 vcc, vcc, s[{sM}:{sM+1}]
          s_cbranch_scc0 {dn}
          s_sleep {sleep}
          s_sub_u32 s{sTO}, s{sTO}, 1
          s_cbranch_scc0 {lp}
          s_branch {abort}''')
    a.label(dn)

def poll_sent(a, loads, regs, abort, t, sleep=1):
    lp = a.newlabel('L_ps'); dn = a.newlabel('L_psd')
    a(f's_mov_b32 s{sTO}, 0x20000')
    a.label(lp)
    for x in loads: a(x)
    a('s_waitcnt vmcnt(0)')
    r = list(regs)
    a(f'v_max_u32 v{t}, v{r[0]}, v{r[1]}')
    for k in range(2, len(r), 2): a(f'v_max3_u32 v{t}, v{t}, v{r[k]}, v{r[k+1]}')
    a(f'''v_cmp_eq_u32 vcc, -1, v{t}
          s_cbranch_vccz {dn}
          s_sleep {sleep}
          s_sub_u32 s{sTO}, s{sTO}, 1
          s_cbranch_scc0 {lp}
          s_branch {abort}''')
    a.label(dn)

def frag_src_lane(a, dst, rowstride, t0, t1, perm=False):
    a(f'''v_lshrrev_b32 v{t0}, 2, v{L}
          v_lshrrev_b32 v{t1}, 5, v{L}
          v_lshlrev_b32 v{t1}, 1, v{t1}
          v_and_b32 v{dst}, 3, v{L}
          v_xor_b32 v{t1}, v{t1}, v{dst}''')
    if perm:
        a(f'''v_and_b32 v{dst}, 12, v{t0}
              v_add_u32 v{t0}, v{t0}, v{dst}''')
    a(f'''s_mov_b32 s{sT3}, {rowstride}
          v_mul_lo_u32 v{dst}, v{t0}, s{sT3}
          v_lshl_add_u32 v{dst}, v{t1}, 4, v{dst}''')

def frag_read_lane(a, dst, t0):
    a(f'''v_lshrrev_b32 v{t0}, 3, v{N}
          v_lshlrev_b32 v{t0}, 1, v{t0}
          v_xor_b32 v{t0}, v{t0}, v{G}
          v_lshlrev_b32 v{dst}, 6, v{N}
          v_lshl_add_u32 v{dst}, v{t0}, 4, v{dst}''')

def mark(a, cfg, k, r=12):
    if not cfg.get('marks'): return
    a(f'''s_memrealtime s[60:61]
          s_memtime s[64:65]
          s_lshl_b32 s62, s2, 6
          s_add_u32 s62, s62, {DBG_OFF + 4*k}
          s_cmp_eq_u32 s{sW}, 0
          s_cselect_b32 s62, s62, {OOB}
          s_waitcnt lgkmcnt(0)
          v_mov_b32 v{r}, s60
          v_mov_b32 v{r+1}, 0
          buffer_store_dword v{r}, v{r+1}, {S(sWS)}, s62 offen
          s_add_u32 s63, s62, 0x8000
          v_mov_b32 v{r}, s64
          buffer_store_dword v{r}, v{r+1}, {S(sWS)}, s63 offen''')

def gate_go(a, cfg, abort, t0, t1):
    if not cfg.get('gate', 1): return
    g0 = a.newlabel('L_g')
    a(f's_cmp_lg_u32 s{sW}, 0\ns_cbranch_scc1 {g0}')
    wait_dbg(a, D_GO, 32, abort, t0, t1, sleep=16)
    a.label(g0)
    a('s_barrier')
```

```python
from common import *

L_PA = 0
L_PB = 32768

def p_phase(a, cfg, abort):
    sH, sKK, sCH, sWC, sKE = 14, 15, 16, 17, 18
    vSA, vSB, vSO, vRA, vRB, vL16 = 24, 25, 26, 27, 28, 29
    vAD = 30
    ACC = 40
    FA = 96
    FB = 128
    PK = 184
    lane_setup(a)
    nf = a.newlabel('L_inf')
    a(f'''s_sub_u32 s{sPT}, s{sROLE}, 32
          s_lshl_b32 s{sT0}, s{sPT}, 2
          s_add_u32 s{sT0}, s{sT0}, s{sW}
          s_cmp_lg_u32 s{sT0}, 3
          s_cbranch_scc1 {nf}
          v_lshlrev_b32 v24, 4, v{L}
          v_mov_b32 v4, 0
          v_mov_b32 v5, 0
          v_mov_b32 v6, 0
          v_mov_b32 v7, 0
          s_mov_b32 s{sT0}, {FL_OFF}
          s_mov_b32 s{sT1}, {FL_OFF + 4096}''')
    for k in range(8): a(f'buffer_store_dwordx4 v[4:7], v24, {S(sWS)}, s{sT0 if k < 4 else sT1} offen offset:{(k%4)*1024} sc1')
    a(f'''s_waitcnt vmcnt(0)
          v_mov_b32 v8, 1
          global_store_dword v4, v8, s[{sDBG}:{sDBG+1}] offset:{4*D_FLAGS_OK} sc1''')
    a.label(nf)
    a(f'''s_nop 0
          s_mul_i32 s{sH}, s{sPT}, 4682
          s_lshr_b32 s{sH}, s{sH}, 16
          s_mul_i32 s{sT2}, s{sH}, 14
          s_sub_u32 s19, s{sPT}, s{sT2}
          s_and_b32 s{sCH}, s19, 1
          s_and_b32 s{sKK}, s19, 14
          s_lshr_b32 s{sT0}, s{sW}, 1
          s_add_u32 s{sKK}, s{sKK}, s{sT0}
          s_and_b32 s{sWC}, s{sW}, 1''')
    frag_src_lane(a, vSA, 8192, 6, 7, perm=True)
    def row_dma(r, sT0=sT0, sT1=sT1):
        a(f'''s_lshl_b32 s{sT0}, s{sKK}, 5
              s_lshl_b32 s{sT1}, s{sWC}, 2
              s_add_u32 s{sT0}, s{sT0}, s{sT1}
              s_lshl_b32 s{sT0}, s{sT0}, 13
              s_lshl_b32 s{sT1}, s{sH}, 9
              s_add_u32 s{sT0}, s{sT0}, s{sT1}
              s_lshl_b32 s{sT1}, s{sW}, 13''')
        for ke in range(8):
            a(f'''s_add_u32 m0, s{sT1}, {L_PA + ke*1024 - ke*64}
                  buffer_load_dwordx4 v{vSA}, {S(r)}, s{sT0} offen offset:{ke*64} lds''')
    a(f'''s_load_dwordx2 s[{sR1}:{sR1+1}], s[0:1], 64
          s_load_dwordx2 s[{sR2}:{sR2+1}], s[0:1], 72
          s_mov_b32 s{sR1+2}, 3670016
          s_mov_b32 s{sR1+3}, 0x20000
          s_mov_b32 s{sR2+2}, 3670016
          s_mov_b32 s{sR2+3}, 0x20000
          v_cmp_lt_u32 vcc, 27, v{L}
          v_mov_b32 v6, {896 - 448}
          v_cndmask_b32 v6, 0, v6, vcc
          v_lshl_add_u32 v{vSO}, v{L}, 4, v6
          s_mul_i32 s{sT0}, s{sH}, 229376
          s_mul_i32 s{sT1}, s{sW}, {64*896}
          s_add_u32 s{sT0}, s{sT0}, s{sT1}
          s_mul_i32 s{sT1}, s{sCH}, 448
          s_add_u32 s{sT0}, s{sT0}, s{sT1}
          s_mul_i32 s{sT1}, s{sW}, {64*448}
          s_add_u32 s{sT1}, s{sT1}, {L_PB}
          s_mov_b32 s{sT2}, 0
          s_lshr_b32 s{sKE}, s19, 1
          s_mul_i32 s{sKE}, s{sKE}, 5
          s_waitcnt lgkmcnt(0)''')
    row_dma(sR1, 21, 22)
    a('s_mov_b32 exec_hi, 0x00ffffff')
    lp = a.newlabel('L_pwo')
    a.label(lp)
    a(f'''s_and_b32 s{sKE}, s{sKE}, 31
          s_mul_i32 s{sT3}, s{sKE}, 896
          s_add_u32 m0, s{sT1}, s{sT3}
          s_lshl_b32 s{sT3}, s{sT3}, 1
          s_add_u32 s{sT3}, s{sT3}, s{sT0}
          buffer_load_dwordx4 v{vSO}, {S(sR2)}, s{sT3} offen lds
          s_add_u32 s{sKE}, s{sKE}, 1
          s_add_u32 s{sT2}, s{sT2}, 1
          s_cmp_lt_u32 s{sT2}, 32
          s_cbranch_scc1 {lp}
          s_mov_b64 exec, -1''')
    mark(a, cfg, 10)
    frag_src_lane(a, vSB, 8192, 6, 7)
    frag_read_lane(a, vRA, 6)
    a(f'''s_lshr_b32 s{sT0}, s{sW}, 1
          s_lshl_b32 s{sT0}, s{sT0}, 14
          v_add_u32 v{vRA}, s{sT0}, v{vRA}
          v_lshlrev_b32 v{vL16}, 4, v{L}
          v_lshrrev_b32 v6, 2, v{N}
          v_lshl_add_u32 v6, v{G}, 3, v6
          v_mul_u32_u24 v{vRB}, 448, v6
          v_and_b32 v6, 3, v{N}
          v_lshl_add_u32 v{vRB}, v6, 3, v{vRB}
          s_mul_i32 s{sT0}, s{sWC}, 224
          s_add_u32 s{sT0}, s{sT0}, {L_PB}
          v_add_u32 v{vRB}, s{sT0}, v{vRB}
          s_mul_i32 s{sT1}, s{sH}, 28
          s_mov_b32 s{sT2}, {WF_MAT}''')
    for jt in range(7):
        a(f'''v_add_u32 v6, {16*jt}, v{N}
              v_mul_u32_u24 v7, 2341, v6
              v_lshrrev_b32 v7, 16, v7
              v_mul_u32_u24 v8, 28, v7
              v_sub_u32 v6, v6, v8
              v_add_u32 v6, s{sT1}, v6
              v_mul_lo_u32 v7, v7, s{sT2}
              v_lshrrev_b32 v8, 4, v6
              v_mul_u32_u24 v8, 14336, v8
              v_and_b32 v6, 15, v6
              v_lshl_add_u32 v6, v{G}, 4, v6
              v_lshl_add_u32 v6, v6, 4, v8
              v_add_u32 v{vAD+jt}, v6, v7''')
    def compute(tr):
        def reads(b, ko):
            r = [f'ds_read_b128 {vr(FA+8*b+4*mt,4)}, v{vRA} offset:{mt*8192 + ko*1024}' for mt in range(2)]
            for jt in range(7):
                d = FB + 28*b + 4*jt
                if tr:
                    r += [f'ds_read_b64_tr_b16 {vr(d,2)}, v{vRB} offset:{ko*32*448 + jt*32}',
                          f'ds_read_b64_tr_b16 {vr(d+2,2)}, v{vRB} offset:{ko*32*448 + 4*448 + jt*32}']
                else:
                    r += [f'ds_read_b128 {vr(d,4)}, v{vRB} offset:{jt*8192 + ko*1024}']
            return r
        for r in range(56): a(f'v_mov_b32 v{ACC+r}, 0')
        for x in reads(0, 0): a(x)
        a(f's_mov_b32 s{sKE}, 0')
        lp = a.newlabel('L_pc')
        a.label(lp)
        for b in range(2):
            q = reads(1 - b, 1 + b)
            a('s_waitcnt lgkmcnt(0)')
            for jt in range(7):
                for mt in range(2):
                    d = ACC + 28*mt + 4*jt
                    a(f'v_mfma_f32_16x16x32_bf16 {vr(d,4)}, {vr(FA+8*b+4*mt,4)}, {vr(FB+28*b+4*jt,4)}, {vr(d,4)}')
                    if q: a(q.pop(0))
            for x in q: a(x)
        a(f'''v_add_u32 v{vRA}, 2048, v{vRA}
              v_add_u32 v{vRB}, {64*448 if tr else 2048}, v{vRB}
              s_add_u32 s{sKE}, s{sKE}, 1
              s_cmp_lt_u32 s{sKE}, 4
              s_cbranch_scc1 {lp}
              s_waitcnt lgkmcnt(0)''')
    def pack(jt, scale):
        for mt in range(2):
            d = ACC + 28*mt + 4*jt
            if scale:
                for r in range(4): a(f'v_mul_f32 v{d+r}, s{sT3}, v{d+r}')
            a(f'''v_cvt_pk_bf16_f32 v{PK+4*jt+2*mt}, v{d}, v{d+1}
                  v_cvt_pk_bf16_f32 v{PK+4*jt+2*mt+1}, v{d+2}, v{d+3}''')
    def flag(off_code, val='1'):
        sk = a.newlabel('L_pf')
        a(f'''s_cmp_lg_u32 s{sW}, 0
              s_cbranch_scc1 {sk}''')
        a(off_code)
        a(f'''v_mov_b32 v6, 0
              v_mov_b32 v7, {val}
              s_mov_b64 exec, 1
              buffer_store_dword v7, v6, {S(sWS)}, s{sT0} offen sc1
              s_mov_b64 exec, -1''')
        a.label(sk)
    mark(a, cfg, 11)
    wait_dbg_w0 = a.newlabel('L_pw0')
    a(f'''s_cmp_lg_u32 s{sW}, 0
          s_cbranch_scc1 {wait_dbg_w0}''')
    wait_dbg(a, D_FLAGS_OK, 1, abort, 6, 7)
    a.label(wait_dbg_w0)
    a('s_waitcnt vmcnt(0)\ns_barrier')
    mark(a, cfg, 1)
    compute(True)
    mark(a, cfg, 12)
    a(f'''s_lshl_b32 s{sT0}, s{sCH}, 3
          s_lshl_b32 s{sT1}, s{sWC}, 2
          s_add_u32 s{sT0}, s{sT0}, s{sT1}
          s_add_u32 s{sT0}, s{sT0}, 16
          s_mul_i32 s{sT0}, s{sT0}, {WF_MAT}
          s_lshl_b32 s{sT1}, s{sKK}, 10
          s_add_u32 s{sT0}, s{sT0}, s{sT1}''')
    for jt in range(7):
        pack(jt, False)
        a(f'buffer_store_dwordx4 {vr(PK+4*jt,4)}, v{vAD+jt}, {S(sWS)}, s{sT0} offen sc1')
    fin = a.newlabel('L_pfin'); noa = a.newlabel('L_pnoa'); bf = a.newlabel('L_pbf')
    a(f'''s_sub_u32 s19, s{sPT}, 96
          s_cmp_lt_u32 s19, 112
          s_cbranch_scc0 {noa}
          s_load_dwordx2 s[{sR1}:{sR1+1}], s[0:1], 48
          s_load_dwordx2 s[{sR2}:{sR2+1}], s[0:1], 56
          s_mul_i32 s{sH}, s19, 9363
          s_lshr_b32 s{sH}, s{sH}, 16
          s_mul_i32 s{sT0}, s{sH}, 7
          s_sub_u32 s{sCH}, s19, s{sT0}
          s_lshl_b32 s{sKK}, s{sCH}, 1
          s_lshr_b32 s{sT0}, s{sW}, 1
          s_add_u32 s{sKK}, s{sKK}, s{sT0}
          s_waitcnt lgkmcnt(0)
          s_barrier''')
    row_dma(sR1)
    a(f'''s_waitcnt vmcnt(8)
          s_branch {bf}''')
    a.label(noa)
    a('s_waitcnt vmcnt(0)')
    a.label(bf)
    a('s_barrier')
    flag(f's_lshl_b32 s{sT0}, s{sPT}, 2\ns_add_u32 s{sT0}, s{sT0}, {FL_OFF + F_B}')
    mark(a, cfg, 2)
    px = a.newlabel('L_ppx')
    a(f'''s_cmp_lt_u32 s{sPT}, 96
          s_cbranch_scc1 {fin}
          s_cmp_lt_u32 s19, 112
          s_cbranch_scc0 {px}
          s_mov_b32 s{sKK}, 4
          s_mov_b32 s23, 1''')
    ap = a.newlabel('L_pap')
    a.label(ap)
    a(f'''s_mul_i32 s{sT0}, s{sW}, {112*8192}
          s_lshl_b32 s{sT1}, s{sH}, 9
          s_add_u32 s{sT0}, s{sT0}, s{sT1}
          s_lshl_b32 s{sT1}, s{sKK}, 17
          s_add_u32 s{sT0}, s{sT0}, s{sT1}
          s_mul_i32 s{sT1}, s{sW}, 24576
          s_add_u32 s{sT1}, s{sT1}, {L_PB}
          s_lshl_b32 s{sKE}, s{sCH}, 1
          s_mov_b32 s{sT2}, 0''')
    lp = a.newlabel('L_pwk')
    a.label(lp)
    a(f'''s_cmp_ge_u32 s{sKE}, 12
          s_cselect_b32 s{sT3}, 12, 0
          s_sub_u32 s{sKE}, s{sKE}, s{sT3}
          s_lshr_b32 s21, s{sKE}, 2
          s_lshl_b32 s21, s21, 17
          s_and_b32 s22, s{sKE}, 3
          s_lshl_b32 s22, s22, 7
          s_add_u32 s21, s21, s22
          s_add_u32 s21, s21, s{sT0}
          s_lshl_b32 s22, s{sKE}, 11
          s_add_u32 m0, s22, s{sT1}
          s_add_u32 s{sKE}, s{sKE}, 1
          buffer_load_dwordx4 v{vSB}, {S(sR2)}, s21 offen lds
          s_add_u32 m0, m0, {1024-64}
          s_add_u32 s{sT2}, s{sT2}, 1
          buffer_load_dwordx4 v{vSB}, {S(sR2)}, s21 offen offset:64 lds
          s_cmp_lt_u32 s{sT2}, 12
          s_cbranch_scc1 {lp}''')
    frag_read_lane(a, vRA, 6)
    a(f'''v_add_u32 v{vRB}, s{sT1}, v{vRA}
          s_waitcnt vmcnt(0)
          s_barrier''')
    def rdA(ke):
        b = ke % 2
        return [f'ds_read_b128 {vr(FB+28*b+4*rt,4)}, v{vRA} offset:{rt*8192 + ke*1024}' for rt in range(4)] + \
               [f'ds_read_b128 {vr(FB+28*b+16+4*jt,4)}, v{vRB} offset:{jt*8192 + ke*1024}' for jt in range(3)]
    for x in rdA(0): a(x)
    for ke in range(8):
        q = rdA(ke + 1) if ke < 7 else []
        a('s_waitcnt lgkmcnt(0)')
        for jt in range(3):
            for rt in range(4):
                d = vr(ACC + (jt*4+rt)*4, 4)
                a(f'v_mfma_f32_16x16x32_bf16 {d}, {vr(FB+28*(ke%2)+4*rt,4)}, {vr(FB+28*(ke%2)+16+4*jt,4)}, {d if ke else 0}')
                if q: a(q.pop(0))
    a(f'''s_mul_i32 s{sT0}, s{sH}, {WF_MAT}
          s_mul_i32 s{sT1}, s{sW}, {7*14336}
          s_add_u32 s{sT0}, s{sT0}, s{sT1}
          s_lshl_b32 s{sT1}, s{sCH}, 11
          s_add_u32 s{sT0}, s{sT0}, s{sT1}
          s_mul_i32 s{sT1}, s{sKK}, 14336
          s_add_u32 s{sT0}, s{sT0}, s{sT1}''')
    for jt in range(3):
        for hf in range(2):
            d = ACC + (jt*4+2*hf)*4; o = PK + (jt*2+hf)*4
            for k in range(4): a(f'v_cvt_pk_bf16_f32 v{o+k}, v{d+2*k}, v{d+2*k+1}')
            a(f'buffer_store_dwordx4 {vr(o,4)}, v{vL16}, {S(sWS)}, s{sT0} offen offset:{hf*1024} sc1')
        a(f's_add_u32 s{sT0}, s{sT0}, 14336')
    a('s_waitcnt vmcnt(0)\ns_barrier')
    flag(f's_lshl_b32 s{sT0}, s{sH}, 6\ns_lshl_b32 s{sT1}, s{sCH}, 2\ns_add_u32 s{sT0}, s{sT0}, s{sT1}\ns_add_u32 s{sT0}, s{sT0}, {FL_OFF + F_A}', 's23')
    if cfg.get('marks'):
        mk = a.newlabel('L_pmk'); a(f's_cmp_lg_u32 s23, 1\ns_cbranch_scc1 {mk}'); mark(a, cfg, 13); a.label(mk)
    gate_go(a, cfg, abort, 6, 7)
    a(f'''s_lshr_b32 s{sKK}, s{sKK}, 2
          s_add_u32 s23, s23, 1
          s_cmp_le_u32 s23, 3
          s_cbranch_scc1 {ap}''')
    a.label(px)
    a(f'''s_mul_i32 s{sT0}, s19, {REC_STR}
          s_add_u32 s{sT0}, s{sT0}, {REC_OFF + R_PX}
          s_cmp_lt_u32 s19, 64
          s_cbranch_scc0 {fin}
          v_lshlrev_b32 v6, 4, v{vTID}
          v_mov_b32 v8, -1
          v_mov_b32 v9, -1
          v_mov_b32 v10, -1
          v_mov_b32 v11, -1''')
    for k in range(10):
        a(f'buffer_store_dwordx4 v[8:11], v6, {S(sWS)}, s{sT0} offen sc1\ns_add_u32 s{sT0}, s{sT0}, 4096')
    a(f'''s_waitcnt vmcnt(0)
          s_barrier
          s_cmp_lg_u32 s{sW}, 0
          s_cbranch_scc1 {fin}
          v_mov_b32 v6, 0
          v_mov_b32 v7, 1
          s_mov_b64 exec, 1
          global_atomic_add v6, v7, s[{sDBG}:{sDBG+1}] offset:{4*D_SENT2}
          s_mov_b64 exec, -1''')
    a.label(fin)
```

```python
from common import *
import chain
from chain import load_weights, idx_setup, vIDX, vPOLL, vTW

L_XS = 0
sSEG = 14; sXO = 15; sLB = 16; sC = 17; sR = 18; sCNT = 19; sA = 21; sB = 22; sB2 = 23; sD = 28; sE = 29; sF = 30; sGt = 31

def xs_setup(a, vXS, vXR):
    frag_src_lane(a, vXS, 1792, 6, 7)
    frag_read_lane(a, vXR, 6)
    a(f'''s_lshr_b32 s{sT0}, s{sW}, 1
          s_mul_i32 s{sT0}, s{sT0}, 896
          s_and_b32 s{sT1}, s{sW}, 1
          s_mul_i32 s{sT1}, s{sT1}, 448
          s_add_u32 s{sT0}, s{sT0}, s{sT1}
          v_add_u32 v{vXS}, s{sT0}, v{vXS}
          s_mul_i32 s{sLB}, s{sW}, 7168''')

def xs_dma(a, vXS, segreg):
    a(f's_mul_i32 s{sXO}, s{segreg}, 28672')
    for n in range(7):
        a(f'''s_add_u32 m0, s{sLB}, {n*1024 - n*64}
              buffer_load_dwordx4 v{vXS}, {S(sXS)}, s{sXO} offen offset:{n*64} lds''')

def dense(a, ACC, XF, vXR, w_is_A, mid=None):
    def rd(kk): return [f'ds_read_b128 {vr(XF+8*(kk%2)+4*mt,4)}, v{vXR} offset:{(mt*14+kk)*1024}' for mt in range(2)]
    for x in rd(0): a(x)
    for kk in range(14):
        q = rd(kk + 1) if kk < 13 else []
        a('s_waitcnt lgkmcnt(0)')
        for j in range(7):
            for mt in range(2):
                d = vr(ACC + 28*mt + 4*j, 4); xf = vr(XF + 8*(kk%2) + 4*mt, 4); wf = wreg(j, kk//2, 4, kk%2)
                A, B = (wf, xf) if w_is_A else (xf, wf)
                a(f'v_mfma_f32_16x16x32_bf16 {d}, {A}, {B}, {d if kk else 0}')
                if q and j >= 1: a(q.pop(0))
        if mid and kk == 8: mid()

def role_O(a, cfg, done):
    ACC, XF, PK, vAD = 0, 56, 72, 80
    vXS, vXR, vZ, vUR, vPX, vPM, vG, vO1, vO2, vRW, vT = 102, 103, 104, 105, 107, 108, 109, 110, 111, 112, 114
    L_WO = 65536; L_U = 98304; L_R = 106496
    lane_setup(a); idx_setup(a)
    a(f'''s_sub_u32 s{sT0}, s{sROLE}, 32
          s_mul_i32 s{sC}, s{sT0}, 10923
          s_lshr_b32 s{sC}, s{sC}, 16
          s_mul_i32 s{sT1}, s{sC}, {NRO}
          s_sub_u32 s{sR}, s{sT0}, s{sT1}
          v_mov_b32 v{vZ}, 0''')
    xs_setup(a, vXS, vXR)
    a(f's_mov_b32 s{sSEG}, s{sR}')
    xs_dma(a, vXS, sSEG)
    a(f'''v_lshrrev_b32 v10, 1, v{G}
          v_lshlrev_b32 v10, 12, v10
          v_and_b32 v11, 1, v{G}
          v_lshl_add_u32 v10, v11, 8, v10''')
    for j in range(7):
        a(f'''v_add_u32 v6, {16*j}, v{N}
              v_mul_u32_u24 v7, 4682, v6
              v_lshrrev_b32 v7, 16, v7
              v_mul_u32_u24 v8, 14, v7
              v_sub_u32 v6, v6, v8
              v_lshl_add_u32 v6, v6, 4, v10
              v_and_b32 v8, 1, v7
              v_lshl_add_u32 v6, v8, 11, v6
              v_bfe_u32 v8, v7, 1, 1
              v_lshl_add_u32 v6, v8, 9, v6
              v_lshrrev_b32 v8, 2, v7
              v_lshl_add_u32 v{vAD+j}, v8, 10, v6''')
    a(f'v_mov_b32 v8, {OOB}')
    a(f'''s_lshl_b32 s{sT0}, s{sW}, 11
          s_add_u32 s{sT0}, s{sT0}, {L_U}
          v_lshlrev_b32 v{vTW}, 4, v{N}
          v_lshl_add_u32 v{vTW}, v{G}, 2, v{vTW}
          v_add_u32 v{vTW}, s{sT0}, v{vTW}
          v_mul_u32_u24 v{vUR}, 448, v{G}
          v_lshl_add_u32 v{vUR}, v{N}, 4, v{vUR}
          v_add_u32 v{vUR}, s{sT0}, v{vUR}
          s_mul_i32 s{sT0}, s{sW}, 10240
          v_lshrrev_b32 v6, 1, v{G}
          v_mul_u32_u24 v{vPX}, 2560, v6
          v_lshl_add_u32 v{vPX}, v11, 8, v{vPX}
          v_lshl_add_u32 v{vPX}, v{N}, 4, v{vPX}
          v_add_u32 v{vPX}, s{sT0}, v{vPX}
          v_mul_u32_u24 v{vPM}, 2560, v{G}
          v_lshl_add_u32 v{vPM}, v{N}, 4, v{vPM}
          v_add_u32 v{vPM}, s{sT0}, v{vPM}
          v_lshlrev_b32 v{vG}, 3, v{N}
          v_mul_u32_u24 v6, 1792, v{N}
          v_lshl_add_u32 v6, v{G}, 3, v6
          s_lshr_b32 s{sT0}, s{sW}, 1
          s_mul_i32 s{sT0}, s{sT0}, 896
          s_and_b32 s{sT1}, s{sW}, 1
          s_mul_i32 s{sT1}, s{sT1}, 28
          s_add_u32 s{sT0}, s{sT0}, s{sT1}
          s_mul_i32 s{sT1}, s{sC}, 56
          s_add_u32 s{sT0}, s{sT0}, s{sT1}
          v_add_u32 v6, s{sT0}, v6
          v_cmp_gt_u32 vcc, 3, v{G}
          v_cndmask_b32 v{vO1}, v8, v6, vcc
          v_cndmask_b32 v{vO2}, v6, v8, vcc
          v_add_u32 v{vRW}, {L_R}, v{vPOLL}
          v_mov_b32 v{vT+5}, v{L}''')
    wait_dbg(a, D_FLAGS_OK, 1, done, 10, 11)
    wait_flags(a, FL_OFF + F_B, 56, 4, 1, done, L, 10, sleep=1)
    mark(a, cfg, 4)
    a(f'''s_add_u32 s{sT0}, s{sC}, 16
          s_mul_i32 s{sT0}, s{sT0}, {WF_MAT}''')
    load_weights(a, rot=False, start=f's{sR}')
    a(f'''s_lshl_b32 s{sF}, s{sC}, 2
          s_add_u32 s{sF}, s{sF}, s{sW}
          s_lshl_b32 s{sE}, s{sF}, 13
          s_add_u32 s{sE}, s{sE}, {YF_OFF}
          s_lshl_b32 s{sF}, s{sF}, 5
          s_lshl_b32 s{sT0}, s{sR}, 2
          s_add_u32 s{sF}, s{sF}, s{sT0}
          s_add_u32 s{sF}, s{sF}, {FL_OFF + F_Y}
          s_mov_b32 s{sCNT}, 0
          s_waitcnt vmcnt(0)''')
    mark(a, cfg, 5)
    top = a.newlabel('L_O1')
    a.label(top)
    a(f'''s_waitcnt vmcnt(7)
          s_barrier
          s_xor_b32 s{sLB}, s{sLB}, 0x8000
          s_add_u32 s{sD}, s{sSEG}, {NRO}''')
    xs_dma(a, vXS, sD)
    def flagprev():
        a(f'''s_waitcnt vmcnt(7)
              v_mov_b32 v{PK}, s{sCNT}
              s_mov_b64 exec, 1
              buffer_store_dword v{PK}, v{vZ}, {S(sWS)}, s{sF} offen sc1
              s_mov_b64 exec, -1''')
    dense(a, ACC, XF, vXR, False, flagprev)
    a(f'''v_xor_b32 v{vXR}, 0x8000, v{vXR}
          s_lshl_b32 s{sT0}, s{sSEG}, 19
          s_add_u32 s{sT0}, s{sT0}, s{sE}''')
    for j in range(7):
        p = PK + 4*(j%2)
        for r in range(4): a(f'v_cvt_pk_bf16_f32 v{p+r}, v{ACC+4*j+r}, v{ACC+28+4*j+r}')
        a(f'buffer_store_dwordx4 {vr(p,4)}, v{vAD+j}, {S(sWS)}, s{sT0} offen sc1')
    ng = a.newlabel('L_Ong')
    a(f'''s_add_u32 s{sCNT}, s{sCNT}, 1
          s_cmp_lg_u32 s{sCNT}, 1
          s_cbranch_scc1 {ng}
          s_waitcnt vmcnt(0)
          v_mov_b32 v{PK}, s{sCNT}
          s_mov_b64 exec, 1
          buffer_store_dword v{PK}, v{vZ}, {S(sWS)}, s{sF} offen sc1
          s_mov_b64 exec, -1''')
    gate_go(a, cfg, done, 10, 11)
    a.label(ng)
    a(f'''s_mov_b32 s{sSEG}, s{sD}
          s_cmp_lt_u32 s{sSEG}, 64
          s_cbranch_scc1 {top}
          s_waitcnt vmcnt(0)
          v_mov_b32 v{PK}, s{sCNT}
          s_mov_b64 exec, 1
          buffer_store_dword v{PK}, v{vZ}, {S(sWS)}, s{sF} offen sc1
          s_mov_b64 exec, -1''')
    mark(a, cfg, 6)
    a(f'v_and_b32 v{N}, 15, v{vT+5}\nv_lshrrev_b32 v{G}, 4, v{vT+5}')
    srd(a, sR1, 3, 401408)
    a(f'''v_mul_u32_u24 v6, 3584, v{G}
          v_lshl_add_u32 v6, v{N}, 1, v6
          v_mov_b32 v8, {OOB}
          v_cmp_gt_u32 vcc, 3, v{G}
          v_cndmask_b32 v7, v8, v6, vcc
          s_mul_i32 s{sT0}, s{sW}, {112*896}
          s_mul_i32 s{sT1}, s{sC}, 56
          s_add_u32 s{sT0}, s{sT0}, s{sT1}
          s_lshl_b32 s{sA}, s{sW}, 13
          s_add_u32 s{sA}, s{sA}, {L_WO}
          v_add_u32 v9, s{sA}, v{vPOLL}''')
    for hs in range(4):
        for half in range(2):
            a(f's_add_u32 s{sT1}, s{sT0}, {(28*hs + 16*half)*896}')
            for nt in range(2):
                for r in range(4):
                    d = 24 + (nt*4+hs)*4 + 2*half + r//2
                    a(f'buffer_load_ushort v{d + (32 if r%2 else 0)}, v{7 if half else 6}, {S(sR1)}, s{sT1} offen offset:{r*896 + nt*28}')
        if hs == 1: a('s_waitcnt vmcnt(0)')
    a('s_waitcnt vmcnt(0)')
    for k in range(32): a(f'v_lshl_or_b32 v{24+k}, v{56+k}, 16, v{24+k}')
    for f in range(8): a(f'ds_write_b128 v9, {vr(24+4*f,4)} offset:{f*1024}')
    srd(a, sR1, 12, 1835008)
    wait_dbg(a, D_SENT, 17, done, 10, 11)
    wait_dbg(a, D_SENT2, 64, done, 10, 11)
    a(f's_mov_b32 s{sSEG}, s{sR}')
    MA, TA, PF, AC2, Y, U, GG = 0, 28, 0, 40, 56, 88, 96
    top = a.newlabel('L_O2')
    a.label(top)
    a(f'''s_lshr_b32 s{sT0}, s{sSEG}, 2
          s_lshl_b32 s{sT0}, s{sT0}, 6
          s_add_u32 s{sA}, s{sT0}, {FL_OFF + F_O}
          s_and_b32 s{sB}, s{sSEG}, 3
          s_add_u32 s{sB}, s{sB}, 1''')
    wait_flags(a, f's{sA}', 16, 1, f's{sB}', done, vT+5, vT, sleep=8)
    a(f'''s_lshl_b32 s{sA}, s{sSEG}, 15
          s_lshl_b32 s{sT0}, s{sW}, 13
          s_add_u32 s{sA}, s{sA}, s{sT0}
          s_add_u32 s{sA}, s{sA}, {OA_OFF}
          s_add_u32 s{sB}, s{sA}, 4096
          s_lshl_b32 s{sGt}, s{sSEG}, 7
          s_add_u32 s{sGt}, s{sGt}, {G_OFF}
          s_lshl_b32 s{sT0}, s{sW}, 13
          s_add_u32 s{sT0}, s{sT0}, {L_WO}
          v_add_u32 v{vT}, s{sT0}, v{vPOLL}''')
    for f in range(8):
        a(f'buffer_load_dwordx4 {vr(4*f,4)}, v{vPOLL}, {S(sWS)}, s{sA if f<4 else sB} offen offset:{(f%4)*1024} sc1')
    a(f'buffer_load_dwordx2 {vr(GG,2)}, v{vG}, {S(sWS)}, s{sGt} offen sc1')
    for f in range(8): a(f'ds_read_b128 {vr(Y+4*f,4)}, v{vT} offset:{f*1024}')
    a('s_waitcnt vmcnt(0) lgkmcnt(0)')
    for hs in range(4):
        for qt in range(2):
            for nt in range(2):
                d = vr(AC2 + (qt*2+nt)*4, 4)
                a(f'v_mfma_f32_16x16x32_bf16 {d}, {vr(Y+(nt*4+hs)*4,4)}, {vr((hs*2+qt)*4,4)}, {d if hs else 0}')
    a(f'''s_lshl_b32 s{sA}, s{sSEG}, 19
          s_add_u32 s{sA}, s{sA}, s{sE}
          s_add_u32 s{sB}, s{sA}, 4096
          s_lshl_b32 s{sT0}, s{sW}, 12
          v_add_u32 v{vT}, s{sT0}, v{vRW}''')
    for k in range(4):
        for r in range(4): a(f'v_mul_f32 v{AC2+4*k+r}, v{GG+k//2}, v{AC2+4*k+r}')
        a(f'ds_write_b128 v{vT}, {vr(AC2+4*k,4)} offset:{k*1024}')
    for f in range(8):
        a(f'buffer_load_dwordx4 {vr(Y+4*f,4)}, v{vPOLL}, {S(sWS)}, s{sA if f<4 else sB} offen offset:{(f%4)*1024} sc1')
    a(f'''v_sub_f32 v{GG}, 1.0, v{GG}
          v_sub_f32 v{GG+1}, 1.0, v{GG+1}
          s_mul_i32 s{sD}, s{sSEG}, {REC_STR}
          s_add_u32 s{sA}, s{sD}, {REC_OFF + R_MSA}
          s_add_u32 s{sB}, s{sA}, 4096''')
    poll_sent(a, [f'buffer_load_dwordx4 {vr(MA+4*f,4)}, v{vPOLL}, {S(sWS)}, s{sA if f<4 else sB} offen offset:{(f%4)*1024} sc1' for f in range(7)],
              range(MA, MA+28), done, vT+1, sleep=cfg.get('o_sleep', 4))
    q = []
    for j in range(7):
        d = TA + 4*(j%3)
        for r in range(4): a(f'v_mov_b32 v{d+r}, 0')
        for i in range(7):
            chain.smf(a, d, MA + 4*i, wreg(j, i))
            if i >= 2 and q: a(q.pop(0))
        q = chain.post_ops(j, d)
    for x in q: a(x)
    a(f'''ds_read_b128 {vr(U,4)}, v{vUR}
          ds_read_b128 {vr(U+4,4)}, v{vUR} offset:224
          s_add_u32 s{sA}, s{sD}, {REC_OFF + R_PX}
          s_add_u32 s{sB}, s{sA}, 5120''')
    pl = []
    for qt in range(2):
        pl.append(f'buffer_load_dwordx4 {vr(PF+20*qt,4)}, v{vPM}, {S(sWS)}, s{sA} offen offset:{qt*1280+1024} sc1')
        for i in range(2):
            for hf in range(2):
                pl.append(f'buffer_load_dwordx4 {vr(PF+20*qt+4+(i*2+hf)*4,4)}, v{vPX}, {S(sWS)}, s{sB if hf else sA} offen offset:{qt*1280+i*512} sc1')
    poll_sent(a, pl, range(PF, PF+40), done, vT+1, sleep=1)
    a('s_waitcnt lgkmcnt(0)')
    for qt in range(2):
        for nt in range(2):
            a(f'v_mfma_f32_16x16x32_bf16 {vr(AC2+(qt*2+nt)*4,4)}, {vr(U+4*nt,4)}, {vr(PF+20*qt,4)}, 0')
    for i in range(2):
        for hf in range(2):
            for qt in range(2):
                for nt in range(2):
                    d = vr(AC2 + (qt*2+nt)*4, 4)
                    a(f'v_mfma_f32_16x16x32_bf16 {d}, {vr(Y+((i*2+nt)*2+hf)*4,4)}, {vr(PF+20*qt+4+(i*2+hf)*4,4)}, {d}')
    for k in range(4):
        for r in range(4): a(f'v_mul_f32 v{AC2+4*k+r}, v{GG+k//2}, v{AC2+4*k+r}')
        a(f'ds_write_b128 v{vT}, {vr(AC2+4*k,4)} offset:{16384+k*1024}')
    a(f'''s_lshl_b32 s{sT0}, s{sW}, 10
          v_add_u32 v{vT}, s{sT0}, v{vRW}
          s_mul_i32 s{sA}, s{sSEG}, 28672
          s_waitcnt lgkmcnt(0)
          s_barrier''')
    for p in range(8): a(f'ds_read_b128 {vr(4*p,4)}, v{vT} offset:{p*4096}')
    a('s_waitcnt lgkmcnt(0)\ns_barrier')
    for st in (16, 8, 4):
        for r in range(0, st, 2): a(f'v_pk_add_f32 {vr(r,2)}, {vr(r,2)}, {vr(r+st,2)}')
    a(f'''v_cvt_pk_bf16_f32 v0, v0, v1
          v_cvt_pk_bf16_f32 v1, v2, v3
          buffer_store_dwordx2 v[0:1], v{vO1}, {S(sR1)}, s{sA} offen
          buffer_store_dword v0, v{vO2}, {S(sR1)}, s{sA} offen
          s_add_u32 s{sSEG}, s{sSEG}, {NRO}
          s_cmp_lt_u32 s{sSEG}, 64
          s_cbranch_scc1 {top}
          s_branch {done}''')

def xg_reduce(a, op, regs, tmps):
    for sw in ('v_permlane16_swap_b32', 'v_permlane32_swap_b32'):
        for r, t in zip(regs, tmps): a(f'v_mov_b32 v{t}, v{r}')
        for r, t in zip(regs, tmps): a(f'{sw} v{r}, v{t}')
        for r, t in zip(regs, tmps): a(f'{op} v{r}, v{r}, v{t}')

def role_X(a, cfg, done):
    ACC, XF, TB, SX, KF = 0, 56, 72, 0, 16
    vXS, vXR, vKa, vKb, vMX, vRW, vRM, vPM, vQ, vT = 102, 103, 104, 105, 106, 107, 108, 109, 110, 112
    L_R = 65536; L_M = 81920
    lane_setup(a); idx_setup(a)
    a(f'''s_sub_u32 s{sT0}, s{sROLE}, 128
          s_lshr_b32 s{sC}, s{sT0}, 2
          s_and_b32 s{sR}, s{sT0}, 3''')
    xs_setup(a, vXS, vXR)
    a(f's_mov_b32 s{sSEG}, s{sR}')
    xs_dma(a, vXS, sSEG)
    a(f'''v_lshrrev_b32 v6, 3, v{N}
          v_lshlrev_b32 v6, 1, v6
          v_lshrrev_b32 v7, 1, v{G}
          v_xor_b32 v6, v6, v7
          v_lshlrev_b32 v8, 6, v{N}
          v_lshl_add_u32 v8, v6, 4, v8
          v_and_b32 v9, 1, v{G}
          v_lshl_add_u32 v8, v9, 3, v8
          s_and_b32 s{sT0}, s{sW}, 1
          s_lshl_b32 s{sT0}, s{sT0}, 5
          v_xor_b32 v{vKa}, s{sT0}, v8
          v_xor_b32 v{vKb}, 32, v{vKa}
          s_mul_i32 s{sT0}, s{sW}, 7
          s_lshr_b32 s{sT1}, s{sT0}, 1
          s_lshl_b32 s{sT1}, s{sT1}, 10
          v_add_u32 v{vKa}, s{sT1}, v{vKa}
          s_add_u32 s{sT1}, s{sT0}, 1
          s_lshr_b32 s{sT1}, s{sT1}, 1
          s_lshl_b32 s{sT1}, s{sT1}, 10
          v_add_u32 v{vKb}, s{sT1}, v{vKb}
          s_lshl_b32 s{sT0}, s{sT0}, 8
          v_lshlrev_b32 v{vMX}, 2, v{G}
          v_bfe_u32 v6, v{N}, 1, 2
          v_lshl_add_u32 v{vMX}, v6, 6, v{vMX}
          v_and_b32 v6, 1, v{N}
          v_lshl_add_u32 v{vMX}, v6, 4, v{vMX}
          v_add_u32 v{vMX}, s{sT0}, v{vMX}
          v_add_u32 v{vRW}, {L_R}, v{vPOLL}
          v_lshlrev_b32 v{vRM}, 8, v7
          v_lshl_add_u32 v{vRM}, v{N}, 4, v{vRM}
          v_lshl_add_u32 v{vRM}, v9, 3, v{vRM}
          s_and_b32 s{sT0}, s{sW}, 1
          s_lshl_b32 s{sT1}, s{sT0}, 10
          s_add_u32 s{sT1}, s{sT1}, {L_M}
          v_add_u32 v{vRM}, s{sT1}, v{vRM}
          v_lshlrev_b32 v{vPM}, 4, v{N}
          v_lshl_add_u32 v{vPM}, v{G}, 2, v{vPM}
          v_lshlrev_b32 v{vQ}, 1, v{N}
          v_add_u32 v{vQ}, s{sT0}, v{vQ}
          v_lshlrev_b32 v6, 3, v{G}
          v_sub_u32 v{vQ}, v{vQ}, v6''')
    wait_dbg(a, D_FLAGS_OK, 1, done, 10, 11)
    a(f'''s_lshl_b32 s{sT2}, s{sC}, 6
          s_add_u32 s{sT2}, s{sT2}, {FL_OFF + F_A}''')
    wait_flags(a, f's{sT2}', 7, 1, 3, done, L, 10, sleep=8)
    mark(a, cfg, 4)
    a(f's_mul_i32 s{sT0}, s{sC}, {WF_MAT}\ns_lshl_b32 s{sA}, s{sR}, 1')
    load_weights(a, rot=False, start=f's{sA}')
    wait_dbg(a, D_SENT, 17, done, 10, 11)
    wait_dbg(a, D_SENT2, 64, done, 10, 11)
    mark(a, cfg, 5)
    top = a.newlabel('L_X1'); skip = a.newlabel('L_Xs'); skip2 = a.newlabel('L_Xs2')
    a.label(top)
    a(f'''s_waitcnt vmcnt(0)
          s_barrier
          s_xor_b32 s{sLB}, s{sLB}, 0x8000
          s_add_u32 s{sD}, s{sSEG}, {NRX}''')
    xs_dma(a, vXS, sD)
    dense(a, ACC, XF, vXR, True)
    for qt in range(2):
        for j in range(7):
            d = ACC + 28*qt + 4*j
            a(f'''v_cvt_pk_bf16_f32 v{TB+14*qt+2*j}, v{d}, v{d+1}
                  v_cvt_pk_bf16_f32 v{TB+14*qt+2*j+1}, v{d+2}, v{d+3}''')
    for j in range(7):
        for kt in range(2):
            a(f'ds_read_b64 {vr(KF+4*j+2*kt,2)}, v{vKb if j%2 else vKa} offset:{kt*14336 + (j//2)*1024}')
    a('s_waitcnt lgkmcnt(0)')
    for j in range(7):
        for qt in range(2):
            for kt in range(2):
                d = vr(SX + (qt*2+kt)*4, 4)
                a(f'v_mfma_f32_16x16x16_bf16 {d}, {vr(KF+4*j+2*kt,2)}, {vr(TB+14*qt+2*j,2)}, {d if j else 0}')
    a(f'''v_xor_b32 v{vXR}, 0x8000, v{vXR}
          v_xor_b32 v{vKa}, 0x8000, v{vKa}
          v_xor_b32 v{vKb}, 0x8000, v{vKb}
          s_lshl_b32 s{sT0}, s{sW}, 12
          v_add_u32 v{vT}, s{sT0}, v{vRW}''')
    for k in range(4): a(f'ds_write_b128 v{vT}, {vr(SX+4*k,4)} offset:{k*1024}')
    a(f'''s_and_b32 s{sT0}, s{sW}, 1
          s_lshl_b32 s{sT0}, s{sT0}, 11
          v_add_u32 v{vT}, s{sT0}, v{vRW}
          s_waitcnt lgkmcnt(0)
          s_barrier''')
    E = 56
    for p in range(4):
        for kt in range(2): a(f'ds_read_b128 {vr(8*p+4*kt,4)}, v{vT} offset:{p*4096 + kt*1024}')
    a('s_waitcnt lgkmcnt(0)')
    for r in range(0, 16, 2): a(f'v_pk_add_f32 {vr(r,2)}, {vr(r,2)}, {vr(r+16,2)}')
    for r in range(0, 8, 2): a(f'v_pk_add_f32 {vr(r,2)}, {vr(r,2)}, {vr(r+8,2)}')
    a(f'v_mov_b32 v{vT+1}, 0xf0000000')
    for kt in range(2):
        for r in range(4):
            a(f'''v_cmp_le_i32 vcc, {2*r+kt}, v{vQ}
                  v_cndmask_b32 v{E+4*kt+r}, v{vT+1}, v{4*kt+r}, vcc''')
    a(f'''s_mul_i32 s{sE}, s{sSEG}, {REC_STR}
          s_add_u32 s{sA}, s{sE}, {REC_OFF + R_MSA}''')
    poll_sent(a, [f'buffer_load_dword v{k}, v{vMX}, {S(sWS)}, s{sA} offen offset:{(k//2)*256 + (k%2)*32} sc1' for k in range(14)],
              range(0, 14), done, vT+1, sleep=cfg.get('x_sleep', 2))
    for j in range(7):
        for qt in range(2):
            d = vr(16 + 4*qt, 4)
            a(f'v_mfma_f32_16x16x16_bf16 {d}, {vr(2*j,2)}, {vr(TB+14*qt+2*j,2)}, {d if j else 0}')
    a(f'''s_lshl_b32 s{sT0}, s{sW}, 11
          s_add_u32 s{sT0}, s{sT0}, {L_M}
          v_add_u32 v{vT}, s{sT0}, v{vPOLL}
          ds_write_b128 v{vT}, v[16:19]
          ds_write_b128 v{vT}, v[20:23] offset:1024
          s_waitcnt lgkmcnt(0)
          s_barrier
          s_cmp_ge_u32 s{sW}, 2
          s_cbranch_scc1 {skip}''')
    for p in range(4): a(f'ds_read_b64 {vr(2*p,2)}, v{vRM} offset:{p*2048}')
    a(f'''v_max3_f32 v10, v{E}, v{E+1}, v{E+2}
          v_max3_f32 v10, v10, v{E+3}, v{E+4}
          v_max3_f32 v10, v10, v{E+5}, v{E+6}
          v_max_f32 v10, v10, v{E+7}
          s_waitcnt lgkmcnt(0)
          v_pk_add_f32 v[0:1], v[0:1], v[2:3]
          v_pk_add_f32 v[4:5], v[4:5], v[6:7]
          v_pk_add_f32 {vr(E+8,2)}, v[0:1], v[4:5]
          v_max3_f32 v10, v10, v{E+8}, v{E+9}''')
    xg_reduce(a, 'v_max_f32', [10], [11])
    a(f's_mov_b32 s{sT0}, {ASCALE_HEX}\nv_mul_f32 v10, s{sT0}, v10')
    for k in range(10): a(f'v_fma_f32 v{E+k}, v{E+k}, s{sT0}, -v10')
    for k in range(10): a(f'v_exp_f32 v{E+k}, v{E+k}')
    a(f'''v_pk_add_f32 v[0:1], {vr(E,2)}, {vr(E+2,2)}
          v_pk_add_f32 v[2:3], {vr(E+4,2)}, {vr(E+6,2)}
          v_pk_add_f32 v[0:1], v[0:1], {vr(E+8,2)}
          v_pk_add_f32 v[0:1], v[0:1], v[2:3]
          v_add_f32 v10, v0, v1''')
    xg_reduce(a, 'v_add_f32', [10], [11])
    a('v_rcp_f32 v10, v10')
    for k in range(10): a(f'v_mul_f32 v{E+k}, v{E+k}, v10')
    for r in range(4): a(f'v_cvt_pk_bf16_f32 v{r}, |v{E+r}|, |v{E+4+r}|')
    a(f'''v_cvt_pk_bf16_f32 v4, |v{E+8}|, |v{E+9}|
          s_mul_i32 s{sT0}, s{sC}, 2560
          s_mul_i32 s{sT1}, s{sW}, 1280
          s_add_u32 s{sT0}, s{sT0}, s{sT1}
          s_add_u32 s{sT0}, s{sT0}, s{sE}
          s_add_u32 s{sT0}, s{sT0}, {REC_OFF + R_PX}
          buffer_store_dwordx4 v[0:3], v{vPOLL}, {S(sWS)}, s{sT0} offen sc1
          buffer_store_dword v4, v{vPM}, {S(sWS)}, s{sT0} offen offset:1024 sc1''')
    a.label(skip)
    a(f'''s_mov_b32 s{sSEG}, s{sD}
          s_cmp_lt_u32 s{sSEG}, 64
          s_cbranch_scc1 {top}
          s_branch {done}''')
```

```python
import sys, json
from common import *
import chain, pre, workers, ba

NAME = 'gated_mix__linear_kernel_hedgehog__memory_aug_recurrent_mem_tr__prompt'
def generate(cfg):
    a = Asm()
    K = NAME + '_kernel'
    hdr = open('cdna_kernels/' + NAME + '.s.ref').read().split('; Override launch')[0]
    a.raw(hdr.rstrip())
    a.raw(f'; @launch grid=(256,1,1) block=(256,1,1) lds={LDS_SIZE}')
    a.raw('.amdgcn_target "amdgcn-amd-amdhsa--gfx950"\n.text\n.globl %s\n.p2align 8\n.type %s,@function\n%s:' % (K, K, K))
    a(f'''s_cmp_ge_u32 s2, 256
          s_cbranch_scc1 L_end
          s_getpc_b64 s[{sT2}:{sT3}]
L_pc:
          s_bfe_u32 s{sT0}, s2, 0x30003
          s_lshl_b32 s{sT0}, s{sT0}, 15
          v_lshlrev_b32 v1, 7, v0
          v_add_u32 v1, s{sT0}, v1
          v_min_u32 v1, L_end-L_pc, v1
          global_load_dword v117, v1, s[{sT2}:{sT3}]
          s_load_dwordx2 s[{sXS}:{sXS+1}], s[0:1], 0
          s_load_dwordx2 s[{sDBG}:{sDBG+1}], s[0:1], 104
          s_load_dwordx2 s[{sWS}:{sWS+1}], s[0:1], 112
          s_getreg_b32 s{sXCC}, hwreg(HW_REG_XCC_ID, 0, 4)
          s_and_b32 s{sXCC}, s{sXCC}, 7
          s_mov_b32 s{sWS+2}, {WS_SIZE}
          s_mov_b32 s{sWS+3}, 0x20000
          s_mov_b32 s{sXS+2}, 1835008
          s_mov_b32 s{sXS+3}, 0x20000
          v_mov_b32 v{vTID}, v0
          s_mov_b32 s70, 0
          v_lshrrev_b32 v1, 6, v0
          v_readfirstlane_b32 s{sW}, v1
          s_and_b32 s{sT0}, s2, 7
          s_lshl_b32 s{sROLE}, s{sT0}, 5
          s_lshr_b32 s{sT1}, s2, 3
          s_add_u32 s{sROLE}, s{sROLE}, s{sT1}
          s_waitcnt lgkmcnt(0)''')
    mark(a, cfg, 0)
    a(f'''s_cmp_lt_u32 s{sROLE}, 16
          s_cbranch_scc1 L_S
          s_cmp_lt_u32 s{sROLE}, 32
          s_cbranch_scc1 L_V''')
    pre.p_phase(a, cfg, 'L_end')
    chain.v_mem0(a, cfg)
    mark(a, cfg, 3)
    a(f'''s_cmp_lt_u32 s{sROLE}, 128
          s_cbranch_scc1 L_O
          s_cmp_lt_u32 s{sROLE}, 192
          s_cbranch_scc1 L_X
          s_branch L_BA''')
    a.label('L_S'); chain.role_S(a, cfg, 'L_fin')
    a.label('L_V'); chain.role_V(a, cfg, 'L_fin')
    a.label('L_O'); workers.role_O(a, cfg, 'L_fin')
    a.label('L_X'); workers.role_X(a, cfg, 'L_fin')
    a.label('L_BA'); ba.role_BA(a, cfg, 'L_fin')
    a.label('L_fin')
    if cfg.get('marks'):
        a('s_waitcnt vmcnt(0) lgkmcnt(0)')
        mark(a, cfg, 7)
        a(f'''s_add_u32 s62, s62, 4
              v_mov_b32 v12, s{sROLE}
              buffer_store_dword v12, v13, {S(sWS)}, s62 offen
              s_add_u32 s62, s62, 4
              v_mov_b32 v14, s70
              buffer_store_dword v14, v13, {S(sWS)}, s62 offen''')
    a('L_end:\ns_endpgm')

    a.raw('''.section .rodata,"a"
.p2align 6
.amdhsa_kernel %s
  .amdhsa_next_free_vgpr 512
  .amdhsa_next_free_sgpr 96
  .amdhsa_accum_offset 256
  .amdhsa_group_segment_fixed_size 0
  .amdhsa_kernarg_size 120
  .amdhsa_user_sgpr_count 2
  .amdhsa_user_sgpr_kernarg_segment_ptr 1
  .amdhsa_system_sgpr_workgroup_id_x 1
  .amdhsa_float_denorm_mode_32 3
.end_amdhsa_kernel''' % K)
    return a

if __name__ == '__main__':
    cfg = json.loads(sys.argv[1]) if len(sys.argv) > 1 else {}
    out = sys.argv[2] if len(sys.argv) > 2 else 'cdna_kernels/' + NAME + '.s'
    a = generate(cfg)
    open(out, 'w').write(a.text())
    print('instructions', len(a.ins), 'nops inserted', a.nops_inserted)
    open(out+'.trlog','w').write('\n'.join(a.tr_log))
```

```python
from common import *

L_MEM = 0
L_T   = 8192
L_RED = 16384
L_X   = 65536

MA = 0; ACC = 28; XB = 56; SACC = 88
vIDX, vPOLL, vLM, vLA, vLB, vLC, vTW, vTR, vMB, vSW, vSW2, vSR, vPS, vX, vX2, vXR, vPF3, vPF2, vT0, vT1 = range(100, 120)
sHO = 15; sHO2 = 16; sXO = 17; sYO = 18; sYO2 = 19; sTHR = 21
sVALID = 22
sMSO = 28; sPFY = 29; sPO = 30; sLX = 31
sFAST = 44; sSLOW = 45; sYK = 34; sFY = 35; sMODE = 46
ST0 = 48

def slot_map(w):
    if w < 3: return [2*w, 2*w+1, 2*((w+1)%3), 2*((w+1)%3)+1, 2*((w+2)%3), 2*((w+2)%3)+1, 6]
    return [6, 0, 2, 3, 4, 5, 1]
def pack_map(w): return sum(k << (4*i) for i, k in enumerate(slot_map(w)))

def load_weights(a, rot=True, tiles=range(7), start=None):
    a(f'''s_mul_i32 s{sT1}, s{sW}, {7*14*1024}
          s_add_u32 s{sT1}, s{sT1}, s{sT0}''')
    if rot:
        a(f'''s_mov_b32 s{sT3}, {pack_map(0)}
              s_cmp_eq_u32 s{sW}, 1
              s_cselect_b32 s{sT3}, {pack_map(1)}, s{sT3}
              s_cmp_eq_u32 s{sW}, 2
              s_cselect_b32 s{sT3}, {pack_map(2)}, s{sT3}
              s_cmp_eq_u32 s{sW}, 3
              s_cselect_b32 s{sT3}, {pack_map(3)}, s{sT3}''')
    if start:
        lp = a.newlabel('L_lw'); a(f's_mov_b32 s{sT0}, 0'); a.label(lp)
    for i in range(7):
        if start:
            sk = a.newlabel('L_lws')
            a(f'''s_cmp_lt_u32 {i}, {start}
                  s_cselect_b32 s{sT3}, 1, 0
                  s_cmp_lg_u32 s{sT3}, s{sT0}
                  s_cbranch_scc1 {sk}''')
        if rot:
            a(f's_bfe_u32 s{sT2}, s{sT3}, {(4 << 16) | (4*i)}')
            if i in (2, 4, 6):
                a(f'''s_lshl_b32 s{sT0}, s{sT2}, 10
                      v_add_u32 v{ {2: vLA, 4: vLB, 6: vLC}[i] }, s{sT0}, v{vPOLL}''')
            a(f'''s_lshl_b32 s{sT2}, s{sT2}, 11
                  s_add_u32 s{sT2}, s{sT2}, s{sT1}''')
        else:
            a(f's_add_u32 s{sT2}, s{sT1}, {i*2048}')
        for j in range(7):
            if j: a(f's_add_u32 s{sT2}, s{sT2}, {14*1024}')
            if j not in tiles: continue
            a(f'buffer_load_dwordx4 {wreg(j,i,4,0)}, v{vPOLL}, {S(sWS)}, s{sT2} offen sc1')
            a(f'buffer_load_dwordx4 {wreg(j,i,4,1)}, v{vPOLL}, {S(sWS)}, s{sT2} offen offset:1024 sc1')
        if start: a.label(sk)
    if start:
        a(f's_add_u32 s{sT0}, s{sT0}, 1\ns_cmp_lt_u32 s{sT0}, 2\ns_cbranch_scc1 {lp}')

def idx_setup(a):
    a(f'''v_lshlrev_b32 v{vPOLL}, 4, v{L}
          v_mov_b32 v{vIDX}, 0x4444
          v_mov_b32 v1, 0xeeee
          v_and_b32 v2, 2, v{N}
          v_cmp_ne_u32 vcc, 0, v2
          v_cndmask_b32 v{vIDX}, v{vIDX}, v1, vcc''')

def common_setup(a):
    idx_setup(a)
    a(f'''s_lshl_b32 s{sT0}, s{sW}, 11
          v_add_u32 v{vLM}, s{sT0}, v{vPOLL}
          v_lshrrev_b32 v4, 5, v{L}
          v_and_b32 v5, 31, v{L}''')

def red_read_addr(a, colreg):
    a(f'''v_lshlrev_b32 v{vSR}, 8, v4
          v_lshl_add_u32 v{vSR}, v{colreg}, 3, v{vSR}
          s_lshl_b32 s{sT1}, s{sW}, 9
          s_add_u32 s{sT1}, s{sT1}, {L_RED}
          v_add_u32 v{vSR}, s{sT1}, v{vSR}''')

def warm(a, n):
    for _ in range(n): a(f'v_mov_b32 v{vT1}, v{vT1}\ns_nop 2')

def smf(a, d, A, B): a(f'v_smfmac_f32_16x16x64_bf16 {vr(d,4)}, {vr(A,4)}, {B}, v{vIDX}')

def post_ops(j, d=None):
    d = ACC + 4 * j if d is None else d
    return [f'v_add_f32 v{d}, v{d}, v{d+2}', f'v_add_f32 v{d+1}, v{d+1}, v{d+3}',
            f'v_cvt_pk_bf16_f32 v{d}, v{d}, v{d+1}', f'ds_write_b32 v{vTW}, v{d} offset:{j*256}']

def stage1(a, early, extra, cfg, depth, abort, pw, skip=()):
    lp = a.newlabel('L_mp'); rt = a.newlabel('L_mretry')
    ld = [f'buffer_load_dwordx4 {vr(MA,4)}, v{vPOLL}, {S(sWS)}, s{sHO} offen sc1',
          f'buffer_load_dwordx4 {vr(MA+4,4)}, v{vPOLL}, {S(sWS)}, s{sHO2} offen sc1']
    a(f's_mov_b32 s{sTO}, 0x40000')
    for d in range(depth - 1):
        for x in ld: a(x)
        warm(a, cfg.get('stag', 6))
    a.label(lp)
    for x in ld: a(x)
    a(f'''s_sub_u32 s{sTO}, s{sTO}, 1
          s_cbranch_scc1 {abort}''')
    warm(a, pw)
    a(f'''s_waitcnt vmcnt({2*(depth-1)+1})
          v_max3_u32 v{vT0}, v{MA}, v{MA+1}, v{MA+2}
          v_max_u32 v{vT0}, v{vT0}, v{MA+3}
          s_waitcnt vmcnt({2*(depth-1)})
          v_max3_u32 v{vT0}, v{vT0}, v{MA+4}, v{MA+5}
          v_max3_u32 v{vT0}, v{vT0}, v{MA+6}, v{MA+7}
          v_cmp_eq_u32 vcc, -1, v{vT0}''')
    wr = [f'ds_write_b128 v{vLM}, {vr(MA,4)}', f'ds_write_b128 v{vLM}, {vr(MA+4,4)} offset:1024']
    nw = cfg.get('specw', 0)
    for x in wr[:nw]: a(x)
    a(f's_cbranch_vccnz {lp}')
    stamp(a, cfg, 0)
    q = wr[nw:] + list(early)
    rd = [f'ds_read_b128 {vr(MA+8,4)}, v{vLA}', f'ds_read_b128 {vr(MA+12,4)}, v{vLA} offset:1024',
          f'ds_read_b128 {vr(MA+16,4)}, v{vLB}', f'ds_read_b128 {vr(MA+20,4)}, v{vLB} offset:1024',
          f'ds_read_b128 {vr(MA+24,4)}, v{vLC}']
    def pop():
        x = q.pop(0)
        if x: a(x)
    k = 0
    for i in range(2):
        for j in range(7):
            if j in skip: continue
            smf(a, ACC + 4 * j, MA + 4 * i, wreg(j, i))
            k += 1
            if k == cfg.get('barpos', 8):
                a('s_waitcnt lgkmcnt(0)\ns_barrier')
                for x in rd[:2]: a(x)
                q = rd[2:] + q
            elif q: pop()
    while any(x in rd for x in q): pop()
    for j in range(7):
        for i in range(2, 7):
            if j == 0: a(f's_waitcnt lgkmcnt({6-i})')
            if j not in skip: smf(a, ACC + 4 * j, MA + 4 * i, wreg(j, i))
            if j > 0 and i == 3: q = q + post_ops(j - 1) + extra.get(j, [])
            for _ in range(2 if len([x for x in q if x]) > 5 else 1):
                if q: pop()
    while q: pop()

def align(a, pad):
    if pad is None: return
    a.raw('.p2align 6')
    for _ in range(pad): a('s_nop 0')

def zero_acc(a, regs):
    for r in regs: a(f'v_mov_b32 v{r}, 0')

def chain_mode(a, cfg, abort):
    lp = a.newlabel('L_cm'); dn = a.newlabel('L_cmd')
    a(f'''s_mov_b32 s{sTO}, 0x20000
          v_mov_b32 v10, 0''')
    a.label(lp)
    a(f'''global_load_dwordx2 v[12:13], v10, s[{sDBG}:{sDBG+1}] offset:{4*D_MODE} sc1
          s_waitcnt vmcnt(0)
          v_readfirstlane_b32 s{sT0}, v12
          v_readfirstlane_b32 s{sT2}, v13
          s_and_b32 s{sT1}, s{sT0}, 255
          s_add_u32 s{sT1}, s{sT1}, s{sT2}
          s_cmp_ge_u32 s{sT1}, 49
          s_cbranch_scc1 {dn}
          s_sleep 2
          s_sub_u32 s{sTO}, s{sTO}, 1
          s_cbranch_scc0 {lp}
          s_branch {abort}''')
    a.label(dn)
    a(f'''s_lshl_b32 s{sT1}, s{sMODE}, 5
          s_cmp_lg_u32 s{sT0}, s{sT1}
          s_cselect_b32 s{sMODE}, 1, 0''')
    if cfg.get('force_slow'): a(f's_mov_b32 s{sMODE}, 1')

def chain_start(a, abort):
    sk = a.newlabel('L_go')
    a(f'''s_cmp_lg_u32 s{sW}, 0
          s_cbranch_scc1 {sk}
          v_mov_b32 v10, 0
          v_mov_b32 v11, 1
          s_mov_b64 exec, 1
          global_atomic_add v10, v11, s[{sDBG}:{sDBG+1}] offset:{4*D_GO}
          s_mov_b64 exec, -1''')
    a.label(sk)
    a(f'''s_lshl_b32 s{sT0}, s{sW}, 11
          s_add_u32 s{sHO}, s{sT0}, {REC_OFF}
          s_add_u32 s{sHO2}, s{sHO}, 1024
          s_cmp_eq_u32 s{sW}, 3
          s_cselect_b32 s{sHO2}, {REC_OFF}, s{sHO2}
          s_mov_b32 s{sS}, 0''')

def mode_offsets(a, off, cfg):
    a(f'''s_mov_b32 s{sT0}, {off}
          s_mov_b32 s{sT1}, {OOB}
          s_cmp_eq_u32 s{sMODE}, 0
          s_cselect_b32 s{sFAST}, s{sT0}, s{sT1}
          s_cselect_b32 s{sSLOW}, s{sT1}, s{sT0}''')

def stamp(a, cfg, k):
    if cfg.get('trace'):
        if k == cfg.get('trstart', 0):
            a.tr_every, a.tr_skip = cfg['trace']; a.tr_cnt = 0; a.tr_n = 0; a.tr_max = 23; a.tr_log.append('--- role')
        if k == 3:
            a.tr_every = 0; a.tr_log.append('END'); a(f's_memtime s[{48+2*a.tr_n}:{49+2*a.tr_n}]')
        return
    if cfg.get('stamps') and k in cfg['stamps']:
        a(f'{"s_memrealtime" if cfg.get("rt") else "s_memtime"} s[{ST0+2*k}:{ST0+1+2*k}]')

def dump_stamps(a, cfg):
    if cfg.get('trace'):
        a(f'''s_waitcnt lgkmcnt(0)
              s_lshl_b32 s{sT0}, s{sROLE}, 2
              s_add_u32 s{sT0}, s{sT0}, s{sW}
              s_lshl_b32 s{sT0}, s{sT0}, 6
              s_add_u32 s{sT0}, s{sT0}, s{sS}
              s_lshl_b32 s{sT0}, s{sT0}, 7
              s_add_u32 s{sT0}, s{sT0}, {DBG_OFF + 0x100000}
              v_mov_b32 v{ACC+24}, 0''')
        for k in range(24): a(f'v_mov_b32 v{ACC+k}, s{48+2*k}')
        for k in range(6): a(f'buffer_store_dwordx4 {vr(ACC+4*k,4)}, v{ACC+24}, {S(sWS)}, s{sT0} offen offset:{16*k}')
        return
    if not cfg.get('stamps'): return
    a(f'''s_waitcnt lgkmcnt(0)
          s_lshl_b32 s{sT0}, s{sROLE}, 2
          s_add_u32 s{sT0}, s{sT0}, s{sW}
          s_lshl_b32 s{sT0}, s{sT0}, 6
          s_add_u32 s{sT0}, s{sT0}, s{sS}
          s_lshl_b32 s{sT0}, s{sT0}, 4
          s_add_u32 s{sT0}, s{sT0}, {DBG_OFF + 0x10000}''')
    for k in range(4): a(f'v_mov_b32 v{MA+24+k}, s{ST0+2*k}')
    a(f'v_mov_b32 v{MA+23}, 0')
    a(f'buffer_store_dwordx4 {vr(MA+24,4)}, v{MA+23}, {S(sWS)}, s{sT0} offen')

def red_sum(a, t, cfg, again, scale=None):
    for _ in range(cfg.get('bpad', 0)): a(f'v_mov_b32 v{vT1}, v{vT1}')
    if not cfg.get('nobar'): a('s_barrier')
    a.label(again)
    for wv in range(4):
        a(f'ds_read_b64 {vr(t+2+2*wv,2)}, v{vSR} offset:{2048*wv}')
        if wv == 0: a(f'v_mov_b32 v{vT1}, v{vT1}')
    warm(a, cfg.get('w3', 2))
    a(f'''s_waitcnt lgkmcnt(2)
          v_pk_add_f32 {vr(t,2)}, {vr(t+2,2)}, {vr(t+4,2)}''')
    if scale: a(f'v_pk_mul_f32 {vr(t,2)}, {vr(t,2)}, {scale}')
    a(f'''s_waitcnt lgkmcnt(0)
          v_pk_add_f32 {vr(t+10,2)}, {vr(t+6,2)}, {vr(t+8,2)}''')
    if scale: a(f'v_pk_fma_f32 {vr(t,2)}, {vr(t+10,2)}, {scale}, {vr(t,2)}')
    else: a(f'v_pk_add_f32 {vr(t,2)}, {vr(t,2)}, {vr(t+10,2)}')

def red_check(a, t, again, abort):
    a('s_add_u32 s70, s70, 1')
    a(f'''v_max3_u32 v{t+10}, v{t+2}, v{t+3}, v{t+4}
          v_max3_u32 v{t+10}, v{t+10}, v{t+5}, v{t+6}
          v_max3_u32 v{t+10}, v{t+10}, v{t+7}, v{t+8}
          v_max_u32 v{t+10}, v{t+10}, v{t+9}
          v_cmp_eq_u32 vcc, -1, v{t+10}
          s_sub_u32 s{sTO}, s{sTO}, 1
          s_cbranch_scc1 {abort}
          s_and_b64 vcc, vcc, s[{sVALID}:{sVALID+1}]
          s_cbranch_scc1 {again}''')

def red_reset(a, t):
    a(f'''v_mov_b32 v{t}, -1
          v_mov_b32 v{t+1}, -1
          s_mov_b64 exec, s[{sVALID}:{sVALID+1}]
          ds_write2st64_b64 v{vSR}, {vr(t,2)}, {vr(t,2)} offset0:0 offset1:4
          ds_write2st64_b64 v{vSR}, {vr(t,2)}, {vr(t,2)} offset0:8 offset1:12
          s_mov_b64 exec, -1''')

def x_dma():
    return [f's_add_u32 m0, s{sLX}, {n*1024 - n*64}\nbuffer_load_dwordx4 v{vX}, {S(sXS)}, s{sXO} offen offset:{n*64} lds' for n in range(7)]

def inv_pack(w):
    m = slot_map(w); return sum(m.index(k) << (4*k) for k in range(7))

def local_a(a, cfg, isS, abort):
    NT = 4 if isS else 3; J0 = 0 if isS else 4
    A0, A1, PK, FA, CF = 0, 32, 64, 96, 120
    vSA, vSB, vRD, vRR, vL16 = 112, 113, 114, 115, 116
    sHd, sKS, sRO, sSL, sWO, sWO2, sINV, sSC = 14, 15, 16, 17, 18, 19, 21, 22
    mark(a, cfg, 10)
    lane_setup(a)
    a(f'''s_load_dwordx2 s[{sR1}:{sR1+1}], s[0:1], 48
          s_load_dwordx2 s[{sR2}:{sR2+1}], s[0:1], 56
          s_mov_b32 s{sR1+2}, 3670016
          s_mov_b32 s{sR1+3}, 0x20000
          s_mov_b32 s{sR2+2}, 3670016
          s_mov_b32 s{sR2+3}, 0x20000
          s_and_b32 s{sHd}, s{sROLE}, 15''')
    sk0 = a.newlabel('L_la0')
    a(f'''s_mul_i32 s{sT0}, s{sXCC}, s{sXCC}
          s_lshl_b32 s{sT0}, s{sT0}, 16
          s_lshl_b32 s{sMODE}, s{sXCC}, 8
          s_add_u32 s{sMODE}, s{sMODE}, s{sT0}
          s_add_u32 s{sMODE}, s{sMODE}, 1
          s_cmp_lg_u32 s{sW}, 0
          s_cbranch_scc1 {sk0}
          v_mov_b32 v6, 0
          v_mov_b32 v7, s{sMODE}
          s_mov_b64 exec, 1
          global_atomic_add v6, v7, s[{sDBG}:{sDBG+1}] offset:{4*D_MODE}
          s_mov_b64 exec, -1''')
    a.label(sk0)
    if not isS:
        a(f'''v_lshrrev_b32 v6, 2, v{L}
              v_lshlrev_b32 v6, 13, v6
              v_and_b32 v7, 3, v{L}
              v_lshl_add_u32 v6, v7, 7, v6
              s_lshl_b32 s{sT1}, s{sHd}, 9
              s_mul_i32 s{sT0}, s{sW}, {112*8192}
              s_add_u32 s{sT0}, s{sT0}, s{sT1}
              s_add_u32 s{sT0}, s{sT0}, {32*8192}
              s_add_u32 s{sT2}, s{sT0}, {16*8192}
              s_lshl_b32 s{sT3}, s{sW}, 17
              s_add_u32 s{sT1}, s{sT1}, s{sT3}
              s_add_u32 s{sT1}, s{sT1}, {32*8192}
              s_waitcnt lgkmcnt(0)
              buffer_load_dword v116, v6, {S(sR2)}, s{sT0} offen
              buffer_load_dword v116, v6, {S(sR2)}, s{sT2} offen''')
        for k in range(cfg.get('vtouch', 4)):
            a(f'buffer_load_dword v116, v6, {S(sR1)}, s{sT1} offen\ns_add_u32 s{sT1}, s{sT1}, {64*8192}')
        a(f'''v_lshlrev_b32 v6, 7, v{L}
              s_mul_i32 s{sT0}, s{sHd}, 3584
              v_min_u32 v6, 3456, v6
              buffer_load_dword v116, v6, {S(sXS)}, s{sT0} offen''')
        v_fill(a, cfg, sHd, sKS)
        wait_dbg(a, D_FLAGS_OK, 1, abort, 10, 11)
        mark(a, cfg, 1)
        return
    frag_src_lane(a, vSB, 8192, 6, 7)
    frag_src_lane(a, vSA, 8192, 6, 7, perm=True)
    frag_read_lane(a, vRD, 6)
    a(f'''v_lshlrev_b32 v{vL16}, 4, v{L}
          s_mul_i32 s{sT0}, s{sW}, {112*8192}
          s_lshl_b32 s{sT1}, s{sHd}, 9
          s_add_u32 s{sT0}, s{sT0}, s{sT1}
          s_add_u32 s{sT0}, s{sT0}, {J0*16*8192}
          s_lshl_b32 s{sT2}, s{sW}, 15
          s_lshr_b32 s{sRO}, s{sW}, 1
          s_lshl_b32 s{sRO}, s{sRO}, 15
          s_and_b32 s{sT3}, s{sW}, 1
          s_lshl_b32 s{sT3}, s{sT3}, 8
          s_add_u32 s{sRO}, s{sRO}, s{sT3}
          s_add_u32 s{sRO}, s{sRO}, s{sT1}
          s_add_u32 s{sRO}, s{sRO}, {0 if isS else 7*32*8192}
          s_lshl_b32 s{sSL}, s{sW}, 12
          s_add_u32 s{sSL}, s{sSL}, {8*16384}
          s_waitcnt lgkmcnt(0)''')
    RS = cfg.get('ring', 4)
    RB = (9 - RS) * 16384
    def rows_q():
        q = [f'''s_add_u32 m0, s{sSL}, {k*1024 - k*64}
                  buffer_load_dwordx4 v{vSA}, {S(sR1)}, s{sRO} offen offset:{k*64} lds''' for k in range(4)]
        wrap = '' if isS else f's_cmp_ge_u32 s{sRO}, 3670016\ns_cselect_b32 s{sT3}, 3670016, 0\ns_sub_u32 s{sRO}, s{sRO}, s{sT3}\n'
        q.append(f'''s_add_u32 s{sRO}, s{sRO}, {32*8192}
              {wrap}              s_add_u32 s{sSL}, s{sSL}, 16384
              s_cmp_ge_u32 s{sSL}, {9*16384}
              s_cselect_b32 s{sT3}, {RS*16384}, 0
              s_sub_u32 s{sSL}, s{sSL}, s{sT3}''')
        return q
    def rows():
        for x in rows_q(): a(x)
    for j in range(NT):
        for ke in range(8):
            a(f'''s_add_u32 m0, s{sT2}, {(j*8+ke)*1024 - ke*64}
                  buffer_load_dwordx4 v{vSB}, {S(sR2)}, s{sT0} offen offset:{ke*64} lds''')
        a(f's_add_u32 s{sT0}, s{sT0}, {16*8192}')
    rows()
    a(f'''v_add_u32 v{vRR}, s{sT2}, v{vRD}
''')
    mark(a, cfg, 11)
    a(f'''v_mov_b32 v117, 0
          global_load_dword v118, v117, s[{sDBG}:{sDBG+1}] offset:{4*D_FLAGS_OK} sc1
          s_waitcnt vmcnt(1)''')
    mark(a, cfg, 1)
    for f in range(NT * 8):
        a(f'ds_read_b128 {vr(CF+4*f,4)}, v{vRR} offset:{f*1024}')
        if f % 8 == 7: a('s_waitcnt lgkmcnt(0)')
    a('s_barrier')
    a(f's_mov_b32 s{sWO2}, {OOB}')
    for k in range(RS - 2):
        rows()
    a(f'''v_add_u32 v{vRR}, {8*16384}, v{vRD}
          s_mov_b32 s{sKS}, 0''')
    if isS:
        a(f'''s_mov_b32 s{sINV}, {inv_pack(0)}
              s_cmp_eq_u32 s{sW}, 1
              s_cselect_b32 s{sINV}, {inv_pack(1)}, s{sINV}
              s_cmp_eq_u32 s{sW}, 2
              s_cselect_b32 s{sINV}, {inv_pack(2)}, s{sINV}
              s_cmp_eq_u32 s{sW}, 3
              s_cselect_b32 s{sINV}, {inv_pack(3)}, s{sINV}
              s_lshl_b32 s{sINV}, s{sINV}, 4
              s_or_b32 s{sINV}, s{sINV}, 7''')
    a(f'''s_mul_i32 s{sWO}, s{sHd}, {WF_MAT}
          s_mul_i32 s{sT1}, s{sW}, {7*14336}
          s_add_u32 s{sWO}, s{sWO}, s{sT1}
          s_mov_b32 s{sWO2}, {OOB}''')
    def pack(acc, hf):
        q = []
        for j in range(NT):
            for mt in range(2):
                d = acc + (j*2+mt)*4; o = PK + 16*hf + 4*j + 2*mt
                q += [f'v_cvt_pk_bf16_f32 v{o}, v{d}, v{d+1}', f'v_cvt_pk_bf16_f32 v{o+1}, v{d+2}, v{d+3}']
        return q
    def block(acc, q):
        def rd(ke, reg): return [f'ds_read_b128 {vr(FA+8*(ke%2)+4*mt,4)}, v{reg} offset:{mt*8192 + (ke%8)*1024}' for mt in range(2)]
        dq = rows_q()
        if cfg.get('nodma'): dq = dq[4:]
        for ke in range(8):
            if ke == 7:
                a(f'''v_add_u32 v{vRR}, 16384, v{vRR}
                      v_add_u32 v{vSB}, {-RS*16384}, v{vRR}
                      v_cmp_le_u32 vcc, {9*16384}, v{vRR}
                      v_cndmask_b32 v{vRR}, v{vRR}, v{vSB}, vcc
                      s_waitcnt vmcnt({4*(RS-2)}) lgkmcnt(0)
                      s_barrier''')
            else: a('s_waitcnt lgkmcnt(0)')
            r = rd(ke + 1, vRR)
            n = 0
            for j in range(NT):
                for mt in range(2):
                    d = vr(acc + (j*2+mt)*4, 4)
                    a(f'v_mfma_f32_16x16x32_bf16 {d}, {vr(FA+8*(ke%2)+4*mt,4)}, {vr(CF+(j*8+ke)*4,4)}, {d if ke else 0}')
                    n += 1
                    if r: a(r.pop(0))
                    elif cfg.get('dstag') and n == 3 and ke < 4:
                        sk = a.newlabel('L_lds')
                        a(f's_cmp_lg_u32 s{sW}, {ke}\ns_cbranch_scc1 {sk}')
                        for x in rows_q(): a(x)
                        a.label(sk); dq = []
                    elif n == 3 and dq and ke < 7: a(dq.pop(0))
                    elif q: a(q.pop(0))
        assert not q and not dq
    def commit():
        end = a.newlabel('L_lce'); lab = [a.newlabel('L_lc') for _ in range(7)]
        a(f's_and_b32 s{sT0}, s{sINV}, 15\ns_lshr_b32 s{sINV}, s{sINV}, 4')
        for i in range(7): a(f's_cmp_eq_u32 s{sT0}, {i}\ns_cbranch_scc1 {lab[i]}')
        a(f's_branch {end}')
        for i in range(7):
            a.label(lab[i])
            for j in range(4):
                for hf in range(2):
                    for r in range(4): a(f'v_accvgpr_write_b32 a{(j*7+i)*8 + 4*hf + r}, v{PK+16*hf+4*j+r}')
            if i < 6: a(f's_branch {end}')
        a.label(end)
    mark(a, cfg, 12)
    for mt in range(2): a(f'ds_read_b128 {vr(FA+4*mt,4)}, v{vRR} offset:{mt*8192}')
    lp = a.newlabel('L_la'); ex = a.newlabel('L_lax'); cm = a.newlabel('L_lcm')
    a.label(lp)
    block(A0, pack(A1, 1))
    a.label(cm)
    if isS: commit()
    a(f's_cmp_ge_u32 s{sKS}, 7\ns_cbranch_scc1 {ex}')
    block(A1, pack(A0, 0))
    a(f'''s_add_u32 s{sKS}, s{sKS}, 1
          s_cmp_lt_u32 s{sKS}, 7
          s_cbranch_scc1 {lp}''')
    for x in pack(A1, 1): a(x)
    a(f's_branch {cm}')
    a.label(ex)
    mark(a, cfg, 2)
    ok = a.newlabel('L_lok')
    a(f'''v_cmp_ne_u32 vcc, 0, v118
          s_cbranch_vccnz {ok}''')
    wait_dbg(a, D_FLAGS_OK, 1, abort, 10, 11)
    a.label(ok)

def v_fill(a, cfg, sHd, sKS):
    a(f'''s_mul_i32 s{sT0}, s{sHd}, {4*REC_STR}
          s_add_u32 s{sT0}, s{sT0}, {REC_OFF}
          v_lshlrev_b32 v6, 4, v{vTID}
          v_mov_b32 v7, {OOB}
          s_cmp_eq_u32 s{sHd}, 0
          s_cselect_b64 vcc, -1, 0
          v_cndmask_b32 v7, v6, v7, vcc
          v_mov_b32 v8, -1
          v_mov_b32 v9, -1
          v_mov_b32 v10, -1
          v_mov_b32 v11, -1
          s_mov_b32 s{sKS}, 0''')
    fl = a.newlabel('L_lf')
    a.label(fl)
    for k in range(7):
        a(f'''buffer_store_dwordx4 v[8:11], v{7 if k < 2 else 6}, {S(sWS)}, s{sT0} offen sc1
              s_add_u32 s{sT0}, s{sT0}, {4096 if k < 6 else REC_STR - 6*4096}''')
    a(f'''v_mov_b32 v7, v6
          s_add_u32 s{sKS}, s{sKS}, 1
          s_cmp_lt_u32 s{sKS}, 4
          s_cbranch_scc1 {fl}''')

def v_mem0(a, cfg):
    nm = a.newlabel('L_lm0')
    a(f'''s_cmp_lg_u32 s{sROLE}, 255
          s_cbranch_scc1 {nm}''')
    srd(a, sR2, 5, 7168)
    a(f'''v_lshlrev_b32 v12, 2, v{vTID}
          v_lshrrev_b32 v13, 3, v{vTID}
          v_lshlrev_b32 v13, 8, v13
          v_and_b32 v14, 1, v{vTID}
          v_lshl_add_u32 v13, v14, 5, v13
          v_bfe_u32 v15, v{vTID}, 1, 2
          v_lshl_add_u32 v13, v15, 2, v13
          v_mov_b32 v7, {OOB}
          v_cmp_gt_u32 vcc, 224, v{vTID}
          v_cndmask_b32 v13, v7, v13, vcc
          v_cndmask_b32 v12, v7, v12, vcc
          s_mov_b32 s{sT0}, {REC_OFF + R_MEMF}''')
    for m in range(8):
        a(f's_mov_b32 s{sT3}, {m*896}\nbuffer_load_dword v{30+m}, v12, {S(sR2)}, s{sT3} offen')
    a('s_waitcnt vmcnt(0)')
    for m in range(8):
        rs = (4*(m//2) + m % 2) * 16
        a(f'''v_min_u32 v{30+m}, -2, v{30+m}
              buffer_store_dword v{30+m}, v13, {S(sWS)}, s{sT0} offen offset:{rs} sc1''')
    a(f'''s_waitcnt vmcnt(0)
          s_barrier
          s_cmp_lg_u32 s{sW}, 0
          s_cbranch_scc1 {nm}
          v_mov_b32 v6, 0
          v_mov_b32 v7, 1
          s_mov_b64 exec, 1
          global_atomic_add v6, v7, s[{sDBG}:{sDBG+1}] offset:{4*D_SENT}
          s_mov_b64 exec, -1''')
    a.label(nm)

def role_S(a, cfg, done):
    local_a(a, cfg, True, done)
    lane_setup(a); common_setup(a)
    a(f'''s_lshl_b32 s{sT2}, s{sROLE}, 6
          s_add_u32 s{sT2}, s{sT2}, {FL_OFF + F_A}''')
    wait_flags(a, f's{sT2}', 7, 1, 1, done, L, 10, sleep=1)
    a('s_barrier')
    mark(a, cfg, 4)
    a(f's_mul_i32 s{sT0}, s{sROLE}, {WF_MAT}')
    load_weights(a, tiles=(4, 5, 6))
    a(f'''s_lshl_b32 s{sT0}, s{sW}, 11
          s_add_u32 s{sT1}, s{sT0}, {L_T}
          v_lshrrev_b32 v6, 3, v{N}
          v_and_b32 v7, 3, v{N}
          v_lshl_add_u32 v6, v6, 2, v7
          v_lshlrev_b32 v{vTW}, 5, v6
          v_lshl_add_u32 v{vTW}, v{G}, 3, v{vTW}
          v_and_b32 v6, 4, v{N}
          v_add_u32 v{vTW}, v6, v{vTW}
          v_add_u32 v{vTW}, s{sT1}, v{vTW}
          v_lshlrev_b32 v{vTR}, 8, v{G}
          v_lshl_add_u32 v{vTR}, v{N}, 3, v{vTR}
          v_add_u32 v{vTR}, s{sT1}, v{vTR}''')
    a(f'''s_mul_i32 s{sT2}, s{sW}, {7*256}
          v_and_b32 v7, 1, v{N}
          v_lshrrev_b32 v6, 1, v{G}
          v_lshlrev_b32 v{vMB}, 8, v6
          v_bfe_u32 v6, v{N}, 1, 2
          v_lshl_add_u32 v6, v6, 2, v7
          v_lshl_add_u32 v{vMB}, v6, 4, v{vMB}
          v_and_b32 v6, 1, v{G}
          v_lshl_add_u32 v{vMB}, v6, 3, v{vMB}
          v_add_u32 v{vMB}, s{sT2}, v{vMB}
          s_add_u32 s{sT1}, s{sT0}, {L_RED}
          v_lshlrev_b32 v6, 9, v{G}
          v_add_u32 v6, s{sT1}, v6
          v_lshl_add_u32 v{vSW}, v{N}, 3, v6
          v_lshl_add_u32 v{vSW2}, v{N}, 2, v6
          v_add_u32 v{vSW2}, 128, v{vSW2}''')
    a(f'''v_and_b32 v8, 8, v5
          v_and_b32 v6, 3, v5
          v_lshl_add_u32 v8, v6, 1, v8
          v_bfe_u32 v6, v5, 2, 1
          v_add_u32 v8, v8, v6
          v_cmp_gt_u32 vcc, 16, v5
          v_cndmask_b32 v8, v5, v8, vcc
          v_mov_b32 v9, 28
          v_cmp_gt_u32 s[{sVALID}:{sVALID+1}], 20, v5
          v_cndmask_b32 v8, v9, v8, s[{sVALID}:{sVALID+1}]''')
    red_read_addr(a, 8)
    a(f'''v_bfe_u32 v7, v5, 3, 1
          v_lshlrev_b32 v7, 8, v7
          v_lshl_add_u32 v7, v6, 5, v7
          s_lshl_b32 s{sT1}, s{sW}, 6
          v_add_u32 v7, s{sT1}, v7
          s_lshl_b32 s{sT1}, s{sW}, 5
          s_add_u32 s{sT1}, s{sT1}, 512
          v_mov_b32 v9, s{sT1}
          v_cndmask_b32 v{vPS}, v9, v7, vcc
          v_lshl_add_u32 v{vPS}, v4, 4, v{vPS}
          v_and_b32 v6, 3, v5
          v_lshl_add_u32 v{vPS}, v6, 2, v{vPS}
          s_mul_i32 s{sT1}, s{sROLE}, 640
          v_add_u32 v{vPS}, s{sT1}, v{vPS}
          v_mov_b32 v8, {OOB}
          v_cndmask_b32 v{vPS}, v8, v{vPS}, s[{sVALID}:{sVALID+1}]''')
    frag_src_lane(a, vX, 1792, 6, 7)
    a(f'''s_lshr_b32 s{sT1}, s{sW}, 1
          s_mul_i32 s{sT1}, s{sT1}, 896
          s_and_b32 s{sT2}, s{sW}, 1
          s_mul_i32 s{sT2}, s{sT2}, 448
          s_add_u32 s{sT1}, s{sT1}, s{sT2}
          v_add_u32 v{vX}, s{sT1}, v{vX}
          s_mul_i32 s{sLX}, s{sW}, 7168
          s_add_u32 s{sLX}, s{sLX}, {L_X}
          s_mul_i32 s{sT1}, s{sW}, 14
          v_add_u32 v6, s{sT1}, v{G}
          v_lshrrev_b32 v7, 2, v6
          v_lshlrev_b32 v{vXR}, 10, v7
          v_lshl_add_u32 v{vXR}, v{N}, 6, v{vXR}
          v_and_b32 v6, 3, v6
          v_lshrrev_b32 v7, 3, v{N}
          v_lshlrev_b32 v7, 1, v7
          v_xor_b32 v6, v6, v7
          v_lshl_add_u32 v{vXR}, v6, 4, v{vXR}
          v_add_u32 v{vXR}, {L_X}, v{vXR}
          v_mov_b32 v12, 0
          v_mov_b32 v13, 0
          v_mov_b32 v14, 0
          v_mov_b32 v15, 0
          v_add_u32 v6, {L_X + 28672}, v{vPOLL}
          ds_write_b128 v6, v[12:15]
          ds_write_b128 v6, v[12:15] offset:32768''')
    a(f'''s_mul_i32 s{sT1}, s{sROLE}, 640
          s_add_u32 s{sT1}, s{sT1}, {REC_STR}
          v_lshlrev_b32 v6, 6, v{L}
          v_add_u32 v{vPF3}, s{sT1}, v6
          s_mul_i32 s{sT1}, s{sROLE}, 448
          s_add_u32 s{sT1}, s{sT1}, {2*REC_STR - R_P - 10*64}
          v_add_u32 v7, s{sT1}, v6
          v_cmp_gt_u32 vcc, 10, v{L}
          v_cndmask_b32 v{vPF3}, v7, v{vPF3}, vcc
          v_cmp_gt_u32 vcc, 17, v{vTID}
          v_cndmask_b32 v{vPF3}, v8, v{vPF3}, vcc
          s_mul_i32 s{sT1}, s{sROLE}, {14*128}
          s_add_u32 s{sT1}, s{sT1}, 28672
          s_mul_i32 s{sT2}, s{sW}, 448
          s_add_u32 s{sT1}, s{sT1}, s{sT2}
          v_add_u32 v{vPF2}, s{sT1}, v6
          v_cmp_gt_u32 vcc, 7, v{L}
          v_cndmask_b32 v{vPF2}, v8, v{vPF2}, vcc''')
    a(f'''v_mov_b32 v6, 0
          ds_write_b32 v{vTW}, v6 offset:{7*256}
          v_mov_b32 v8, 0xf0000000
          v_mov_b32 v9, v8
          v_and_b32 v6, 7, v{L}
          v_lshlrev_b32 v6, 8, v6
          s_add_u32 s{sT1}, s{sT0}, {L_RED + 28*8}
          v_add_u32 v6, s{sT1}, v6
          ds_write_b64 v6, v[8:9]
          s_mov_b32 s{sXO}, 0
          s_mov_b32 s{sTHR}, 0x42200000
          s_mov_b32 s{sYK}, {ASCALE_HEX}
          s_mov_b32 s{sYK+1}, {ASCALE_HEX}
          s_mov_b32 s{sPO}, {REC_OFF + R_P}
          s_lshl_b32 s{sPFY}, s{sROLE}, 15
          s_lshl_b32 s{sT1}, s{sW}, 13
          s_add_u32 s{sPFY}, s{sPFY}, s{sT1}
          s_add_u32 s{sPFY}, s{sPFY}, {YF_OFF + 2*16*32768}''')
    red_reset(a, 12)
    for x in x_dma(): a(x)
    chain_mode(a, cfg, done)
    chain_start(a, done)
    mode_offsets(a, REC_OFF + R_P, cfg)
    a(f'''s_add_u32 s{sMSO}, s{sHO}, {R_MSA}
          s_add_u32 s{sYO}, s{sHO2}, {R_MSA}
          s_cmp_eq_u32 s{sROLE}, 0
          s_cselect_b32 s{sMSO}, s{sMSO}, {OOB}
          s_cmp_eq_u32 s{sROLE}, 1
          s_cselect_b32 s{sYO}, s{sYO}, {OOB}''')
    a('s_barrier')
    mark(a, cfg, 5)
    top = a.newlabel('L_Stop'); slow = a.newlabel('L_Sslow'); back = a.newlabel('L_Sback')
    align(a, cfg.get('salign'))
    a.label(top)
    a(f's_add_u32 s{sXO}, s{sXO}, 28672\ns_xor_b32 s{sLX}, s{sLX}, 0x8000')
    dm = x_dma()
    for f in range(8):
        if cfg.get('dmafirst', 0) and dm: a(dm.pop(0))
        a(f'ds_read_b128 {vr(XB+4*f,4)}, v{vXR} offset:{((f>>1)&1)*14336 + ((f>>2)*2 + (f&1))*1024}')
    a(f'v_xor_b32 v{vXR}, 0x8000, v{vXR}')
    z = [f'v_mov_b32 v{r}, 0' for r in list(range(ACC, ACC + 28)) + list(range(SACC, SACC + 12))]
    for _ in range(cfg.get('zfirst', 40)): a(z.pop(0))
    for x in dm:
        a(x)
        for _ in range(5):
            if z: a(z.pop(0))
    for x in z: a(x)
    a('s_waitcnt lgkmcnt(0)')
    for f in range(8): a(f'v_swap_b32 v{XB+4*f+1}, v{XB+4*f+2}')
    if cfg.get('dmat', 0): a('s_waitcnt vmcnt(0)')
    stamp(a, cfg, 2)
    tail = []
    early = [''] * 8 + [
             f'buffer_load_dword v{vT1}, v{vPF3}, {S(sWS)}, s{sPO} offen sc1', '',
             f'buffer_load_dword v{vT1}, v{vPF2}, {S(sXS)}, s{sXO} offen', f'v_lshlrev_b32 v{vT0}, {cfg.get("ysh", 3)}, v{vPOLL}\nv_min_u32 v{vT0}, {cfg.get("ymax", 6016)}, v{vT0}',
             f'buffer_load_dword v{vT1}, v{vT0}, {S(sWS)}, s{sPFY} offen sc1']
    if cfg.get('t64', 0): early += ['', '', '', f'buffer_load_dword v{vT1}, v{vT0}, {S(sWS)}, s{sPFY} offen offset:64 sc1']
    if cfg.get('noyt'): early = early[:12]
    if cfg.get('pub', 'Searly') == 'Searly':
        early[2] = f'buffer_store_dwordx4 {vr(MA,4)}, v{vPOLL}, {S(sWS)}, s{sMSO} offen sc1'
        early[4] = f'buffer_store_dwordx4 {vr(MA+4,4)}, v{vPOLL}, {S(sWS)}, s{sYO} offen sc1'
    def mbread(d, aa):
        return [f'ds_read2_b64 {vr(d,4)}, v{vMB} offset0:{128*aa} offset1:{128*aa+4}', f'ds_read2_b64 {vr(d+4,4)}, v{vMB} offset0:{128*aa+64} offset1:{128*aa+68}']
    def s_step(aa, TA, MBr):
        return [f'v_smfmac_f32_16x16x64_bf16 {vr(SACC,4)}, {vr(TA,4)}, {vr(XB+aa*16,8)}, v{vIDX}',
                f'v_smfmac_f32_16x16x64_bf16 {vr(SACC+4,4)}, {vr(TA,4)}, {vr(XB+aa*16+8,8)}, v{vIDX}',
                f'v_smfmac_f32_16x16x64_bf16 {vr(SACC+8,4)}, {vr(TA,4)}, {vr(MBr,8)}, v{vIDX}']
    def trread(aa, d):
        return [f'ds_read_b64_tr_b16 {vr(d,2)}, v{vTR} offset:{aa*1024}', f'ds_read_b64_tr_b16 {vr(d+2,2)}, v{vTR} offset:{aa*1024+128}']
    extra = {2: mbread(ACC, 0), 4: mbread(ACC + 8, 1), 5: trread(0, ACC + 16)}
    stage1(a, early, extra, cfg, cfg.get('sdepth', 2), done, cfg.get('pw', 0), skip=cfg.get('fakeE', ()))
    stamp(a, cfg, 1)
    s0 = s_step(0, ACC + 16, ACC)
    a('s_waitcnt lgkmcnt(1)')
    a(s0[0]); a(s0[1])
    for x in post_ops(6): a(x)
    for x in trread(1, ACC + 20): a(x)
    a(s0[2])
    pub = f'''buffer_store_dwordx4 {vr(MA,4)}, v{vPOLL}, {S(sWS)}, s{sMSO} offen sc1
          buffer_store_dwordx4 {vr(MA+4,4)}, v{vPOLL}, {S(sWS)}, s{sYO} offen sc1'''
    if cfg.get('pub', 'Searly') == 'Smid': a(pub)
    else: warm(a, cfg.get('w1', 2))
    a('s_waitcnt lgkmcnt(0)')
    s1 = s_step(1, ACC + 20, ACC + 8)
    a(s1[2]); a(s1[0]); a(s1[1])
    d = SACC; t = ACC
    a(f'''v_add_f32 v{d+8}, v{d+8}, v{d+10}
          v_add_f32 v{d+9}, v{d+9}, v{d+11}
          ds_write2_b32 v{vSW2}, v{d+8}, v{d+9} offset0:0 offset1:64
          v_add_f32 v{t}, v{d}, v{d+2}
          v_add_f32 v{t+2}, v{d+1}, v{d+3}
          v_add_f32 v{t+1}, v{d+4}, v{d+6}
          v_add_f32 v{t+3}, v{d+5}, v{d+7}
          ds_write2_b64 v{vSW}, {vr(t,2)}, {vr(t+2,2)} offset0:0 offset1:32''')
    t = ACC + 4; e = t + 12
    again = a.newlabel('L_Sagain')
    red_sum(a, t, cfg, again, f's[{sYK}:{sYK+1}]')
    a(f'''v_exp_f32 v{e}, v{t}
          v_exp_f32 v{e+1}, v{t+1}
          v_add_f32 v{e+4}, |v{t}|, |v{t+1}|
          v_add_f32 v{e+2}, v{e}, v{e+1}
          v_cmp_nge_f32 vcc, s{sTHR}, v{e+4}''')
    def butterfly(op, r, tmp, mid=None):
        for k, m in enumerate(('quad_perm:[1,0,3,2]', 'quad_perm:[2,3,0,1]', 'row_half_mirror', 'row_mirror')):
            a.I(f'{op}_dpp v{r}, v{r}, v{r} {m} row_mask:0xf bank_mask:0xf')
            if k == 2 and mid: a(mid)
        a(f'v_mov_b32 v{tmp}, v{r}')
        a(f'v_permlane16_swap_b32 v{r}, v{tmp}')
        a(f'{op} v{r}, v{r}, v{tmp}')
    butterfly('v_add_f32', e + 2, e + 3, f's_and_b64 vcc, vcc, s[{sVALID}:{sVALID+1}]\ns_cbranch_scc1 {slow}')
    a.label(back)
    a(f'''v_rcp_f32 v{e+2}, v{e+2}
          v_mul_f32 v{e}, v{e}, v{e+2}
          v_mul_f32 v{e+1}, v{e+1}, v{e+2}
          v_cvt_pk_bf16_f32 v{e}, |v{e}|, |v{e+1}|
          buffer_store_dword v{e}, v{vPS}, {S(sWS)}, s{sFAST} offen
          buffer_store_dword v{e}, v{vPS}, {S(sWS)}, s{sSLOW} offen sc1''')
    stamp(a, cfg, 3)
    red_reset(a, t)
    if cfg.get('sbar', 1): a('s_barrier')
    dump_stamps(a, cfg)
    a(f'''s_add_u32 s{sHO}, s{sHO}, {REC_STR}
          s_add_u32 s{sHO2}, s{sHO2}, {REC_STR}
          s_add_u32 s{sPO}, s{sPO}, {REC_STR}
          s_add_u32 s{sFAST}, s{sFAST}, {REC_STR}
          s_add_u32 s{sSLOW}, s{sSLOW}, {REC_STR}
          s_add_u32 s{sMSO}, s{sMSO}, {REC_STR}
          s_add_u32 s{sYO}, s{sYO}, {REC_STR}
          s_add_u32 s{sPFY}, s{sPFY}, {16*32768}
          s_add_u32 s{sS}, s{sS}, 1
          s_cmp_lt_u32 s{sS}, 63
          s_cbranch_scc1 {top}
          s_cmp_ge_u32 s{sROLE}, 2
          s_cbranch_scc1 {done}''')
    poll_sent(a, [f'buffer_load_dwordx4 {vr(MA,4)}, v{vPOLL}, {S(sWS)}, s{sHO} offen sc1',
                  f'buffer_load_dwordx4 {vr(MA+4,4)}, v{vPOLL}, {S(sWS)}, s{sHO2} offen sc1'], range(MA, MA+8), done, MA+8, sleep=0)
    a(pub)
    a(f's_branch {done}')
    a.label(slow)
    red_check(a, t, again, done)
    a(f'v_max_f32 v{e+2}, v{t}, v{t+1}')
    butterfly('v_max_f32', e + 2, e + 3)
    a(f'''v_sub_f32 v{t}, v{t}, v{e+2}
          v_sub_f32 v{t+1}, v{t+1}, v{e+2}
          v_exp_f32 v{e}, v{t}
          v_exp_f32 v{e+1}, v{t+1}
          v_add_f32 v{e+2}, v{e}, v{e+1}''')
    butterfly('v_add_f32', e + 2, e + 3)
    a(f's_branch {back}')
    for f in tail: f()

def role_V(a, cfg, done):
    vUW, vUR, vPP, vPP2, vMS, vMN, vOUT, vFY, vFO = vTW, vTR, vMB, vSW2, vPS, vX, vX2, vPF3, vPF2
    local_a(a, cfg, False, done)
    sk = a.newlabel('L_vs')
    a(f'''s_waitcnt vmcnt(0)
          s_barrier
          s_cmp_lg_u32 s{sW}, 0
          s_cbranch_scc1 {sk}
          v_mov_b32 v6, 0
          v_mov_b32 v7, 1
          s_mov_b64 exec, 1
          global_atomic_add v6, v7, s[{sDBG}:{sDBG+1}] offset:{4*D_SENT}
          s_mov_b64 exec, -1''')
    a.label(sk)
    mark(a, cfg, 6)
    lane_setup(a); common_setup(a)
    a(f'''s_lshl_b32 s{sT0}, s{sW}, 11
          s_add_u32 s{sT1}, s{sT0}, {L_T}
          v_lshlrev_b32 v{vUW}, 4, v{N}
          v_lshl_add_u32 v{vUW}, v{G}, 2, v{vUW}
          v_add_u32 v{vUW}, s{sT1}, v{vUW}
          v_mul_u32_u24 v{vUR}, 448, v{G}
          v_lshl_add_u32 v{vUR}, v{N}, 4, v{vUR}
          v_add_u32 v{vUR}, s{sT1}, v{vUR}
          s_mul_i32 s{sT1}, s{sW}, 2560
          v_mul_u32_u24 v6, 640, v{G}
          v_add_u32 v6, s{sT1}, v6
          v_lshl_add_u32 v{vPP}, v{N}, 4, v6
          v_lshrrev_b32 v7, 2, v{N}
          v_and_b32 v9, 1, v{N}
          v_lshl_add_u32 v7, v7, 1, v9
          v_lshl_add_u32 v{vPP2}, v7, 4, v6
          v_mov_b32 v8, {OOB}
          v_and_b32 v9, 2, v{N}
          v_cmp_eq_u32 vcc, 0, v9
          v_cndmask_b32 v{vPP2}, v8, v{vPP2}, vcc''')
    a(f'''s_add_u32 s{sT1}, s{sT0}, {L_RED}
          v_lshlrev_b32 v6, 9, v{G}
          v_add_u32 v6, s{sT1}, v6
          v_add_u32 v7, 20, v{N}
          v_cmp_gt_u32 vcc, 14, v{N}
          v_cndmask_b32 v7, v7, v{N}, vcc
          v_lshl_add_u32 v{vSW}, v7, 2, v6''')
    red_read_addr(a, N)
    a(f'''s_sub_u32 s{sT1}, s{sROLE}, 16
          s_mul_i32 s{sT2}, s{sT1}, 28
          v_lshlrev_b32 v6, 1, v5
          v_add_u32 v6, s{sT2}, v6
          v_lshrrev_b32 v7, 4, v6
          v_lshlrev_b32 v{vMS}, 8, v7
          v_and_b32 v9, 2, v6
          v_add_u32 v7, v9, v4
          v_lshl_add_u32 v{vMS}, v7, 4, v{vMS}
          v_and_b32 v7, 12, v6
          v_add_u32 v{vMS}, v7, v{vMS}
          s_lshl_b32 s{sT2}, s{sW}, 6
          v_add_u32 v{vMS}, s{sT2}, v{vMS}
          v_cmp_gt_u32 vcc, 14, v5
          v_cndmask_b32 v{vMS}, v8, v{vMS}, vcc
          s_mov_b64 s[{sVALID}:{sVALID+1}], vcc
          s_lshl_b32 s{sYO}, s{sT1}, 15
          s_lshl_b32 s{sT2}, s{sW}, 13
          s_add_u32 s{sYO}, s{sYO}, s{sT2}
          s_add_u32 s{sYO}, s{sYO}, {YF_OFF}
          s_add_u32 s{sYO2}, s{sYO}, 4096
          s_mov_b32 s{sPO}, {REC_OFF + R_P}
          s_mov_b32 s{sMSO}, {OOB}
          s_lshl_b32 s{sFY}, s{sT1}, 2
          s_add_u32 s{sFY}, s{sFY}, s{sW}
          s_lshl_b32 s{sFY}, s{sFY}, 5
          s_add_u32 s{sFY}, s{sFY}, {FL_OFF + F_Y}
          v_and_b32 v{vFO}, 7, v{L}
          v_lshlrev_b32 v{vFO}, 2, v{vFO}
          v_mov_b32 v{vFY}, 0
          s_mov_b32 s{sYK}, 0''')
    red_reset(a, 12)
    wait_flags(a, FL_OFF + F_B, 56, 4, 1, done, L, 10, sleep=1)
    mark(a, cfg, 4)
    a(f's_mul_i32 s{sT0}, s{sROLE}, {WF_MAT}')
    load_weights(a)
    chain_mode(a, cfg, done)
    chain_start(a, done)
    mode_offsets(a, REC_OFF + REC_STR + R_MEMF, cfg)
    a(f'''s_add_u32 s{sPFY}, s{sHO}, {R_MSA}
          s_add_u32 s{sLX}, s{sHO2}, {R_MSA}
          s_cmp_eq_u32 s{sROLE}, 16
          s_cselect_b32 s{sPFY}, s{sPFY}, {OOB}
          s_cmp_eq_u32 s{sROLE}, 17
          s_cselect_b32 s{sLX}, s{sLX}, {OOB}''')
    mark(a, cfg, 5)
    top = a.newlabel('L_Vtop'); yok = a.newlabel('L_Vyok'); ychk = a.newlabel('L_Vychk')
    align(a, cfg.get('valign'))
    a.label(top)
    zero_acc(a, range(ACC, ACC + 28))
    a(f'''s_cmp_lt_u32 s{sS}, s{sYK}
          s_cbranch_scc0 {ychk}''')
    a.label(yok)
    early = []; tail = []
    for f in (7, 6, 5, 4, 3, 2, 1, 0):
        early.append(f'buffer_load_dwordx4 {vr(XB+4*f,4)}, v{vPOLL}, {S(sWS)}, s{sYO if f<4 else sYO2} offen offset:{(f%4)*1024} sc1')
    if cfg.get('noy'): early = []
    if cfg.get('pub', 'Searly') == 'V':
        early = [f'buffer_store_dwordx4 {vr(MA,4)}, v{vPOLL}, {S(sWS)}, s{sPFY} offen sc1',
                 f'buffer_store_dwordx4 {vr(MA+4,4)}, v{vPOLL}, {S(sWS)}, s{sLX} offen sc1'] + early
    early += [f's_add_u32 s{sT0}, s{sS}, 3\ns_cmp_ge_u32 s{sT0}, s{sYK}\ns_cselect_b32 s{sT0}, s{sFY}, {OOB}\nbuffer_load_dword v{vFY}, v{vFO}, {S(sWS)}, s{sT0} offen sc1']
    stage1(a, [''] * cfg.get('ydelay', 0) + early, {}, cfg, cfg.get('vdepth', 1), done, cfg.get('vmw', 8))
    for x in post_ops(6): a(x)
    a(f'''ds_read_b128 {vr(SACC,4)}, v{vUR}
          ds_read_b128 {vr(SACC+4,4)}, v{vUR} offset:224''')
    PA = MA + 8
    pl = [f'buffer_load_dwordx4 {vr(PA,4)}, v{vPP2}, {S(sWS)}, s{sPO} offen offset:512 sc1',
          f'buffer_load_dwordx4 {vr(PA+4,4)}, v{vPP}, {S(sWS)}, s{sPO} offen sc1',
          f'buffer_load_dwordx4 {vr(PA+8,4)}, v{vPP}, {S(sWS)}, s{sPO} offen offset:256 sc1']
    a('s_waitcnt lgkmcnt(0)')
    lp = a.newlabel('L_pp'); rt = a.newlabel('L_pretry')
    a(f's_mov_b32 s{sTO}, 0x40000')
    for x in pl: a(x)
    warm(a, cfg.get('stag', 6))
    a.label(lp)
    for x in pl: a(x)
    a(f'''s_sub_u32 s{sTO}, s{sTO}, 1
          s_cbranch_scc1 {done}''')
    warm(a, cfg.get('vpw', 0))
    d = ACC
    mf = [f'v_mfma_f32_16x16x32_bf16 {vr(d+4*nt,4)}, {vr(PA,4)}, {vr(SACC+4*nt,4)}, 0' for nt in range(2)]
    for i in range(2):
        mf += [f'v_smfmac_f32_16x16x64_bf16 {vr(d+4*nt,4)}, {vr(PA+4+4*i,4)}, {vr(XB+(i*2+nt)*8,8)}, v{vIDX}' for nt in range(2)]
    a(f'''s_waitcnt vmcnt(5)
          v_max3_u32 v{vT0}, v{PA}, v{PA+1}, v{PA+2}
          v_max_u32 v{vT0}, v{vT0}, v{PA+3}''')
    stamp(a, cfg, 2)
    for i in range(2):
        r = PA + 4 + 4*i
        a(f'''s_waitcnt vmcnt({4-i})
              v_max3_u32 v{vT0}, v{vT0}, v{r}, v{r+1}
              v_max3_u32 v{vT0}, v{vT0}, v{r+2}, v{r+3}''')
    a(f'v_cmp_eq_u32 vcc, -1, v{vT0}')
    a(mf[0]); a(mf[1])
    a(f's_cbranch_vccnz {lp}')
    stamp(a, cfg, 1)
    for x in mf[2:]: a(x)
    a(f'''v_add_f32 v{d}, v{d}, v{d+2}
          v_add_f32 v{d+1}, v{d+1}, v{d+3}
          ds_write2_b32 v{vSW}, v{d}, v{d+1} offset0:0 offset1:64
          v_add_f32 v{d+4}, v{d+4}, v{d+6}
          v_add_f32 v{d+5}, v{d+5}, v{d+7}
          ds_write2_b32 v{vSW}, v{d+4}, v{d+5} offset0:14 offset1:78''')
    t = ACC + 8
    again = a.newlabel('L_Vagain'); chk = a.newlabel('L_Vchk'); go = a.newlabel('L_Vgo')
    red_sum(a, t, cfg, again)
    st = f'''buffer_store_dword v{vOUT}, v{vMS}, {S(sWS)}, s{sFAST} offen
          buffer_store_dword v{vOUT}, v{vMS}, {S(sWS)}, s{sSLOW} offen sc1'''
    a(f'''v_cmp_o_f32 vcc, v{t}, v{t+1}
          v_cvt_pk_bf16_f32 v{vOUT}, v{t}, v{t+1}
          v_cndmask_b32 v{vOUT}, -1, v{vOUT}, vcc''')
    a(st)
    a(f'''s_andn2_b64 vcc, s[{sVALID}:{sVALID+1}], vcc
          s_cbranch_scc1 {chk}''')
    a.label(go)
    if cfg.get('vyt', 1):
        a(f'''v_lshlrev_b32 v{vT0}, 3, v{vPOLL}
              v_max_u32 v{vT0}, {cfg.get("ymax", 6016) + 128}, v{vT0}
              s_add_u32 s{sT0}, s{sYO}, {cfg.get('vya', 2)*16*32768}
              s_barrier
              buffer_load_dword v{vT1}, v{vT0}, {S(sWS)}, s{sT0} offen sc1''')
    def vchk():
        a.label(chk)
        a('s_waitcnt vmcnt(0)')
        red_check(a, t, again, done)
        a(f'''v_cvt_pk_bf16_f32 v{vOUT}, v{t}, v{t+1}
              v_min_u32 v{vOUT}, -2, v{vOUT}''')
        a(st)
        a(f's_branch {go}')
    tail.append(vchk)
    stamp(a, cfg, 3)
    red_reset(a, t)
    dump_stamps(a, cfg)
    a(f'''s_add_u32 s{sHO}, s{sHO}, {REC_STR}
          s_add_u32 s{sHO2}, s{sHO2}, {REC_STR}
          s_add_u32 s{sPO}, s{sPO}, {REC_STR}
          s_add_u32 s{sFAST}, s{sFAST}, {REC_STR}
          s_add_u32 s{sSLOW}, s{sSLOW}, {REC_STR}
          s_add_u32 s{sYO}, s{sYO}, {16*32768}
          s_add_u32 s{sYO2}, s{sYO2}, {16*32768}
          s_add_u32 s{sMSO}, s{sPO}, {R_MSA - R_P}
          s_add_u32 s{sPFY}, s{sPFY}, {REC_STR}
          s_add_u32 s{sLX}, s{sLX}, {REC_STR}
          s_add_u32 s{sS}, s{sS}, 1
          s_cmp_lt_u32 s{sS}, 63
          s_cbranch_scc1 {top}
          s_branch {done}''')
    a.label(ychk)
    a(f's_mov_b32 s{sTO}, 0x20000')
    yl = a.newlabel('L_Vyl')
    a.label(yl)
    a(f's_mov_b32 s{sYK}, 1000')
    for r in range(NRO):
        a(f'''v_readlane_b32 s{sT0}, v{vFY}, {r}
              s_mul_i32 s{sT0}, s{sT0}, {NRO}
              s_add_u32 s{sT0}, s{sT0}, {r}
              s_min_u32 s{sYK}, s{sYK}, s{sT0}''')
    a(f'''s_cmp_lt_u32 s{sS}, s{sYK}
          s_cbranch_scc1 {yok}
          buffer_load_dword v{vFY}, v{vFO}, {S(sWS)}, s{sFY} offen sc1
          s_waitcnt vmcnt(0)
          s_sub_u32 s{sTO}, s{sTO}, 1
          s_cbranch_scc0 {yl}
          s_branch {done}''')
    for f in tail: f()
```

```python
from common import *
import chain
from chain import load_weights, idx_setup, vIDX, vPOLL, vTW

L_XS = 0
sSEG = 14; sXO = 15; sLB = 16; sC = 17; sR = 18; sCNT = 19; sA = 21; sB = 22; sB2 = 23; sD = 28; sE = 29; sF = 30; sGt = 31

def xs_setup(a, vXS, vXR):
    frag_src_lane(a, vXS, 1792, 6, 7)
    frag_read_lane(a, vXR, 6)
    a(f'''s_lshr_b32 s{sT0}, s{sW}, 1
          s_mul_i32 s{sT0}, s{sT0}, 896
          s_and_b32 s{sT1}, s{sW}, 1
          s_mul_i32 s{sT1}, s{sT1}, 448
          s_add_u32 s{sT0}, s{sT0}, s{sT1}
          v_add_u32 v{vXS}, s{sT0}, v{vXS}
          s_mul_i32 s{sLB}, s{sW}, 7168''')

def xs_dma(a, vXS, segreg):
    a(f's_mul_i32 s{sXO}, s{segreg}, 28672')
    for n in range(7):
        a(f'''s_add_u32 m0, s{sLB}, {n*1024 - n*64}
              buffer_load_dwordx4 v{vXS}, {S(sXS)}, s{sXO} offen offset:{n*64} lds''')

def dense(a, ACC, XF, vXR, w_is_A, mid=None):
    def rd(kk): return [f'ds_read_b128 {vr(XF+8*(kk%2)+4*mt,4)}, v{vXR} offset:{(mt*14+kk)*1024}' for mt in range(2)]
    for x in rd(0): a(x)
    for kk in range(14):
        q = rd(kk + 1) if kk < 13 else []
        a('s_waitcnt lgkmcnt(0)')
        for j in range(7):
            for mt in range(2):
                d = vr(ACC + 28*mt + 4*j, 4); xf = vr(XF + 8*(kk%2) + 4*mt, 4); wf = wreg(j, kk//2, 4, kk%2)
                A, B = (wf, xf) if w_is_A else (xf, wf)
                a(f'v_mfma_f32_16x16x32_bf16 {d}, {A}, {B}, {d if kk else 0}')
                if q and j >= 1: a(q.pop(0))
        if mid and kk == 8: mid()

def role_O(a, cfg, done):
    ACC, XF, PK, vAD = 0, 56, 72, 80
    vXS, vXR, vZ, vUR, vPX, vPM, vG, vO1, vO2, vRW, vT = 102, 103, 104, 105, 107, 108, 109, 110, 111, 112, 114
    L_WO = 65536; L_U = 98304; L_R = 106496
    lane_setup(a); idx_setup(a)
    a(f'''s_sub_u32 s{sT0}, s{sROLE}, 32
          s_mul_i32 s{sC}, s{sT0}, 10923
          s_lshr_b32 s{sC}, s{sC}, 16
          s_mul_i32 s{sT1}, s{sC}, {NRO}
          s_sub_u32 s{sR}, s{sT0}, s{sT1}
          v_mov_b32 v{vZ}, 0''')
    xs_setup(a, vXS, vXR)
    a(f's_mov_b32 s{sSEG}, s{sR}')
    xs_dma(a, vXS, sSEG)
    a(f'''v_lshrrev_b32 v10, 1, v{G}
          v_lshlrev_b32 v10, 12, v10
          v_and_b32 v11, 1, v{G}
          v_lshl_add_u32 v10, v11, 8, v10''')
    for j in range(7):
        a(f'''v_add_u32 v6, {16*j}, v{N}
              v_mul_u32_u24 v7, 4682, v6
              v_lshrrev_b32 v7, 16, v7
              v_mul_u32_u24 v8, 14, v7
              v_sub_u32 v6, v6, v8
              v_lshl_add_u32 v6, v6, 4, v10
              v_and_b32 v8, 1, v7
              v_lshl_add_u32 v6, v8, 11, v6
              v_bfe_u32 v8, v7, 1, 1
              v_lshl_add_u32 v6, v8, 9, v6
              v_lshrrev_b32 v8, 2, v7
              v_lshl_add_u32 v{vAD+j}, v8, 10, v6''')
    a(f'v_mov_b32 v8, {OOB}')
    a(f'''s_lshl_b32 s{sT0}, s{sW}, 11
          s_add_u32 s{sT0}, s{sT0}, {L_U}
          v_lshlrev_b32 v{vTW}, 4, v{N}
          v_lshl_add_u32 v{vTW}, v{G}, 2, v{vTW}
          v_add_u32 v{vTW}, s{sT0}, v{vTW}
          v_mul_u32_u24 v{vUR}, 448, v{G}
          v_lshl_add_u32 v{vUR}, v{N}, 4, v{vUR}
          v_add_u32 v{vUR}, s{sT0}, v{vUR}
          s_mul_i32 s{sT0}, s{sW}, 10240
          v_lshrrev_b32 v6, 1, v{G}
          v_mul_u32_u24 v{vPX}, 2560, v6
          v_lshl_add_u32 v{vPX}, v11, 8, v{vPX}
          v_lshl_add_u32 v{vPX}, v{N}, 4, v{vPX}
          v_add_u32 v{vPX}, s{sT0}, v{vPX}
          v_mul_u32_u24 v{vPM}, 2560, v{G}
          v_lshl_add_u32 v{vPM}, v{N}, 4, v{vPM}
          v_add_u32 v{vPM}, s{sT0}, v{vPM}
          v_lshlrev_b32 v{vG}, 3, v{N}
          v_mul_u32_u24 v6, 1792, v{N}
          v_lshl_add_u32 v6, v{G}, 3, v6
          s_lshr_b32 s{sT0}, s{sW}, 1
          s_mul_i32 s{sT0}, s{sT0}, 896
          s_and_b32 s{sT1}, s{sW}, 1
          s_mul_i32 s{sT1}, s{sT1}, 28
          s_add_u32 s{sT0}, s{sT0}, s{sT1}
          s_mul_i32 s{sT1}, s{sC}, 56
          s_add_u32 s{sT0}, s{sT0}, s{sT1}
          v_add_u32 v6, s{sT0}, v6
          v_cmp_gt_u32 vcc, 3, v{G}
          v_cndmask_b32 v{vO1}, v8, v6, vcc
          v_cndmask_b32 v{vO2}, v6, v8, vcc
          v_add_u32 v{vRW}, {L_R}, v{vPOLL}
          v_mov_b32 v{vT+5}, v{L}''')
    wait_dbg(a, D_FLAGS_OK, 1, done, 10, 11)
    wait_flags_w0(a, FL_OFF + F_B, 56, 4, 1, done, L, 10, sleep=cfg.get('fbs', 4))
    mark(a, cfg, 4)
    a(f'''s_add_u32 s{sT0}, s{sC}, 16
          s_mul_i32 s{sT0}, s{sT0}, {WF_MAT}''')
    load_weights(a, rot=False, start=f's{sR}')
    a(f'''s_lshl_b32 s{sF}, s{sC}, 2
          s_add_u32 s{sF}, s{sF}, s{sW}
          s_lshl_b32 s{sE}, s{sF}, 13
          s_add_u32 s{sE}, s{sE}, {YF_OFF}
          s_lshl_b32 s{sF}, s{sF}, 5
          s_lshl_b32 s{sT0}, s{sR}, 2
          s_add_u32 s{sF}, s{sF}, s{sT0}
          s_add_u32 s{sF}, s{sF}, {FL_OFF + F_Y}
          s_mov_b32 s{sCNT}, 0
          s_waitcnt vmcnt(0)''')
    mark(a, cfg, 5)
    top = a.newlabel('L_O1')
    a.label(top)
    a(f'''s_waitcnt vmcnt(7)
          s_barrier
          s_xor_b32 s{sLB}, s{sLB}, 0x8000
          s_add_u32 s{sD}, s{sSEG}, {NRO}''')
    xs_dma(a, vXS, sD)
    def flagprev():
        a(f'''s_waitcnt vmcnt(7)
              v_mov_b32 v{PK}, s{sCNT}
              s_mov_b64 exec, 1
              buffer_store_dword v{PK}, v{vZ}, {S(sWS)}, s{sF} offen sc1
              s_mov_b64 exec, -1''')
    dense(a, ACC, XF, vXR, False, flagprev)
    a(f'''v_xor_b32 v{vXR}, 0x8000, v{vXR}
          s_lshl_b32 s{sT0}, s{sSEG}, 19
          s_add_u32 s{sT0}, s{sT0}, s{sE}''')
    for j in range(7):
        p = PK + 4*(j%2)
        for r in range(4): a(f'v_cvt_pk_bf16_f32 v{p+r}, v{ACC+4*j+r}, v{ACC+28+4*j+r}')
        a(f'buffer_store_dwordx4 {vr(p,4)}, v{vAD+j}, {S(sWS)}, s{sT0} offen sc1')
    ng = a.newlabel('L_Ong')
    a(f'''s_add_u32 s{sCNT}, s{sCNT}, 1
          s_cmp_lg_u32 s{sCNT}, 1
          s_cbranch_scc1 {ng}
          s_waitcnt vmcnt(0)
          v_mov_b32 v{PK}, s{sCNT}
          s_mov_b64 exec, 1
          buffer_store_dword v{PK}, v{vZ}, {S(sWS)}, s{sF} offen sc1
          s_mov_b64 exec, -1''')
    gate_go(a, cfg, done, 10, 11)
    a.label(ng)
    a(f'''s_mov_b32 s{sSEG}, s{sD}
          s_cmp_lt_u32 s{sSEG}, 64
          s_cbranch_scc1 {top}
          s_waitcnt vmcnt(0)
          v_mov_b32 v{PK}, s{sCNT}
          s_mov_b64 exec, 1
          buffer_store_dword v{PK}, v{vZ}, {S(sWS)}, s{sF} offen sc1
          s_mov_b64 exec, -1''')
    mark(a, cfg, 6)
    a(f'v_and_b32 v{N}, 15, v{vT+5}\nv_lshrrev_b32 v{G}, 4, v{vT+5}')
    srd(a, sR1, 3, 401408)
    a(f'''v_mul_u32_u24 v6, 3584, v{G}
          v_lshl_add_u32 v6, v{N}, 1, v6
          v_mov_b32 v8, {OOB}
          v_cmp_gt_u32 vcc, 3, v{G}
          v_cndmask_b32 v7, v8, v6, vcc
          s_mul_i32 s{sT0}, s{sW}, {112*896}
          s_mul_i32 s{sT1}, s{sC}, 56
          s_add_u32 s{sT0}, s{sT0}, s{sT1}
          s_lshl_b32 s{sA}, s{sW}, 13
          s_add_u32 s{sA}, s{sA}, {L_WO}
          v_add_u32 v9, s{sA}, v{vPOLL}''')
    for hs in range(4):
        for half in range(2):
            a(f's_add_u32 s{sT1}, s{sT0}, {(28*hs + 16*half)*896}')
            for nt in range(2):
                for r in range(4):
                    d = 24 + (nt*4+hs)*4 + 2*half + r//2
                    a(f'buffer_load_ushort v{d + (32 if r%2 else 0)}, v{7 if half else 6}, {S(sR1)}, s{sT1} offen offset:{r*896 + nt*28}')
        if hs == 1: a('s_waitcnt vmcnt(0)')
    a('s_waitcnt vmcnt(0)')
    for k in range(32): a(f'v_lshl_or_b32 v{24+k}, v{56+k}, 16, v{24+k}')
    for f in range(8): a(f'ds_write_b128 v9, {vr(24+4*f,4)} offset:{f*1024}')
    srd(a, sR1, 12, 1835008)
    wait_dbg(a, D_SENT, 16, done, 10, 11)
    wait_dbg(a, D_SENT2, 64, done, 10, 11)
    a(f's_mov_b32 s{sSEG}, s{sR}')
    MA, TA, PF, AC2, Y, U, GG = 0, 28, 0, 40, 56, 88, 96
    top = a.newlabel('L_O2')
    a.label(top)
    a(f'''s_lshr_b32 s{sT0}, s{sSEG}, 2
          s_lshl_b32 s{sT0}, s{sT0}, 6
          s_add_u32 s{sA}, s{sT0}, {FL_OFF + F_O}
          s_and_b32 s{sB}, s{sSEG}, 3
          s_add_u32 s{sB}, s{sB}, 1''')
    wait_flags(a, f's{sA}', 16, 1, f's{sB}', done, vT+5, vT, sleep=8)
    a(f'''s_lshl_b32 s{sA}, s{sSEG}, 15
          s_lshl_b32 s{sT0}, s{sW}, 13
          s_add_u32 s{sA}, s{sA}, s{sT0}
          s_add_u32 s{sA}, s{sA}, {OA_OFF}
          s_add_u32 s{sB}, s{sA}, 4096
          s_lshl_b32 s{sGt}, s{sSEG}, 7
          s_add_u32 s{sGt}, s{sGt}, {G_OFF}
          s_lshl_b32 s{sT0}, s{sW}, 13
          s_add_u32 s{sT0}, s{sT0}, {L_WO}
          v_add_u32 v{vT}, s{sT0}, v{vPOLL}''')
    for f in range(8):
        a(f'buffer_load_dwordx4 {vr(4*f,4)}, v{vPOLL}, {S(sWS)}, s{sA if f<4 else sB} offen offset:{(f%4)*1024} sc1')
    a(f'buffer_load_dwordx2 {vr(GG,2)}, v{vG}, {S(sWS)}, s{sGt} offen sc1')
    for f in range(8): a(f'ds_read_b128 {vr(Y+4*f,4)}, v{vT} offset:{f*1024}')
    a('s_waitcnt vmcnt(0) lgkmcnt(0)')
    for hs in range(4):
        for qt in range(2):
            for nt in range(2):
                d = vr(AC2 + (qt*2+nt)*4, 4)
                a(f'v_mfma_f32_16x16x32_bf16 {d}, {vr(Y+(nt*4+hs)*4,4)}, {vr((hs*2+qt)*4,4)}, {d if hs else 0}')
    a(f'''s_lshl_b32 s{sA}, s{sSEG}, 19
          s_add_u32 s{sA}, s{sA}, s{sE}
          s_add_u32 s{sB}, s{sA}, 4096
          s_lshl_b32 s{sT0}, s{sW}, 12
          v_add_u32 v{vT}, s{sT0}, v{vRW}''')
    for k in range(4):
        for r in range(4): a(f'v_mul_f32 v{AC2+4*k+r}, v{GG+k//2}, v{AC2+4*k+r}')
        a(f'ds_write_b128 v{vT}, {vr(AC2+4*k,4)} offset:{k*1024}')
    for f in range(8):
        a(f'buffer_load_dwordx4 {vr(Y+4*f,4)}, v{vPOLL}, {S(sWS)}, s{sA if f<4 else sB} offen offset:{(f%4)*1024} sc1')
    a(f'''v_sub_f32 v{GG}, 1.0, v{GG}
          v_sub_f32 v{GG+1}, 1.0, v{GG+1}
          s_mul_i32 s{sD}, s{sSEG}, {REC_STR}
          s_add_u32 s{sA}, s{sD}, {REC_OFF + R_MSA}
          s_add_u32 s{sB}, s{sA}, 4096''')
    poll_sent(a, [f'buffer_load_dwordx4 {vr(MA+4*f,4)}, v{vPOLL}, {S(sWS)}, s{sA if f<4 else sB} offen offset:{(f%4)*1024} sc1' for f in range(7)],
              range(MA, MA+28), done, vT+1, sleep=cfg.get('o_sleep', 4))
    q = []
    for j in range(7):
        d = TA + 4*(j%3)
        for r in range(4): a(f'v_mov_b32 v{d+r}, 0')
        for i in range(7):
            chain.smf(a, d, MA + 4*i, wreg(j, i))
            if i >= 2 and q: a(q.pop(0))
        q = chain.post_ops(j, d)
    for x in q: a(x)
    a(f'''ds_read_b128 {vr(U,4)}, v{vUR}
          ds_read_b128 {vr(U+4,4)}, v{vUR} offset:224
          s_add_u32 s{sA}, s{sD}, {REC_OFF + R_PX}
          s_add_u32 s{sB}, s{sA}, 5120''')
    pl = []
    for qt in range(2):
        pl.append(f'buffer_load_dwordx4 {vr(PF+20*qt,4)}, v{vPM}, {S(sWS)}, s{sA} offen offset:{qt*1280+1024} sc1')
        for i in range(2):
            for hf in range(2):
                pl.append(f'buffer_load_dwordx4 {vr(PF+20*qt+4+(i*2+hf)*4,4)}, v{vPX}, {S(sWS)}, s{sB if hf else sA} offen offset:{qt*1280+i*512} sc1')
    poll_sent(a, pl, range(PF, PF+40), done, vT+1, sleep=1)
    a('s_waitcnt lgkmcnt(0)')
    for qt in range(2):
        for nt in range(2):
            a(f'v_mfma_f32_16x16x32_bf16 {vr(AC2+(qt*2+nt)*4,4)}, {vr(U+4*nt,4)}, {vr(PF+20*qt,4)}, 0')
    for i in range(2):
        for hf in range(2):
            for qt in range(2):
                for nt in range(2):
                    d = vr(AC2 + (qt*2+nt)*4, 4)
                    a(f'v_mfma_f32_16x16x32_bf16 {d}, {vr(Y+((i*2+nt)*2+hf)*4,4)}, {vr(PF+20*qt+4+(i*2+hf)*4,4)}, {d}')
    for k in range(4):
        for r in range(4): a(f'v_mul_f32 v{AC2+4*k+r}, v{GG+k//2}, v{AC2+4*k+r}')
        a(f'ds_write_b128 v{vT}, {vr(AC2+4*k,4)} offset:{16384+k*1024}')
    a(f'''s_lshl_b32 s{sT0}, s{sW}, 10
          v_add_u32 v{vT}, s{sT0}, v{vRW}
          s_mul_i32 s{sA}, s{sSEG}, 28672
          s_waitcnt lgkmcnt(0)
          s_barrier''')
    for p in range(8): a(f'ds_read_b128 {vr(4*p,4)}, v{vT} offset:{p*4096}')
    a('s_waitcnt lgkmcnt(0)\ns_barrier')
    for st in (16, 8, 4):
        for r in range(0, st, 2): a(f'v_pk_add_f32 {vr(r,2)}, {vr(r,2)}, {vr(r+st,2)}')
    a(f'''v_cvt_pk_bf16_f32 v0, v0, v1
          v_cvt_pk_bf16_f32 v1, v2, v3
          buffer_store_dwordx2 v[0:1], v{vO1}, {S(sR1)}, s{sA} offen {cfg.get('outf', 'sc1')}
          buffer_store_dword v0, v{vO2}, {S(sR1)}, s{sA} offen {cfg.get('outf', 'sc1')}
          s_add_u32 s{sSEG}, s{sSEG}, {NRO}
          s_cmp_lt_u32 s{sSEG}, 64
          s_cbranch_scc1 {top}
          s_branch {done}''')

def xg_reduce(a, op, regs, tmps):
    for sw in ('v_permlane16_swap_b32', 'v_permlane32_swap_b32'):
        for r, t in zip(regs, tmps): a(f'v_mov_b32 v{t}, v{r}')
        for r, t in zip(regs, tmps): a(f'{sw} v{r}, v{t}')
        for r, t in zip(regs, tmps): a(f'{op} v{r}, v{r}, v{t}')

def role_X(a, cfg, done):
    ACC, XF, TB, SX, KF = 0, 56, 72, 0, 16
    vXS, vXR, vKa, vKb, vMX, vRW, vRM, vPM, vQ, vT = 102, 103, 104, 105, 106, 107, 108, 109, 110, 112
    L_R = 65536; L_M = 81920; L_MI = 90112
    lane_setup(a); idx_setup(a)
    a(f'''s_sub_u32 s{sT0}, s{sROLE}, 128
          s_lshr_b32 s{sC}, s{sT0}, 2
          s_and_b32 s{sR}, s{sT0}, 3''')
    xs_setup(a, vXS, vXR)
    a(f's_mov_b32 s{sSEG}, s{sR}')
    xs_dma(a, vXS, sSEG)
    a(f'''v_lshrrev_b32 v6, 3, v{N}
          v_lshlrev_b32 v6, 1, v6
          v_lshrrev_b32 v7, 1, v{G}
          v_xor_b32 v6, v6, v7
          v_lshlrev_b32 v8, 6, v{N}
          v_lshl_add_u32 v8, v6, 4, v8
          v_and_b32 v9, 1, v{G}
          v_lshl_add_u32 v8, v9, 3, v8
          s_and_b32 s{sT0}, s{sW}, 1
          s_lshl_b32 s{sT0}, s{sT0}, 5
          v_xor_b32 v{vKa}, s{sT0}, v8
          v_xor_b32 v{vKb}, 32, v{vKa}
          s_mul_i32 s{sT0}, s{sW}, 7
          s_lshr_b32 s{sT1}, s{sT0}, 1
          s_lshl_b32 s{sT1}, s{sT1}, 10
          v_add_u32 v{vKa}, s{sT1}, v{vKa}
          s_add_u32 s{sT1}, s{sT0}, 1
          s_lshr_b32 s{sT1}, s{sT1}, 1
          s_lshl_b32 s{sT1}, s{sT1}, 10
          v_add_u32 v{vKb}, s{sT1}, v{vKb}
          s_lshl_b32 s{sT0}, s{sW}, 11
          s_add_u32 s{sT0}, s{sT0}, {L_MI}
          v_lshlrev_b32 v{vMX}, 2, v{G}
          v_bfe_u32 v6, v{N}, 1, 2
          v_lshl_add_u32 v{vMX}, v6, 6, v{vMX}
          v_and_b32 v6, 1, v{N}
          v_lshl_add_u32 v{vMX}, v6, 4, v{vMX}
          v_add_u32 v{vMX}, s{sT0}, v{vMX}
          v_add_u32 v{vRW}, {L_R}, v{vPOLL}
          v_lshlrev_b32 v{vRM}, 8, v7
          v_lshl_add_u32 v{vRM}, v{N}, 4, v{vRM}
          v_lshl_add_u32 v{vRM}, v9, 3, v{vRM}
          s_and_b32 s{sT0}, s{sW}, 1
          s_lshl_b32 s{sT1}, s{sT0}, 10
          s_add_u32 s{sT1}, s{sT1}, {L_M}
          v_add_u32 v{vRM}, s{sT1}, v{vRM}
          v_lshlrev_b32 v{vPM}, 4, v{N}
          v_lshl_add_u32 v{vPM}, v{G}, 2, v{vPM}
          v_lshlrev_b32 v{vQ}, 1, v{N}
          v_add_u32 v{vQ}, s{sT0}, v{vQ}
          v_lshlrev_b32 v6, 3, v{G}
          v_sub_u32 v{vQ}, v{vQ}, v6''')
    wait_dbg(a, D_FLAGS_OK, 1, done, 10, 11)
    a(f'''s_lshl_b32 s{sT2}, s{sC}, 6
          s_add_u32 s{sT2}, s{sT2}, {FL_OFF + F_A}''')
    wait_flags(a, f's{sT2}', 7, 1, 3, done, L, 10, sleep=8)
    mark(a, cfg, 4)
    a(f's_mul_i32 s{sT0}, s{sC}, {WF_MAT}\ns_lshl_b32 s{sA}, s{sR}, 1')
    load_weights(a, rot=False, start=f's{sA}')
    wait_dbg(a, D_SENT, 16, done, 10, 11)
    wait_dbg(a, D_SENT2, 64, done, 10, 11)
    mark(a, cfg, 5)
    top = a.newlabel('L_X1'); skip = a.newlabel('L_Xs'); skip2 = a.newlabel('L_Xs2')
    a.label(top)
    a(f'''s_waitcnt vmcnt(0)
          s_barrier
          s_xor_b32 s{sLB}, s{sLB}, 0x8000
          s_add_u32 s{sD}, s{sSEG}, {NRX}''')
    xs_dma(a, vXS, sD)
    dense(a, ACC, XF, vXR, True)
    for qt in range(2):
        for j in range(7):
            d = ACC + 28*qt + 4*j
            a(f'''v_cvt_pk_bf16_f32 v{TB+14*qt+2*j}, v{d}, v{d+1}
                  v_cvt_pk_bf16_f32 v{TB+14*qt+2*j+1}, v{d+2}, v{d+3}''')
    for j in range(7):
        for kt in range(2):
            a(f'ds_read_b64 {vr(KF+4*j+2*kt,2)}, v{vKb if j%2 else vKa} offset:{kt*14336 + (j//2)*1024}')
    a('s_waitcnt lgkmcnt(0)')
    for j in range(7):
        for qt in range(2):
            for kt in range(2):
                d = vr(SX + (qt*2+kt)*4, 4)
                a(f'v_mfma_f32_16x16x16_bf16 {d}, {vr(KF+4*j+2*kt,2)}, {vr(TB+14*qt+2*j,2)}, {d if j else 0}')
    a(f'''v_xor_b32 v{vXR}, 0x8000, v{vXR}
          v_xor_b32 v{vKa}, 0x8000, v{vKa}
          v_xor_b32 v{vKb}, 0x8000, v{vKb}
          s_lshl_b32 s{sT0}, s{sW}, 12
          v_add_u32 v{vT}, s{sT0}, v{vRW}''')
    for k in range(4): a(f'ds_write_b128 v{vT}, {vr(SX+4*k,4)} offset:{k*1024}')
    a(f'''s_and_b32 s{sT0}, s{sW}, 1
          s_lshl_b32 s{sT0}, s{sT0}, 11
          v_add_u32 v{vT}, s{sT0}, v{vRW}
          s_waitcnt lgkmcnt(0)
          s_barrier''')
    E = 56
    for p in range(4):
        for kt in range(2): a(f'ds_read_b128 {vr(8*p+4*kt,4)}, v{vT} offset:{p*4096 + kt*1024}')
    a('s_waitcnt lgkmcnt(0)')
    for r in range(0, 16, 2): a(f'v_pk_add_f32 {vr(r,2)}, {vr(r,2)}, {vr(r+16,2)}')
    for r in range(0, 8, 2): a(f'v_pk_add_f32 {vr(r,2)}, {vr(r,2)}, {vr(r+8,2)}')
    a(f'v_mov_b32 v{vT+1}, 0xf0000000')
    for kt in range(2):
        for r in range(4):
            a(f'''v_cmp_le_i32 vcc, {2*r+kt}, v{vQ}
                  v_cndmask_b32 v{E+4*kt+r}, v{vT+1}, v{4*kt+r}, vcc''')
    a(f'''s_mul_i32 s{sE}, s{sSEG}, {REC_STR}
          s_add_u32 s{sA}, s{sE}, {REC_OFF + R_MSA}''')
    a(f'''s_mul_i32 s{sT0}, s{sW}, 1792
          s_add_u32 s{sA}, s{sA}, s{sT0}
          s_lshl_b32 s{sT0}, s{sW}, 11
          s_add_u32 s{sT0}, s{sT0}, {L_MI}
          v_add_u32 v{vT}, s{sT0}, v{vPOLL}
          v_min_u32 v{vT+2}, 752, v{vPOLL}''')
    poll_sent(a, [f'buffer_load_dwordx4 v[24:27], v{vPOLL}, {S(sWS)}, s{sA} offen sc1',
                  f'buffer_load_dwordx4 v[28:31], v{vT+2}, {S(sWS)}, s{sA} offen offset:1024 sc1'],
              range(24, 32), done, vT+1, sleep=cfg.get('x_sleep', 2))
    a(f'''ds_write_b128 v{vT}, v[24:27]
          ds_write_b128 v{vT}, v[28:31] offset:1024''')
    for j in range(7):
        a(f'ds_read_b32 v{2*j}, v{vMX} offset:{j*256}\nds_read_b32 v{2*j+1}, v{vMX} offset:{j*256+32}')
    a('s_waitcnt lgkmcnt(0)')
    for j in range(7):
        for qt in range(2):
            d = vr(16 + 4*qt, 4)
            a(f'v_mfma_f32_16x16x16_bf16 {d}, {vr(2*j,2)}, {vr(TB+14*qt+2*j,2)}, {d if j else 0}')
    a(f'''s_lshl_b32 s{sT0}, s{sW}, 11
          s_add_u32 s{sT0}, s{sT0}, {L_M}
          v_add_u32 v{vT}, s{sT0}, v{vPOLL}
          ds_write_b128 v{vT}, v[16:19]
          ds_write_b128 v{vT}, v[20:23] offset:1024
          s_waitcnt lgkmcnt(0)
          s_barrier
          s_cmp_ge_u32 s{sW}, 2
          s_cbranch_scc1 {skip}''')
    for p in range(4): a(f'ds_read_b64 {vr(2*p,2)}, v{vRM} offset:{p*2048}')
    a(f'''v_max3_f32 v10, v{E}, v{E+1}, v{E+2}
          v_max3_f32 v10, v10, v{E+3}, v{E+4}
          v_max3_f32 v10, v10, v{E+5}, v{E+6}
          v_max_f32 v10, v10, v{E+7}
          s_waitcnt lgkmcnt(0)
          v_pk_add_f32 v[0:1], v[0:1], v[2:3]
          v_pk_add_f32 v[4:5], v[4:5], v[6:7]
          v_pk_add_f32 {vr(E+8,2)}, v[0:1], v[4:5]
          v_max3_f32 v10, v10, v{E+8}, v{E+9}''')
    xg_reduce(a, 'v_max_f32', [10], [11])
    a(f's_mov_b32 s{sT0}, {ASCALE_HEX}\nv_mul_f32 v10, s{sT0}, v10')
    for k in range(10): a(f'v_fma_f32 v{E+k}, v{E+k}, s{sT0}, -v10')
    for k in range(10): a(f'v_exp_f32 v{E+k}, v{E+k}')
    a(f'''v_pk_add_f32 v[0:1], {vr(E,2)}, {vr(E+2,2)}
          v_pk_add_f32 v[2:3], {vr(E+4,2)}, {vr(E+6,2)}
          v_pk_add_f32 v[0:1], v[0:1], {vr(E+8,2)}
          v_pk_add_f32 v[0:1], v[0:1], v[2:3]
          v_add_f32 v10, v0, v1''')
    xg_reduce(a, 'v_add_f32', [10], [11])
    a('v_rcp_f32 v10, v10')
    for k in range(10): a(f'v_mul_f32 v{E+k}, v{E+k}, v10')
    for r in range(4): a(f'v_cvt_pk_bf16_f32 v{r}, |v{E+r}|, |v{E+4+r}|')
    a(f'''v_cvt_pk_bf16_f32 v4, |v{E+8}|, |v{E+9}|
          s_mul_i32 s{sT0}, s{sC}, 2560
          s_mul_i32 s{sT1}, s{sW}, 1280
          s_add_u32 s{sT0}, s{sT0}, s{sT1}
          s_add_u32 s{sT0}, s{sT0}, s{sE}
          s_add_u32 s{sT0}, s{sT0}, {REC_OFF + R_PX}
          buffer_store_dwordx4 v[0:3], v{vPOLL}, {S(sWS)}, s{sT0} offen sc1
          buffer_store_dword v4, v{vPM}, {S(sWS)}, s{sT0} offen offset:1024 sc1''')
    a.label(skip)
    a(f'''s_mov_b32 s{sSEG}, s{sD}
          s_cmp_lt_u32 s{sSEG}, 64
          s_cbranch_scc1 {top}
          s_branch {done}''')
```

```python
from common import *

L_MEM = 0
L_T   = 8192
L_RED = 16384
L_X   = 65536

MA = 0; ACC = 28; XB = 56; SACC = 88
vIDX, vPOLL, vLM, vLA, vLB, vLC, vTW, vTR, vMB, vSW, vSW2, vSR, vPS, vX, vX2, vXR, vPF3, vPF2, vT0, vT1 = range(100, 120)
sHO = 15; sHO2 = 16; sXO = 17; sYO = 18; sYO2 = 19; sTHR = 21
sVALID = 22
sMSO = 28; sPFY = 29; sPO = 30; sLX = 31
sFAST = 44; sSLOW = 45; sYK = 34; sFY = 35; sMODE = 46
ST0 = 48

def slot_map(w):
    if w < 3: return [2*w, 2*w+1, 2*((w+1)%3), 2*((w+1)%3)+1, 2*((w+2)%3), 2*((w+2)%3)+1, 6]
    return [6, 0, 2, 3, 4, 5, 1]
def pack_map(w): return sum(k << (4*i) for i, k in enumerate(slot_map(w)))

def load_weights(a, rot=True, tiles=range(7), start=None):
    a(f'''s_mul_i32 s{sT1}, s{sW}, {7*14*1024}
          s_add_u32 s{sT1}, s{sT1}, s{sT0}''')
    if rot:
        a(f'''s_mov_b32 s{sT3}, {pack_map(0)}
              s_cmp_eq_u32 s{sW}, 1
              s_cselect_b32 s{sT3}, {pack_map(1)}, s{sT3}
              s_cmp_eq_u32 s{sW}, 2
              s_cselect_b32 s{sT3}, {pack_map(2)}, s{sT3}
              s_cmp_eq_u32 s{sW}, 3
              s_cselect_b32 s{sT3}, {pack_map(3)}, s{sT3}''')
    if start:
        lp = a.newlabel('L_lw'); a(f's_mov_b32 s{sT0}, 0'); a.label(lp)
    for i in range(7):
        if start:
            sk = a.newlabel('L_lws')
            a(f'''s_cmp_lt_u32 {i}, {start}
                  s_cselect_b32 s{sT3}, 1, 0
                  s_cmp_lg_u32 s{sT3}, s{sT0}
                  s_cbranch_scc1 {sk}''')
        if rot:
            a(f's_bfe_u32 s{sT2}, s{sT3}, {(4 << 16) | (4*i)}')
            if i in (2, 4, 6):
                a(f'''s_lshl_b32 s{sT0}, s{sT2}, 10
                      v_add_u32 v{ {2: vLA, 4: vLB, 6: vLC}[i] }, s{sT0}, v{vPOLL}''')
            a(f'''s_lshl_b32 s{sT2}, s{sT2}, 11
                  s_add_u32 s{sT2}, s{sT2}, s{sT1}''')
        else:
            a(f's_add_u32 s{sT2}, s{sT1}, {i*2048}')
        for j in range(7):
            if j: a(f's_add_u32 s{sT2}, s{sT2}, {14*1024}')
            if j not in tiles: continue
            a(f'buffer_load_dwordx4 {wreg(j,i,4,0)}, v{vPOLL}, {S(sWS)}, s{sT2} offen sc1')
            a(f'buffer_load_dwordx4 {wreg(j,i,4,1)}, v{vPOLL}, {S(sWS)}, s{sT2} offen offset:1024 sc1')
        if start: a.label(sk)
    if start:
        a(f's_add_u32 s{sT0}, s{sT0}, 1\ns_cmp_lt_u32 s{sT0}, 2\ns_cbranch_scc1 {lp}')

def idx_setup(a):
    a(f'''v_lshlrev_b32 v{vPOLL}, 4, v{L}
          v_mov_b32 v{vIDX}, 0x4444
          v_mov_b32 v1, 0xeeee
          v_and_b32 v2, 2, v{N}
          v_cmp_ne_u32 vcc, 0, v2
          v_cndmask_b32 v{vIDX}, v{vIDX}, v1, vcc''')

def common_setup(a):
    idx_setup(a)
    a(f'''s_lshl_b32 s{sT0}, s{sW}, 11
          v_add_u32 v{vLM}, s{sT0}, v{vPOLL}
          v_lshrrev_b32 v4, 5, v{L}
          v_and_b32 v5, 31, v{L}''')

def red_read_addr(a, colreg):
    a(f'''v_lshlrev_b32 v{vSR}, 9, v4
          v_lshl_add_u32 v{vSR}, v{colreg}, 4, v{vSR}
          s_lshl_b32 s{sT1}, s{sW}, 10
          s_add_u32 s{sT1}, s{sT1}, {L_RED}
          v_add_u32 v{vSR}, s{sT1}, v{vSR}''')

def red_write_base(a, dst):
    a(f'''s_lshr_b32 s{sT1}, s{sW}, 1
          s_lshl_b32 s{sT1}, s{sT1}, 12
          s_and_b32 s{sT2}, s{sW}, 1
          s_lshl_b32 s{sT2}, s{sT2}, 3
          s_add_u32 s{sT1}, s{sT1}, s{sT2}
          s_add_u32 s{sT1}, s{sT1}, {L_RED}
          v_lshlrev_b32 v{dst}, 10, v{G}
          v_add_u32 v{dst}, s{sT1}, v{dst}''')

def warm(a, n):
    for _ in range(n): a(f'v_mov_b32 v{vT1}, v{vT1}\ns_nop 2')

def smf(a, d, A, B): a(f'v_smfmac_f32_16x16x64_bf16 {vr(d,4)}, {vr(A,4)}, {B}, v{vIDX}')

def post_ops(j, d=None):
    d = ACC + 4 * j if d is None else d
    return [f'v_add_f32 v{d}, v{d}, v{d+2}', f'v_add_f32 v{d+1}, v{d+1}, v{d+3}',
            f'v_cvt_pk_bf16_f32 v{d}, v{d}, v{d+1}', f'ds_write_b32 v{vTW}, v{d} offset:{j*256}']

def stage1(a, early, extra, cfg, depth, abort, pw, skip=()):
    lp = a.newlabel('L_mp'); rt = a.newlabel('L_mretry')
    ld = [f'buffer_load_dwordx4 {vr(MA,4)}, v{vPOLL}, {S(sWS)}, s{sHO} offen sc1',
          f'buffer_load_dwordx4 {vr(MA+4,4)}, v{vPOLL}, {S(sWS)}, s{sHO2} offen sc1']
    a(f's_mov_b32 s{sTO}, 0x40000')
    for d in range(depth - 1):
        for x in ld: a(x)
        warm(a, cfg.get('stag', 6))
    a.label(lp)
    for x in ld: a(x)
    a(f'''s_sub_u32 s{sTO}, s{sTO}, 1
          s_cbranch_scc1 {abort}
          s_cmp_eq_u32 s{sROLE}, 0''')
    warm(a, pw)
    a(f'''s_waitcnt vmcnt({2*(depth-1)+1})
          v_max3_u32 v{vT0}, v{MA}, v{MA+1}, v{MA+2}
          v_max_u32 v{vT0}, v{vT0}, v{MA+3}
          s_waitcnt vmcnt({2*(depth-1)})
          v_max3_u32 v{vT0}, v{vT0}, v{MA+4}, v{MA+5}
          v_max3_u32 v{vT0}, v{vT0}, v{MA+6}, v{MA+7}
          v_cmp_eq_u32 vcc, -1, v{vT0}''')
    wr = [f'ds_write_b128 v{vLM}, {vr(MA,4)}', f'ds_write_b128 v{vLM}, {vr(MA+4,4)} offset:1024']
    nw = cfg.get('specw', 1)
    for x in wr[:nw]: a(x)
    a(f's_cbranch_vccnz {lp}')
    stamp(a, cfg, 0)
    q = wr[nw:] + list(early)
    rd = [f'ds_read_b128 {vr(MA+8,4)}, v{vLA}', f'ds_read_b128 {vr(MA+12,4)}, v{vLA} offset:1024',
          f'ds_read_b128 {vr(MA+16,4)}, v{vLB}', f'ds_read_b128 {vr(MA+20,4)}, v{vLB} offset:1024',
          f'ds_read_b128 {vr(MA+24,4)}, v{vLC}']
    def pop():
        x = q.pop(0)
        if x: a(x)
    k = 0
    for i in range(2):
        for j in range(7):
            if j in skip: continue
            smf(a, ACC + 4 * j, MA + 4 * i, wreg(j, i))
            k += 1
            if k == cfg.get('barpos', 8):
                a('s_waitcnt lgkmcnt(0)\ns_barrier')
                for x in rd[:2]: a(x)
                q = rd[2:] + q
            elif q: pop()
    while any(x in rd for x in q): pop()
    probe(a, cfg, 'O')
    for j in range(7):
        for i in range(2, 7):
            if j == 0: a(f's_waitcnt lgkmcnt({6-i})')
            if j not in skip: smf(a, ACC + 4 * j, MA + 4 * i, wreg(j, i))
            if j > 0 and i == 3: q = q + post_ops(j - 1) + extra.get(j, [])
            if i == 2: probe(a, cfg, 'T%d' % j)
            for _ in range(2 if len([x for x in q if x]) > 5 else 1):
                if q: pop()
    while q: pop()

def align(a, pad):
    if pad is None: return
    a.raw('.p2align 6')
    for _ in range(pad): a('s_nop 0')

def zero_acc(a, regs):
    for r in regs: a(f'v_mov_b32 v{r}, 0')

def chain_mode(a, cfg, abort):
    lp = a.newlabel('L_cm'); dn = a.newlabel('L_cmd')
    a(f'''s_mov_b32 s{sTO}, 0x20000
          v_mov_b32 v10, 0''')
    a.label(lp)
    a(f'''global_load_dwordx2 v[12:13], v10, s[{sDBG}:{sDBG+1}] offset:{4*D_MODE} sc1
          s_waitcnt vmcnt(0)
          v_readfirstlane_b32 s{sT0}, v12
          v_readfirstlane_b32 s{sT2}, v13
          s_and_b32 s{sT1}, s{sT0}, 255
          s_add_u32 s{sT1}, s{sT1}, s{sT2}
          s_cmp_ge_u32 s{sT1}, 49
          s_cbranch_scc1 {dn}
          s_sleep 2
          s_sub_u32 s{sTO}, s{sTO}, 1
          s_cbranch_scc0 {lp}
          s_branch {abort}''')
    a.label(dn)
    a(f'''s_lshl_b32 s{sT1}, s{sMODE}, 5
          s_cmp_lg_u32 s{sT0}, s{sT1}
          s_cselect_b32 s{sMODE}, 1, 0''')
    if cfg.get('force_slow'): a(f's_mov_b32 s{sMODE}, 1')

def chain_start(a, abort):
    sk = a.newlabel('L_go')
    a(f'''s_cmp_lg_u32 s{sW}, 0
          s_cbranch_scc1 {sk}
          v_mov_b32 v10, 0
          v_mov_b32 v11, 1
          s_mov_b64 exec, 1
          global_atomic_add v10, v11, s[{sDBG}:{sDBG+1}] offset:{4*D_GO}
          s_mov_b64 exec, -1''')
    a.label(sk)
    a(f'''s_lshl_b32 s{sT0}, s{sW}, 11
          s_add_u32 s{sHO}, s{sT0}, {REC_OFF}
          s_add_u32 s{sHO2}, s{sHO}, 1024
          s_cmp_eq_u32 s{sW}, 3
          s_cselect_b32 s{sHO2}, {REC_OFF}, s{sHO2}
          s_mov_b32 s{sS}, 0''')

def mode_offsets(a, off, cfg):
    a(f'''s_mov_b32 s{sT0}, {off}
          s_mov_b32 s{sT1}, {OOB}
          s_cmp_eq_u32 s{sMODE}, 0
          s_cselect_b32 s{sFAST}, s{sT0}, s{sT1}
          s_cselect_b32 s{sSLOW}, s{sT1}, s{sT0}''')

def stamp(a, cfg, k):
    if cfg.get('trace'):
        if k == cfg.get('trstart', 0):
            a.tr_every, a.tr_skip = cfg['trace']; a.tr_cnt = 0; a.tr_n = 0; a.tr_max = 23; a.tr_log.append('--- role')
        if k == 3:
            a.tr_every = 0; a.tr_log.append('END'); a(f's_memtime s[{48+2*a.tr_n}:{49+2*a.tr_n}]')
        return
    if cfg.get('stamps') and k in cfg['stamps']:
        a(f'{"s_memrealtime" if cfg.get("rt") else "s_memtime"} s[{ST0+2*k}:{ST0+1+2*k}]')

def probe(a, cfg, name):
    if cfg.get('probe') == name: a(f's_memtime s[{ST0+2}:{ST0+3}]')

def dump_stamps(a, cfg):
    if cfg.get('trace'):
        a(f'''s_waitcnt lgkmcnt(0)
              s_lshl_b32 s{sT0}, s{sROLE}, 2
              s_add_u32 s{sT0}, s{sT0}, s{sW}
              s_lshl_b32 s{sT0}, s{sT0}, 6
              s_add_u32 s{sT0}, s{sT0}, s{sS}
              s_lshl_b32 s{sT0}, s{sT0}, 7
              s_add_u32 s{sT0}, s{sT0}, {DBG_OFF + 0x100000}
              v_mov_b32 v{ACC+24}, 0''')
        for k in range(24): a(f'v_mov_b32 v{ACC+k}, s{48+2*k}')
        for k in range(6): a(f'buffer_store_dwordx4 {vr(ACC+4*k,4)}, v{ACC+24}, {S(sWS)}, s{sT0} offen offset:{16*k}')
        return
    if not cfg.get('stamps'): return
    a(f'''s_waitcnt lgkmcnt(0)
          s_lshl_b32 s{sT0}, s{sROLE}, 2
          s_add_u32 s{sT0}, s{sT0}, s{sW}
          s_lshl_b32 s{sT0}, s{sT0}, 6
          s_add_u32 s{sT0}, s{sT0}, s{sS}
          s_lshl_b32 s{sT0}, s{sT0}, 4
          s_add_u32 s{sT0}, s{sT0}, {DBG_OFF + 0x10000}''')
    for k in range(4): a(f'v_mov_b32 v{MA+24+k}, s{ST0+2*k}')
    a(f'v_mov_b32 v{MA+23}, 0')
    a(f'buffer_store_dwordx4 {vr(MA+24,4)}, v{MA+23}, {S(sWS)}, s{sT0} offen')

def red_sum(a, t, cfg, again, scale=None):
    for _ in range(cfg.get('bpad', 0)): a(f'v_mov_b32 v{vT1}, v{vT1}')
    if not cfg.get('nobar'): a('s_barrier')
    a.label(again)
    a(f'''ds_read_b128 {vr(t+2,4)}, v{vSR}
          ds_read_b128 {vr(t+6,4)}, v{vSR} offset:4096''')
    warm(a, cfg.get('w3', 3))
    a(f'''s_waitcnt lgkmcnt(1)
          v_pk_add_f32 {vr(t,2)}, {vr(t+2,2)}, {vr(t+4,2)}''')
    if scale: a(f'v_pk_mul_f32 {vr(t,2)}, {vr(t,2)}, {scale}')
    a(f'''s_waitcnt lgkmcnt(0)
          v_pk_add_f32 {vr(t+10,2)}, {vr(t+6,2)}, {vr(t+8,2)}''')
    if scale: a(f'v_pk_fma_f32 {vr(t,2)}, {vr(t+10,2)}, {scale}, {vr(t,2)}')
    else: a(f'v_pk_add_f32 {vr(t,2)}, {vr(t,2)}, {vr(t+10,2)}')

def red_check(a, t, again, abort):
    a('s_add_u32 s70, s70, 1')
    a(f'''v_max3_u32 v{t+10}, v{t+2}, v{t+3}, v{t+4}
          v_max3_u32 v{t+10}, v{t+10}, v{t+5}, v{t+6}
          v_max3_u32 v{t+10}, v{t+10}, v{t+7}, v{t+8}
          v_max_u32 v{t+10}, v{t+10}, v{t+9}
          v_cmp_eq_u32 vcc, -1, v{t+10}
          s_sub_u32 s{sTO}, s{sTO}, 1
          s_cbranch_scc1 {abort}
          s_and_b64 vcc, vcc, s[{sVALID}:{sVALID+1}]
          s_cbranch_scc1 {again}''')

def red_reset(a, t):
    for k in range(4): a(f'v_mov_b32 v{t+k}, -1')
    a(f'''s_mov_b64 exec, s[{sVALID}:{sVALID+1}]
          ds_write_b128 v{vSR}, {vr(t,4)}
          ds_write_b128 v{vSR}, {vr(t,4)} offset:4096
          s_mov_b64 exec, -1''')

def x_dma():
    return [f's_add_u32 m0, s{sLX}, {n*1024 - n*64}\nbuffer_load_dwordx4 v{vX}, {S(sXS)}, s{sXO} offen offset:{n*64} lds' for n in range(7)]

def inv_pack(w):
    m = slot_map(w); return sum(m.index(k) << (4*k) for k in range(7))

def local_a(a, cfg, isS, abort):
    NT = 4 if isS else 3; J0 = 0 if isS else 4
    A0, A1, PK, FA, CF = 0, 32, 64, 96, 120
    vSA, vSB, vRD, vRR, vL16 = 112, 113, 114, 115, 116
    sHd, sKS, sRO, sSL, sWO, sWO2, sINV, sSC = 14, 15, 16, 17, 18, 19, 21, 22
    mark(a, cfg, 10)
    lane_setup(a)
    a(f'''s_load_dwordx2 s[{sR1}:{sR1+1}], s[0:1], 48
          s_load_dwordx2 s[{sR2}:{sR2+1}], s[0:1], 56
          s_mov_b32 s{sR1+2}, 3670016
          s_mov_b32 s{sR1+3}, 0x20000
          s_mov_b32 s{sR2+2}, 3670016
          s_mov_b32 s{sR2+3}, 0x20000
          s_and_b32 s{sHd}, s{sROLE}, 15''')
    sk0 = a.newlabel('L_la0')
    a(f'''s_mul_i32 s{sT0}, s{sXCC}, s{sXCC}
          s_lshl_b32 s{sT0}, s{sT0}, 16
          s_lshl_b32 s{sMODE}, s{sXCC}, 8
          s_add_u32 s{sMODE}, s{sMODE}, s{sT0}
          s_add_u32 s{sMODE}, s{sMODE}, 1
          s_cmp_lg_u32 s{sW}, 0
          s_cbranch_scc1 {sk0}
          v_mov_b32 v6, 0
          v_mov_b32 v7, s{sMODE}
          s_mov_b64 exec, 1
          global_atomic_add v6, v7, s[{sDBG}:{sDBG+1}] offset:{4*D_MODE}
          s_mov_b64 exec, -1''')
    a.label(sk0)
    if not isS:
        a(f'''v_lshrrev_b32 v6, 2, v{L}
              v_lshlrev_b32 v6, 13, v6
              v_and_b32 v7, 3, v{L}
              v_lshl_add_u32 v6, v7, 7, v6
              s_lshl_b32 s{sT1}, s{sHd}, 9
              s_mul_i32 s{sT0}, s{sW}, {112*8192}
              s_add_u32 s{sT0}, s{sT0}, s{sT1}
              s_add_u32 s{sT0}, s{sT0}, {32*8192}
              s_add_u32 s{sT2}, s{sT0}, {16*8192}
              s_lshl_b32 s{sT3}, s{sW}, 17
              s_add_u32 s{sT1}, s{sT1}, s{sT3}
              s_add_u32 s{sT1}, s{sT1}, {32*8192}
              s_waitcnt lgkmcnt(0)
              buffer_load_dword v116, v6, {S(sR2)}, s{sT0} offen
              buffer_load_dword v116, v6, {S(sR2)}, s{sT2} offen''')
        for k in range(cfg.get('vtouch', 4)):
            a(f'buffer_load_dword v116, v6, {S(sR1)}, s{sT1} offen\ns_add_u32 s{sT1}, s{sT1}, {64*8192}')
        a(f'''v_lshlrev_b32 v6, 7, v{L}
              s_mul_i32 s{sT0}, s{sHd}, 3584
              v_min_u32 v6, 3456, v6
              buffer_load_dword v116, v6, {S(sXS)}, s{sT0} offen''')
        v_fill(a, cfg, sHd, sKS)
        wait_dbg(a, D_FLAGS_OK, 1, abort, 10, 11)
        mark(a, cfg, 1)
        return
    frag_src_lane(a, vSB, 8192, 6, 7)
    frag_src_lane(a, vSA, 8192, 6, 7, perm=True)
    frag_read_lane(a, vRD, 6)
    a(f'''v_lshlrev_b32 v{vL16}, 4, v{L}
          s_mul_i32 s{sT0}, s{sW}, {112*8192}
          s_lshl_b32 s{sT1}, s{sHd}, 9
          s_add_u32 s{sT0}, s{sT0}, s{sT1}
          s_add_u32 s{sT0}, s{sT0}, {J0*16*8192}
          s_lshl_b32 s{sT2}, s{sW}, 15
          s_lshr_b32 s{sRO}, s{sW}, 1
          s_lshl_b32 s{sRO}, s{sRO}, 15
          s_and_b32 s{sT3}, s{sW}, 1
          s_lshl_b32 s{sT3}, s{sT3}, 8
          s_add_u32 s{sRO}, s{sRO}, s{sT3}
          s_add_u32 s{sRO}, s{sRO}, s{sT1}
          s_add_u32 s{sRO}, s{sRO}, {0 if isS else 7*32*8192}
          s_lshl_b32 s{sSL}, s{sW}, 12
          s_add_u32 s{sSL}, s{sSL}, {8*16384}
          s_waitcnt lgkmcnt(0)''')
    RS = cfg.get('ring', 4)
    RB = (9 - RS) * 16384
    def rows_q():
        q = [f'''s_add_u32 m0, s{sSL}, {k*1024 - k*64}
                  buffer_load_dwordx4 v{vSA}, {S(sR1)}, s{sRO} offen offset:{k*64} lds''' for k in range(4)]
        wrap = '' if isS else f's_cmp_ge_u32 s{sRO}, 3670016\ns_cselect_b32 s{sT3}, 3670016, 0\ns_sub_u32 s{sRO}, s{sRO}, s{sT3}\n'
        q.append(f'''s_add_u32 s{sRO}, s{sRO}, {32*8192}
              {wrap}              s_add_u32 s{sSL}, s{sSL}, 16384
              s_cmp_ge_u32 s{sSL}, {9*16384}
              s_cselect_b32 s{sT3}, {RS*16384}, 0
              s_sub_u32 s{sSL}, s{sSL}, s{sT3}''')
        return q
    def rows():
        for x in rows_q(): a(x)
    for j in range(NT):
        for ke in range(8):
            a(f'''s_add_u32 m0, s{sT2}, {(j*8+ke)*1024 - ke*64}
                  buffer_load_dwordx4 v{vSB}, {S(sR2)}, s{sT0} offen offset:{ke*64} lds''')
        a(f's_add_u32 s{sT0}, s{sT0}, {16*8192}')
    rows()
    a(f'''v_add_u32 v{vRR}, s{sT2}, v{vRD}
''')
    mark(a, cfg, 11)
    a(f'''v_mov_b32 v117, 0
          global_load_dword v118, v117, s[{sDBG}:{sDBG+1}] offset:{4*D_FLAGS_OK} sc1
          s_waitcnt vmcnt(1)''')
    mark(a, cfg, 1)
    for f in range(NT * 8):
        a(f'ds_read_b128 {vr(CF+4*f,4)}, v{vRR} offset:{f*1024}')
        if f % 8 == 7: a('s_waitcnt lgkmcnt(0)')
    a('s_barrier')
    a(f's_mov_b32 s{sWO2}, {OOB}')
    for k in range(RS - 2):
        rows()
    a(f'''v_add_u32 v{vRR}, {8*16384}, v{vRD}
          s_mov_b32 s{sKS}, 0''')
    if isS:
        a(f'''s_mov_b32 s{sINV}, {inv_pack(0)}
              s_cmp_eq_u32 s{sW}, 1
              s_cselect_b32 s{sINV}, {inv_pack(1)}, s{sINV}
              s_cmp_eq_u32 s{sW}, 2
              s_cselect_b32 s{sINV}, {inv_pack(2)}, s{sINV}
              s_cmp_eq_u32 s{sW}, 3
              s_cselect_b32 s{sINV}, {inv_pack(3)}, s{sINV}
              s_lshl_b32 s{sINV}, s{sINV}, 4
              s_or_b32 s{sINV}, s{sINV}, 7''')
    a(f'''s_mul_i32 s{sWO}, s{sHd}, {WF_MAT}
          s_mul_i32 s{sT1}, s{sW}, {7*14336}
          s_add_u32 s{sWO}, s{sWO}, s{sT1}
          s_mov_b32 s{sWO2}, {OOB}''')
    def pack(acc, hf):
        q = []
        for j in range(NT):
            for mt in range(2):
                d = acc + (j*2+mt)*4; o = PK + 16*hf + 4*j + 2*mt
                q += [f'v_cvt_pk_bf16_f32 v{o}, v{d}, v{d+1}', f'v_cvt_pk_bf16_f32 v{o+1}, v{d+2}, v{d+3}']
        return q
    def block(acc, q):
        def rd(ke, reg): return [f'ds_read_b128 {vr(FA+8*(ke%2)+4*mt,4)}, v{reg} offset:{mt*8192 + (ke%8)*1024}' for mt in range(2)]
        dq = rows_q()
        if cfg.get('nodma'): dq = dq[4:]
        for ke in range(8):
            if ke == 7:
                a(f'''v_add_u32 v{vRR}, 16384, v{vRR}
                      v_add_u32 v{vSB}, {-RS*16384}, v{vRR}
                      v_cmp_le_u32 vcc, {9*16384}, v{vRR}
                      v_cndmask_b32 v{vRR}, v{vRR}, v{vSB}, vcc
                      s_waitcnt vmcnt({4*(RS-2)}) lgkmcnt(0)
                      s_barrier''')
            else: a('s_waitcnt lgkmcnt(0)')
            r = rd(ke + 1, vRR)
            n = 0
            for j in range(NT):
                for mt in range(2):
                    d = vr(acc + (j*2+mt)*4, 4)
                    a(f'v_mfma_f32_16x16x32_bf16 {d}, {vr(FA+8*(ke%2)+4*mt,4)}, {vr(CF+(j*8+ke)*4,4)}, {d if ke else 0}')
                    n += 1
                    if r: a(r.pop(0))
                    elif cfg.get('dstag') and n == 3 and ke < 4:
                        sk = a.newlabel('L_lds')
                        a(f's_cmp_lg_u32 s{sW}, {ke}\ns_cbranch_scc1 {sk}')
                        for x in rows_q(): a(x)
                        a.label(sk); dq = []
                    elif n == 3 and dq and ke < 7: a(dq.pop(0))
                    elif q: a(q.pop(0))
        assert not q and not dq
    def commit():
        end = a.newlabel('L_lce'); lab = [a.newlabel('L_lc') for _ in range(7)]
        a(f's_and_b32 s{sT0}, s{sINV}, 15\ns_lshr_b32 s{sINV}, s{sINV}, 4')
        for i in range(7): a(f's_cmp_eq_u32 s{sT0}, {i}\ns_cbranch_scc1 {lab[i]}')
        a(f's_branch {end}')
        for i in range(7):
            a.label(lab[i])
            for j in range(4):
                for hf in range(2):
                    for r in range(4): a(f'v_accvgpr_write_b32 a{(j*7+i)*8 + 4*hf + r}, v{PK+16*hf+4*j+r}')
            if i < 6: a(f's_branch {end}')
        a.label(end)
    mark(a, cfg, 12)
    for mt in range(2): a(f'ds_read_b128 {vr(FA+4*mt,4)}, v{vRR} offset:{mt*8192}')
    lp = a.newlabel('L_la'); ex = a.newlabel('L_lax'); cm = a.newlabel('L_lcm')
    a.label(lp)
    block(A0, pack(A1, 1))
    a.label(cm)
    if isS: commit()
    a(f's_cmp_ge_u32 s{sKS}, 7\ns_cbranch_scc1 {ex}')
    block(A1, pack(A0, 0))
    a(f'''s_add_u32 s{sKS}, s{sKS}, 1
          s_cmp_lt_u32 s{sKS}, 7
          s_cbranch_scc1 {lp}''')
    for x in pack(A1, 1): a(x)
    a(f's_branch {cm}')
    a.label(ex)
    mark(a, cfg, 2)
    ok = a.newlabel('L_lok')
    a(f'''v_cmp_ne_u32 vcc, 0, v118
          s_cbranch_vccnz {ok}''')
    wait_dbg(a, D_FLAGS_OK, 1, abort, 10, 11)
    a.label(ok)

def v_fill(a, cfg, sHd, sKS):
    a(f'''s_mul_i32 s{sT0}, s{sHd}, {4*REC_STR}
          s_add_u32 s{sT0}, s{sT0}, {REC_OFF}
          v_lshlrev_b32 v6, 4, v{vTID}
          v_mov_b32 v7, {OOB}
          s_cmp_eq_u32 s{sHd}, 0
          s_cselect_b64 vcc, -1, 0
          v_cndmask_b32 v7, v6, v7, vcc
          v_mov_b32 v8, -1
          v_mov_b32 v9, -1
          v_mov_b32 v10, -1
          v_mov_b32 v11, -1
          s_mov_b32 s{sKS}, 0''')
    fl = a.newlabel('L_lf')
    a.label(fl)
    for k in range(7):
        a(f'''buffer_store_dwordx4 v[8:11], v{7 if k < 2 else 6}, {S(sWS)}, s{sT0} offen sc1
              s_add_u32 s{sT0}, s{sT0}, {4096 if k < 6 else REC_STR - 6*4096}''')
    a(f'''v_mov_b32 v7, v6
          s_add_u32 s{sKS}, s{sKS}, 1
          s_cmp_lt_u32 s{sKS}, 4
          s_cbranch_scc1 {fl}''')

def v_mem0(a, cfg):
    nm = a.newlabel('L_lm0')
    a(f'''s_cmp_lg_u32 s{sROLE}, 255
          s_cbranch_scc1 {nm}''')
    srd(a, sR2, 5, 7168)
    a(f'''v_lshlrev_b32 v12, 2, v{vTID}
          v_lshrrev_b32 v13, 3, v{vTID}
          v_lshlrev_b32 v13, 8, v13
          v_and_b32 v14, 1, v{vTID}
          v_lshl_add_u32 v13, v14, 5, v13
          v_bfe_u32 v15, v{vTID}, 1, 2
          v_lshl_add_u32 v13, v15, 2, v13
          v_mov_b32 v7, {OOB}
          v_cmp_gt_u32 vcc, 224, v{vTID}
          v_cndmask_b32 v13, v7, v13, vcc
          v_cndmask_b32 v12, v7, v12, vcc
          s_mov_b32 s{sT0}, {REC_OFF + R_MEMF}''')
    for m in range(8):
        a(f's_mov_b32 s{sT3}, {m*896}\nbuffer_load_dword v{30+m}, v12, {S(sR2)}, s{sT3} offen')
    a('s_waitcnt vmcnt(0)')
    for m in range(8):
        rs = (4*(m//2) + m % 2) * 16
        a(f'''v_min_u32 v{30+m}, -2, v{30+m}
              buffer_store_dword v{30+m}, v13, {S(sWS)}, s{sT0} offen offset:{rs} sc1''')
    a(f'''s_waitcnt vmcnt(0)
          s_barrier
          s_cmp_lg_u32 s{sW}, 0
          s_cbranch_scc1 {nm}
          v_mov_b32 v6, 0
          v_mov_b32 v7, 1
          s_mov_b64 exec, 1
          global_atomic_add v6, v7, s[{sDBG}:{sDBG+1}] offset:{4*D_SENT}
          s_mov_b64 exec, -1''')
    a.label(nm)

def role_S(a, cfg, done):
    vXK, vMK, vYT = vPF3, vPF2, vX2
    local_a(a, cfg, True, done)
    lane_setup(a); common_setup(a)
    a(f'''s_lshl_b32 s{sT2}, s{sROLE}, 6
          s_add_u32 s{sT2}, s{sT2}, {FL_OFF + F_A}''')
    wait_flags(a, f's{sT2}', 7, 1, 1, done, L, 10, sleep=1)
    a('s_barrier')
    mark(a, cfg, 4)
    a(f's_mul_i32 s{sT0}, s{sROLE}, {WF_MAT}')
    load_weights(a, tiles=(4, 5, 6))
    a(f'''s_lshl_b32 s{sT0}, s{sW}, 11
          s_add_u32 s{sT1}, s{sT0}, {L_T}
          v_lshrrev_b32 v6, 3, v{N}
          v_and_b32 v7, 3, v{N}
          v_lshl_add_u32 v6, v6, 2, v7
          v_lshlrev_b32 v{vTW}, 5, v6
          v_lshl_add_u32 v{vTW}, v{G}, 3, v{vTW}
          v_and_b32 v6, 4, v{N}
          v_add_u32 v{vTW}, v6, v{vTW}
          v_add_u32 v{vTW}, s{sT1}, v{vTW}
          v_lshlrev_b32 v{vTR}, 8, v{G}
          v_lshl_add_u32 v{vTR}, v{N}, 3, v{vTR}
          v_add_u32 v{vTR}, s{sT1}, v{vTR}''')
    a(f'''s_mul_i32 s{sT2}, s{sW}, {7*256}
          v_and_b32 v7, 1, v{N}
          v_lshrrev_b32 v6, 1, v{G}
          v_lshlrev_b32 v{vMB}, 8, v6
          v_bfe_u32 v6, v{N}, 1, 2
          v_lshl_add_u32 v6, v6, 2, v7
          v_lshl_add_u32 v{vMB}, v6, 4, v{vMB}
          v_and_b32 v6, 1, v{G}
          v_lshl_add_u32 v{vMB}, v6, 3, v{vMB}
          v_add_u32 v{vMB}, s{sT2}, v{vMB}
          v_bfe_u32 v6, v{N}, 1, 2
          v_lshl_add_u32 v6, v6, 2, v7
          v_lshlrev_b32 v{vMK}, 4, v6
          v_lshl_add_u32 v{vMK}, v{G}, 2, v{vMK}
          s_add_u32 s{sT2}, s{sT2}, {6*256}
          v_add_u32 v{vMK}, s{sT2}, v{vMK}''')
    red_write_base(a, 6)
    a(f'''v_lshl_add_u32 v{vSW}, v{N}, 4, v6
          v_and_b32 v9, 8, v{N}
          v_xor_b32 v{vSW}, v9, v{vSW}
          v_lshrrev_b32 v9, 1, v{N}
          v_lshl_add_u32 v{vSW2}, v9, 4, v6
          v_lshl_add_u32 v{vSW2}, v7, 2, v{vSW2}
          v_add_u32 v{vSW2}, 256, v{vSW2}''')
    a(f'''v_and_b32 v8, 8, v5
          v_and_b32 v6, 3, v5
          v_lshl_add_u32 v8, v6, 1, v8
          v_bfe_u32 v6, v5, 2, 1
          v_add_u32 v8, v8, v6
          v_cmp_gt_u32 vcc, 16, v5
          v_cndmask_b32 v8, v5, v8, vcc
          v_mov_b32 v9, 28
          v_cmp_gt_u32 s[{sVALID}:{sVALID+1}], 20, v5
          v_cndmask_b32 v8, v9, v8, s[{sVALID}:{sVALID+1}]''')
    red_read_addr(a, 8)
    a(f'''v_bfe_u32 v7, v5, 3, 1
          v_lshlrev_b32 v7, 8, v7
          v_lshl_add_u32 v7, v6, 5, v7
          s_lshl_b32 s{sT1}, s{sW}, 6
          v_add_u32 v7, s{sT1}, v7
          s_lshl_b32 s{sT1}, s{sW}, 5
          s_add_u32 s{sT1}, s{sT1}, 512
          v_mov_b32 v9, s{sT1}
          v_cndmask_b32 v{vPS}, v9, v7, vcc
          v_lshl_add_u32 v{vPS}, v4, 4, v{vPS}
          v_and_b32 v6, 3, v5
          v_lshl_add_u32 v{vPS}, v6, 2, v{vPS}
          s_mul_i32 s{sT1}, s{sROLE}, 640
          v_add_u32 v{vPS}, s{sT1}, v{vPS}
          v_mov_b32 v8, {OOB}
          v_cndmask_b32 v{vPS}, v8, v{vPS}, s[{sVALID}:{sVALID+1}]''')
    frag_src_lane(a, vX, 1792, 6, 7)
    a(f'''s_lshr_b32 s{sT1}, s{sW}, 1
          s_mul_i32 s{sT1}, s{sT1}, 896
          s_and_b32 s{sT2}, s{sW}, 1
          s_mul_i32 s{sT2}, s{sT2}, 448
          s_add_u32 s{sT1}, s{sT1}, s{sT2}
          v_add_u32 v{vX}, s{sT1}, v{vX}
          s_mul_i32 s{sLX}, s{sW}, 7168
          s_add_u32 s{sLX}, s{sLX}, {L_X}
          s_mul_i32 s{sT1}, s{sW}, 14
          v_add_u32 v6, s{sT1}, v{G}
          v_lshrrev_b32 v7, 2, v6
          v_lshlrev_b32 v{vXR}, 10, v7
          v_lshl_add_u32 v{vXR}, v{N}, 6, v{vXR}
          v_and_b32 v6, 3, v6
          v_lshrrev_b32 v7, 3, v{N}
          v_lshlrev_b32 v7, 1, v7
          v_xor_b32 v6, v6, v7
          v_lshl_add_u32 v{vXR}, v6, 4, v{vXR}
          v_add_u32 v{vXR}, {L_X}, v{vXR}
          v_mov_b32 v12, 0
          v_mov_b32 v13, 0
          v_mov_b32 v14, 0
          v_mov_b32 v15, 0
          v_add_u32 v6, {L_X + 28672}, v{vPOLL}
          ds_write_b128 v6, v[12:15]
          ds_write_b128 v6, v[12:15] offset:32768''')
    a(f'''s_mul_i32 s{sT1}, s{sW}, 14
          s_add_u32 s{sT1}, s{sT1}, 12
          v_lshrrev_b32 v6, 1, v{G}
          v_add_u32 v6, s{sT1}, v6
          v_lshrrev_b32 v9, 2, v6
          v_lshlrev_b32 v{vXK}, 10, v9
          v_lshl_add_u32 v{vXK}, v{N}, 6, v{vXK}
          v_and_b32 v6, 3, v6
          v_xor_b32 v6, v6, v7
          v_lshl_add_u32 v{vXK}, v6, 4, v{vXK}
          v_and_b32 v6, 1, v{G}
          v_lshl_add_u32 v{vXK}, v6, 3, v{vXK}
          v_add_u32 v{vXK}, {L_X}, v{vXK}
          v_lshlrev_b32 v6, 2, v{G}
          v_sub_u32 v6, v{N}, v6
          v_mov_b32 v9, 0x3f80
          v_mov_b32 v10, 0x3f800000
          v_lshlrev_b32 v{vYT}, 3, v{vPOLL}
          v_min_u32 v{vYT}, {cfg.get("ymax", 6016)}, v{vYT}''')
    for rr in range(2):
        a(f'''v_cmp_eq_u32 vcc, {2*rr}, v6
              v_cndmask_b32 v{XB+22+rr}, 0, v9, vcc
              v_cmp_eq_u32 vcc, {2*rr+1}, v6
              v_cndmask_b32 v{XB+22+rr}, v{XB+22+rr}, v10, vcc''')
    a(f'''v_mov_b32 v6, 0
          ds_write_b32 v{vTW}, v6 offset:{7*256}
          ds_write_b32 v{vTW}, v6 offset:{6*256}
          v_mov_b32 v8, 0xf0000000
          v_mov_b32 v9, v8
          v_lshlrev_b32 v6, 9, v{N}
          v_add_u32 v6, {L_RED + 28*16}, v6
          ds_write2_b64 v6, v[8:9], v[8:9] offset0:0 offset1:1
          s_mov_b32 s{sXO}, 0
          s_mov_b32 s{sTHR}, 0x42200000
          s_mov_b32 s{sYK}, {ASCALE_HEX}
          s_mov_b32 s{sYK+1}, {ASCALE_HEX}
          s_mov_b32 s{sPO}, {REC_OFF + R_P}
          s_lshl_b32 s{sPFY}, s{sROLE}, 15
          s_lshl_b32 s{sT1}, s{sW}, 13
          s_add_u32 s{sPFY}, s{sPFY}, s{sT1}
          s_add_u32 s{sPFY}, s{sPFY}, {YF_OFF + 2*16*32768}''')
    red_reset(a, 12)
    for x in x_dma(): a(x)
    chain_mode(a, cfg, done)
    chain_start(a, done)
    mode_offsets(a, REC_OFF + R_P, cfg)
    a(f'''s_add_u32 s{sMSO}, s{sHO}, {R_MSA}
          s_add_u32 s{sYO}, s{sHO2}, {R_MSA}
''')
    a('s_barrier')
    mark(a, cfg, 5)
    top = a.newlabel('L_Stop'); slow = a.newlabel('L_Sslow'); back = a.newlabel('L_Sback')
    align(a, cfg.get('salign'))
    a.label(top)
    a(f's_add_u32 s{sXO}, s{sXO}, 28672\ns_xor_b32 s{sLX}, s{sLX}, 0x8000')
    dm = x_dma()
    for f in range(8):
        if cfg.get('dmafirst', 0) and dm: a(dm.pop(0))
        if f in (5, 7): a(f'ds_read_b64 {vr(XB+4*f,2)}, v{vXK} offset:{((f>>1)&1)*14336}')
        else: a(f'ds_read_b128 {vr(XB+4*f,4)}, v{vXR} offset:{((f>>1)&1)*14336 + ((f>>2)*2 + (f&1))*1024}')
    a(f'v_xor_b32 v{vXR}, 0x8000, v{vXR}\nv_xor_b32 v{vXK}, 0x8000, v{vXK}')
    z = [f'v_mov_b32 v{r}, 0' for r in list(range(ACC, ACC + 28)) + list(range(SACC, SACC + 12))]
    for _ in range(cfg.get('zfirst', 40)): a(z.pop(0))
    for x in dm:
        a(x)
        for _ in range(5):
            if z: a(z.pop(0))
    for x in z: a(x)
    a('s_waitcnt lgkmcnt(0)')
    for f in (0, 1, 2, 3, 4, 6): a(f'v_swap_b32 v{XB+4*f+1}, v{XB+4*f+2}')
    if cfg.get('dmat', 0): a('s_waitcnt vmcnt(0)')
    stamp(a, cfg, 2)
    tail = []
    early = [''] * 8 + [f'buffer_load_dword v{vT1}, v{vYT}, {S(sWS)}, s{sPFY} offen sc1']
    pb = a.newlabel('L_Spub'); pr = a.newlabel('L_Spr')
    early[cfg.get('pubpos', 2)] = f's_cbranch_scc1 {pb}\n{pr}:'
    if cfg.get('nopf'): early = early[:8]
    def mbread(d, aa):
        return [f'ds_read2_b64 {vr(d,4)}, v{vMB} offset0:{128*aa} offset1:{128*aa+4}', f'ds_read2_b64 {vr(d+4,4)}, v{vMB} offset0:{128*aa+64} offset1:{128*aa+68}']
    def s_step(aa, TA, MBr):
        return [f'v_smfmac_f32_16x16x64_bf16 {vr(SACC,4)}, {vr(TA,4)}, {vr(XB+aa*16,8)}, v{vIDX}',
                f'v_smfmac_f32_16x16x64_bf16 {vr(SACC+4,4)}, {vr(TA,4)}, {vr(XB+aa*16+8,8)}, v{vIDX}',
                f'v_smfmac_f32_16x16x64_bf16 {vr(SACC+8,4)}, {vr(TA,4)}, {vr(MBr,8)}, v{vIDX}']
    def trread(aa, d):
        return [f'ds_read_b64_tr_b16 {vr(d,2)}, v{vTR} offset:{aa*1024}', f'ds_read_b64_tr_b16 {vr(d+2,2)}, v{vTR} offset:{aa*1024+128}']
    extra = {1: [f'ds_read2_b32 {vr(XB+30,2)}, v{vMK} offset0:0 offset1:8'], 2: mbread(ACC, 0), 4: mbread(ACC + 8, 1), 5: trread(0, ACC + 16), 6: trread(1, ACC + 20)}
    def pubstub():
        a.label(pb)
        a(f'''buffer_store_dwordx4 {vr(MA,4)}, v{vPOLL}, {S(sWS)}, s{sMSO} offen sc1
              buffer_store_dwordx4 {vr(MA+4,4)}, v{vPOLL}, {S(sWS)}, s{sYO} offen sc1
              s_branch {pr}''')
    tail.append(pubstub)
    stage1(a, early, extra, cfg, cfg.get('sdepth', 2), done, cfg.get('pw', 0), skip=cfg.get('fakeE', ()))
    stamp(a, cfg, 1); probe(a, cfg, 'A')
    s0 = s_step(0, ACC + 16, ACC)
    s1 = s_step(1, ACC + 20, ACC + 8)
    pub = f'''buffer_store_dwordx4 {vr(MA,4)}, v{vPOLL}, {S(sWS)}, s{sMSO} offen sc1
          buffer_store_dwordx4 {vr(MA+4,4)}, v{vPOLL}, {S(sWS)}, s{sYO} offen sc1'''
    T6 = ACC + 24; D2 = MA + 8
    a('s_waitcnt lgkmcnt(3)')
    a(s0[0]); a(s0[1])
    a(f'''v_cvt_pk_bf16_f32 v{T6}, v{T6}, v{T6+1}
          v_cvt_pk_bf16_f32 v{T6+1}, v{T6+2}, v{T6+3}''')
    if cfg.get('tord', 0) == 0: a(s0[2])
    a(f'v_mfma_f32_16x16x16_bf16 {vr(D2,4)}, {vr(T6,2)}, {vr(XB+22,2)}, 0')
    if cfg.get('tord', 0) == 1: a(s0[2])
    a('s_waitcnt lgkmcnt(0)')
    a(s1[2])
    if cfg.get('tord', 0) == 0: a(s1[0])
    a(f'''v_cvt_pk_bf16_f32 v{D2}, v{D2}, v{D2+1}
          v_cvt_pk_bf16_f32 v{D2+1}, v{D2+2}, v{D2+3}''')
    probe(a, cfg, 'B')
    fin = [f'v_mfma_f32_16x16x16_bf16 {vr(SACC+4*k,4)}, {vr(D2,2)}, {vr(XB+(20,28,30)[k],2)}, {vr(SACC+4*k,4)}' for k in range(3)]
    if cfg.get('tord', 0) == 0:
        a(s1[1]); a(fin[2]); a(fin[0]); a(fin[1])
    else:
        for x in (s1[0], fin[2], s1[1], fin[0], fin[1]): a(x)
    d = SACC; t = ACC
    a(f'''v_add_f32 v{d+8}, v{d+8}, v{d+10}
          v_add_f32 v{d+9}, v{d+9}, v{d+11}
          ds_write2_b32 v{vSW2}, v{d+8}, v{d+9} offset0:0 offset1:128
          v_add_f32 v{t}, v{d}, v{d+2}
          v_add_f32 v{t+2}, v{d+1}, v{d+3}
          v_add_f32 v{t+1}, v{d+4}, v{d+6}
          v_add_f32 v{t+3}, v{d+5}, v{d+7}
          ds_write2_b64 v{vSW}, {vr(t,2)}, {vr(t+2,2)} offset0:0 offset1:64''')
    t = ACC + 4; e = t + 12
    probe(a, cfg, 'C')
    again = a.newlabel('L_Sagain')
    red_sum(a, t, cfg, again, f's[{sYK}:{sYK+1}]')
    probe(a, cfg, 'D')
    a(f'''v_exp_f32 v{e}, v{t}
          v_exp_f32 v{e+1}, v{t+1}
          v_add_f32 v{e+4}, |v{t}|, |v{t+1}|
          v_add_f32 v{e+2}, v{e}, v{e+1}
          v_cmp_nge_f32 vcc, s{sTHR}, v{e+4}''')
    def butterfly(op, r, tmp, mid=None):
        for k, m in enumerate(('quad_perm:[1,0,3,2]', 'quad_perm:[2,3,0,1]', 'row_half_mirror', 'row_mirror')):
            a.I(f'{op}_dpp v{r}, v{r}, v{r} {m} row_mask:0xf bank_mask:0xf')
            if k == 2 and mid: a(mid)
        a(f'v_mov_b32 v{tmp}, v{r}')
        a(f'v_permlane16_swap_b32 v{r}, v{tmp}')
        a(f'{op} v{r}, v{r}, v{tmp}')
    butterfly('v_add_f32', e + 2, e + 3, f's_and_b64 vcc, vcc, s[{sVALID}:{sVALID+1}]\ns_cbranch_scc1 {slow}')
    a.label(back)
    a(f'''v_rcp_f32 v{e+2}, v{e+2}
          v_mul_f32 v{e}, v{e}, v{e+2}
          v_mul_f32 v{e+1}, v{e+1}, v{e+2}
          v_cvt_pk_bf16_f32 v{e}, |v{e}|, |v{e+1}|''')
    probe(a, cfg, 'E')
    a(f'''buffer_store_dword v{e}, v{vPS}, {S(sWS)}, s{sFAST} offen
          buffer_store_dword v{e}, v{vPS}, {S(sWS)}, s{sSLOW} offen sc1''')
    stamp(a, cfg, 3)
    red_reset(a, t)
    if cfg.get('sbar', 1): a('s_barrier')
    dump_stamps(a, cfg)
    a(f'''s_add_u32 s{sHO}, s{sHO}, {REC_STR}
          s_add_u32 s{sHO2}, s{sHO2}, {REC_STR}
          s_add_u32 s{sPO}, s{sPO}, {REC_STR}
          s_add_u32 s{sFAST}, s{sFAST}, {REC_STR}
          s_add_u32 s{sSLOW}, s{sSLOW}, {REC_STR}
          s_add_u32 s{sMSO}, s{sMSO}, {REC_STR}
          s_add_u32 s{sYO}, s{sYO}, {REC_STR}
          s_add_u32 s{sPFY}, s{sPFY}, {16*32768}
          s_add_u32 s{sS}, s{sS}, 1
          s_cmp_lt_u32 s{sS}, 63
          s_cbranch_scc1 {top}
          s_cmp_ge_u32 s{sROLE}, 1
          s_cbranch_scc1 {done}''')
    poll_sent(a, [f'buffer_load_dwordx4 {vr(MA,4)}, v{vPOLL}, {S(sWS)}, s{sHO} offen sc1',
                  f'buffer_load_dwordx4 {vr(MA+4,4)}, v{vPOLL}, {S(sWS)}, s{sHO2} offen sc1'], range(MA, MA+8), done, MA+8, sleep=0)
    a(pub)
    a(f's_branch {done}')
    a.label(slow)
    red_check(a, t, again, done)
    a(f'v_max_f32 v{e+2}, v{t}, v{t+1}')
    butterfly('v_max_f32', e + 2, e + 3)
    a(f'''v_sub_f32 v{t}, v{t}, v{e+2}
          v_sub_f32 v{t+1}, v{t+1}, v{e+2}
          v_exp_f32 v{e}, v{t}
          v_exp_f32 v{e+1}, v{t+1}
          v_add_f32 v{e+2}, v{e}, v{e+1}''')
    butterfly('v_add_f32', e + 2, e + 3)
    a(f's_branch {back}')
    for f in tail: f()

def role_V(a, cfg, done):
    vUW, vUR, vPP, vPP2, vMS, vMN, vOUT, vFY, vFO = vTW, vTR, vMB, vSW2, vPS, vX, vX2, vPF3, vPF2
    local_a(a, cfg, False, done)
    sk = a.newlabel('L_vs')
    a(f'''s_waitcnt vmcnt(0)
          s_barrier
          s_cmp_lg_u32 s{sW}, 0
          s_cbranch_scc1 {sk}
          v_mov_b32 v6, 0
          v_mov_b32 v7, 1
          s_mov_b64 exec, 1
          global_atomic_add v6, v7, s[{sDBG}:{sDBG+1}] offset:{4*D_SENT}
          s_mov_b64 exec, -1''')
    a.label(sk)
    mark(a, cfg, 6)
    lane_setup(a); common_setup(a)
    a(f'''s_lshl_b32 s{sT0}, s{sW}, 11
          s_add_u32 s{sT1}, s{sT0}, {L_T}
          v_lshlrev_b32 v{vUW}, 4, v{N}
          v_lshl_add_u32 v{vUW}, v{G}, 2, v{vUW}
          v_add_u32 v{vUW}, s{sT1}, v{vUW}
          v_mul_u32_u24 v{vUR}, 448, v{G}
          v_lshl_add_u32 v{vUR}, v{N}, 4, v{vUR}
          v_add_u32 v{vUR}, s{sT1}, v{vUR}
          s_mul_i32 s{sT1}, s{sW}, 2560
          v_mul_u32_u24 v6, 640, v{G}
          v_add_u32 v6, s{sT1}, v6
          v_lshl_add_u32 v{vPP}, v{N}, 4, v6
          v_lshrrev_b32 v7, 2, v{N}
          v_and_b32 v9, 1, v{N}
          v_lshl_add_u32 v7, v7, 1, v9
          v_lshl_add_u32 v{vPP2}, v7, 4, v6
          v_mov_b32 v8, {OOB}
          v_and_b32 v9, 2, v{N}
          v_cmp_eq_u32 vcc, 0, v9
          v_cndmask_b32 v{vPP2}, v8, v{vPP2}, vcc''')
    red_write_base(a, 6)
    a(f'''v_add_u32 v7, 26, v{N}
          v_cmp_gt_u32 vcc, 14, v{N}
          v_cndmask_b32 v7, v7, v{N}, vcc
          v_lshrrev_b32 v9, 1, v7
          v_lshl_add_u32 v{vSW}, v9, 4, v6
          v_and_b32 v9, 1, v7
          v_lshl_add_u32 v{vSW}, v9, 2, v{vSW}''')
    red_read_addr(a, N)
    a(f'''s_sub_u32 s{sT1}, s{sROLE}, 16
          s_mul_i32 s{sT2}, s{sT1}, 28
          v_lshlrev_b32 v6, 1, v5
          v_add_u32 v6, s{sT2}, v6
          v_lshrrev_b32 v7, 4, v6
          v_lshlrev_b32 v{vMS}, 8, v7
          v_and_b32 v9, 2, v6
          v_add_u32 v7, v9, v4
          v_lshl_add_u32 v{vMS}, v7, 4, v{vMS}
          v_and_b32 v7, 12, v6
          v_add_u32 v{vMS}, v7, v{vMS}
          s_lshl_b32 s{sT2}, s{sW}, 6
          v_add_u32 v{vMS}, s{sT2}, v{vMS}
          v_cmp_gt_u32 vcc, 14, v5
          v_cndmask_b32 v{vMS}, v8, v{vMS}, vcc
          s_mov_b64 s[{sVALID}:{sVALID+1}], vcc
          s_lshl_b32 s{sYO}, s{sT1}, 15
          s_lshl_b32 s{sT2}, s{sW}, 13
          s_add_u32 s{sYO}, s{sYO}, s{sT2}
          s_add_u32 s{sYO}, s{sYO}, {YF_OFF}
          s_add_u32 s{sYO2}, s{sYO}, 4096
          s_mov_b32 s{sPO}, {REC_OFF + R_P}
          s_mov_b32 s{sMSO}, {OOB}
          s_lshl_b32 s{sFY}, s{sT1}, 2
          s_add_u32 s{sFY}, s{sFY}, s{sW}
          s_lshl_b32 s{sFY}, s{sFY}, 5
          s_add_u32 s{sFY}, s{sFY}, {FL_OFF + F_Y}
          v_and_b32 v{vFO}, 7, v{L}
          v_lshlrev_b32 v{vFO}, 2, v{vFO}
          v_mov_b32 v{vFY}, 0
          s_mov_b32 s{sYK}, 0''')
    a(f's_sub_u32 s{sT3}, s{sROLE}, 16\ns_mov_b32 s{sXO}, 0')
    a(f'''s_mul_i32 s{sT1}, s{sT3}, 640
          s_add_u32 s{sT1}, s{sT1}, {2*REC_STR}
          v_lshlrev_b32 v6, 6, v{L}
          v_add_u32 v{vMN}, s{sT1}, v6
          s_mul_i32 s{sT1}, s{sT3}, 448
          s_add_u32 s{sT1}, s{sT1}, {3*REC_STR - R_P - 10*64}
          v_add_u32 v7, s{sT1}, v6
          v_cmp_gt_u32 vcc, 10, v{L}
          v_cndmask_b32 v{vMN}, v7, v{vMN}, vcc
          v_cmp_gt_u32 vcc, 17, v{vTID}
          v_cndmask_b32 v{vMN}, v8, v{vMN}, vcc
          s_mul_i32 s{sT1}, s{sT3}, {14*128}
          s_add_u32 s{sT1}, s{sT1}, {3*28672}
          s_mul_i32 s{sT2}, s{sW}, 448
          s_add_u32 s{sT1}, s{sT1}, s{sT2}
          v_add_u32 v{vXR}, s{sT1}, v6
          v_cmp_gt_u32 vcc, 7, v{L}
          v_cndmask_b32 v{vXR}, v8, v{vXR}, vcc''')
    red_reset(a, 12)
    wait_flags(a, FL_OFF + F_B, 56, 4, 1, done, L, 10, sleep=1)
    mark(a, cfg, 4)
    a(f's_mul_i32 s{sT0}, s{sROLE}, {WF_MAT}')
    load_weights(a)
    chain_mode(a, cfg, done)
    chain_start(a, done)
    mode_offsets(a, REC_OFF + REC_STR + R_MEMF, cfg)
    a(f'''s_add_u32 s{sPFY}, s{sHO}, {R_MSA}
          s_add_u32 s{sLX}, s{sHO2}, {R_MSA}
          s_cmp_eq_u32 s{sROLE}, 16
          s_cselect_b32 s{sPFY}, s{sPFY}, {OOB}
          s_cmp_eq_u32 s{sROLE}, 17
          s_cselect_b32 s{sLX}, s{sLX}, {OOB}''')
    mark(a, cfg, 5)
    top = a.newlabel('L_Vtop'); yok = a.newlabel('L_Vyok'); ychk = a.newlabel('L_Vychk')
    align(a, cfg.get('valign'))
    a.label(top)
    a(f'''s_cmp_lt_u32 s{sS}, s{sYK}
          s_cbranch_scc0 {ychk}''')
    a.label(yok)
    early = []; tail = []
    for f in (7, 6, 5, 4, 3, 2, 1, 0):
        early.append(f'buffer_load_dwordx4 {vr(XB+4*f,4)}, v{vPOLL}, {S(sWS)}, s{sYO if f<4 else sYO2} offen offset:{(f%4)*1024} sc1')
    z = [f'v_mov_b32 v{r}, 0' for r in range(ACC, ACC + 28)]
    for _ in range(cfg.get('yz', 0)): a(z.pop(0))
    for _ in range(cfg.get('ytop', 0)):
        a(early.pop())
        for _ in range(3):
            if z: a(z.pop(0))
    for x in z: a(x)
    if cfg.get('noy'): early = []
    if cfg.get('pub', 'Searly') == 'V':
        early = [f'buffer_store_dwordx4 {vr(MA,4)}, v{vPOLL}, {S(sWS)}, s{sPFY} offen sc1',
                 f'buffer_store_dwordx4 {vr(MA+4,4)}, v{vPOLL}, {S(sWS)}, s{sLX} offen sc1'] + early
    early += [f's_add_u32 s{sT0}, s{sS}, 3\ns_cmp_ge_u32 s{sT0}, s{sYK}\ns_cselect_b32 s{sT0}, s{sFY}, {OOB}\nbuffer_load_dword v{vFY}, v{vFO}, {S(sWS)}, s{sT0} offen sc1']
    if cfg.get('vyt', 1) == 2:
        early += [''] * cfg.get('vtd', 0) + [f'buffer_load_dword v{vT1}, v{vMN}, {S(sWS)}, s{sPO} offen sc1',
                  f'buffer_load_dword v{vT1}, v{vXR}, {S(sXS)}, s{sXO} offen\ns_add_u32 s{sXO}, s{sXO}, 28672',
                  f'v_lshlrev_b32 v{vT0}, 3, v{vPOLL}', f'v_max_u32 v{vT0}, {cfg.get("ymax", 6016) + 128}, v{vT0}',
                  f's_add_u32 s{sT0}, s{sYO}, {2*16*32768}\nbuffer_load_dword v{vT1}, v{vT0}, {S(sWS)}, s{sT0} offen sc1']
    PA = ACC
    pl = [f'buffer_load_dwordx4 {vr(PA,4)}, v{vPP2}, {S(sWS)}, s{sPO} offen offset:512 sc1',
          f'buffer_load_dwordx4 {vr(PA+4,4)}, v{vPP}, {S(sWS)}, s{sPO} offen sc1',
          f'buffer_load_dwordx4 {vr(PA+8,4)}, v{vPP}, {S(sWS)}, s{sPO} offen offset:256 sc1']
    stage1(a, [''] * cfg.get('ydelay', 0) + early, {cfg.get('pwin', 5): pl}, cfg, cfg.get('vdepth', 1), done, cfg.get('vmw', 8))
    for x in post_ops(6): a(x)
    a(f'''ds_read_b128 {vr(SACC,4)}, v{vUR}
          ds_read_b128 {vr(SACC+4,4)}, v{vUR} offset:224
          s_mov_b32 s{sTO}, 0x40000''')
    lp = a.newlabel('L_pp')
    a.label(lp)
    for x in pl: a(x)
    a(f'''s_sub_u32 s{sTO}, s{sTO}, 1
          s_cbranch_scc1 {done}''')
    warm(a, cfg.get('vpw', 0))
    d = MA + 8
    mf = [f'v_mfma_f32_16x16x32_bf16 {vr(d+4*nt,4)}, {vr(PA,4)}, {vr(SACC+4*nt,4)}, 0' for nt in range(2)]
    for i in range(2):
        mf += [f'v_smfmac_f32_16x16x64_bf16 {vr(d+4*nt,4)}, {vr(PA+4+4*i,4)}, {vr(XB+(i*2+nt)*8,8)}, v{vIDX}' for nt in range(2)]
    a(f'''s_waitcnt vmcnt(5) lgkmcnt(0)
          v_max3_u32 v{vT0}, v{PA}, v{PA+1}, v{PA+2}
          v_max_u32 v{vT0}, v{vT0}, v{PA+3}''')
    stamp(a, cfg, 2)
    sp = cfg.get('vspec', 2)
    if sp >= 4: a(mf.pop(0)); a(mf.pop(0))
    for i in range(2):
        r = PA + 4 + 4*i
        a(f'''s_waitcnt vmcnt({4-i})
              v_max3_u32 v{vT0}, v{vT0}, v{r}, v{r+1}
              v_max3_u32 v{vT0}, v{vT0}, v{r+2}, v{r+3}''')
        if sp == 6 and i == 0: a(mf.pop(0)); a(mf.pop(0))
    a(f'v_cmp_eq_u32 vcc, -1, v{vT0}')
    a(mf.pop(0)); a(mf.pop(0))
    a(f's_cbranch_vccnz {lp}')
    stamp(a, cfg, 1)
    for x in mf: a(x)
    a(f'''v_add_f32 v{d}, v{d}, v{d+2}
          v_add_f32 v{d+1}, v{d+1}, v{d+3}
          ds_write2_b32 v{vSW}, v{d}, v{d+1} offset0:0 offset1:128
          v_add_f32 v{d+4}, v{d+4}, v{d+6}
          v_add_f32 v{d+5}, v{d+5}, v{d+7}
          ds_write2_b32 v{vSW}, v{d+4}, v{d+5} offset0:28 offset1:156''')
    t = ACC + 12
    again = a.newlabel('L_Vagain'); chk = a.newlabel('L_Vchk'); go = a.newlabel('L_Vgo')
    red_sum(a, t, cfg, again)
    st = f'''buffer_store_dword v{vOUT}, v{vMS}, {S(sWS)}, s{sFAST} offen
          buffer_store_dword v{vOUT}, v{vMS}, {S(sWS)}, s{sSLOW} offen sc1'''
    a(f'''v_cmp_o_f32 vcc, v{t}, v{t+1}
          v_cvt_pk_bf16_f32 v{vOUT}, v{t}, v{t+1}
          v_cndmask_b32 v{vOUT}, -1, v{vOUT}, vcc''')
    a(st)
    a(f'''s_andn2_b64 vcc, s[{sVALID}:{sVALID+1}], vcc
          s_cbranch_scc1 {chk}''')
    a.label(go)
    if cfg.get('vyt', 1) == 1:
        a(f'''v_lshlrev_b32 v{vT0}, 3, v{vPOLL}
              v_max_u32 v{vT0}, {cfg.get("ymax", 6016) + 128}, v{vT0}
              s_add_u32 s{sT0}, s{sYO}, {cfg.get('vya', 2)*16*32768}
              s_waitcnt vmcnt(2)
              s_barrier
              buffer_load_dword v{vT1}, v{vMN}, {S(sWS)}, s{sPO} offen sc1
              buffer_load_dword v{vT1}, v{vXR}, {S(sXS)}, s{sXO} offen
              buffer_load_dword v{vT1}, v{vT0}, {S(sWS)}, s{sT0} offen sc1
              s_add_u32 s{sXO}, s{sXO}, 28672''')
    def vchk():
        a.label(chk)
        a('s_waitcnt vmcnt(0)')
        red_check(a, t, again, done)
        a(f'''v_cvt_pk_bf16_f32 v{vOUT}, v{t}, v{t+1}
              v_min_u32 v{vOUT}, -2, v{vOUT}''')
        a(st)
        a(f's_branch {go}')
    tail.append(vchk)
    stamp(a, cfg, 3)
    red_reset(a, t)
    dump_stamps(a, cfg)
    a(f'''s_add_u32 s{sHO}, s{sHO}, {REC_STR}
          s_add_u32 s{sHO2}, s{sHO2}, {REC_STR}
          s_add_u32 s{sPO}, s{sPO}, {REC_STR}
          s_add_u32 s{sFAST}, s{sFAST}, {REC_STR}
          s_add_u32 s{sSLOW}, s{sSLOW}, {REC_STR}
          s_add_u32 s{sYO}, s{sYO}, {16*32768}
          s_add_u32 s{sYO2}, s{sYO2}, {16*32768}
          s_add_u32 s{sMSO}, s{sPO}, {R_MSA - R_P}
          s_add_u32 s{sPFY}, s{sPFY}, {REC_STR}
          s_add_u32 s{sLX}, s{sLX}, {REC_STR}
          s_add_u32 s{sS}, s{sS}, 1
          s_cmp_lt_u32 s{sS}, 63
          s_cbranch_scc1 {top}
          s_branch {done}''')
    a.label(ychk)
    a(f's_mov_b32 s{sTO}, 0x20000')
    yl = a.newlabel('L_Vyl')
    a.label(yl)
    a(f's_mov_b32 s{sYK}, 1000')
    for r in range(NRO):
        a(f'''v_readlane_b32 s{sT0}, v{vFY}, {r}
              s_mul_i32 s{sT0}, s{sT0}, {NRO}
              s_add_u32 s{sT0}, s{sT0}, {r}
              s_min_u32 s{sYK}, s{sYK}, s{sT0}''')
    a(f'''s_cmp_lt_u32 s{sS}, s{sYK}
          s_cbranch_scc1 {yok}
          buffer_load_dword v{vFY}, v{vFO}, {S(sWS)}, s{sFY} offen sc1
          s_waitcnt vmcnt(0)
          s_sub_u32 s{sTO}, s{sTO}, 1
          s_cbranch_scc0 {yl}
          s_branch {done}''')
    for f in tail: f()
```

```python
from asmlib import *

WS_SIZE = 1 << 28
WF_OFF  = 0
WF_MAT  = 401408
YF_OFF  = 0x1000000
REC_OFF = 0x3000000
REC_STR = 0x11000
R_MEMF  = 0
R_P     = 0x2000
R_MSA   = 0x5000
R_PX    = 0x7000
OA_OFF  = 0x3600000
G_OFF   = 0x3800000
KVP_OFF = 0x3810000
FL_OFF  = 0x3900000
F_B = 0; F_A = 1024; F_Y = 2048; F_KV = 4096; F_O = 5120; F_L = 6144; FL_SIZE = 8192
DBG_OFF = 0x3A00000
WL_OFF  = 0x4000000
OOB     = 0x40000000
LDS_SIZE = 151552
L_ROLE  = LDS_SIZE - 16
LOG2E_HEX = 0x3fb8aa3b
ASCALE_HEX = 0x3db8aa3b
NRO = 6; NRX = 4

D_MODE = 0; D_SENT = 1; D_FLAGS_OK = 32; D_SENT2 = 33; D_GO = 34

sWS = 4; sXS = 8
sW = 12; sROLE = 13; sS = 14
sTO = 20
sT0 = 24; sT1 = 25; sT2 = 26; sT3 = 27
sR1 = 32; sR2 = 36
sDBG = 40
sM = 42
sXCC = 3
sX0 = 47
sPT = 46

L, N, G = 20, 21, 22
vTID = 119

def lane_setup(a):
    a(f'''v_and_b32 v{L}, 63, v{vTID}
          v_and_b32 v{N}, 15, v{vTID}
          v_bfe_u32 v{G}, v{vTID}, 4, 2''')

def wreg(j, i, n=8, h=0):
    t = j * 7 + i
    if t < 32: f, b = 'a', t * 8
    else: f, b = 'v', 120 + (t - 32) * 8
    return vr(b + 4 * h, n, f)

def srd(a, r, slot, nbytes):
    a(f'''s_load_dwordx2 s[{r}:{r+1}], s[0:1], {slot*8}
          s_mov_b32 s{r+2}, {nbytes}
          s_mov_b32 s{r+3}, 0x20000
          s_waitcnt lgkmcnt(0)''')

def S(r): return f's[{r}:{r+3}]'

def wait_dbg(a, idx, val, abort, t0, t1, sleep=2):
    lp = a.newlabel('L_wd'); dn = a.newlabel('L_wdd')
    a(f'''s_mov_b32 s{sTO}, 0x20000
          v_mov_b32 v{t0}, 0''')
    a.label(lp)
    a(f'''global_load_dword v{t1}, v{t0}, s[{sDBG}:{sDBG+1}] offset:{4*idx} sc1
          s_waitcnt vmcnt(0)
          v_cmp_gt_u32 vcc, {val}, v{t1}
          s_cbranch_vccz {dn}
          s_sleep {sleep}
          s_sub_u32 s{sTO}, s{sTO}, 1
          s_cbranch_scc0 {lp}
          s_branch {abort}''')
    a.label(dn)

def wait_flags(a, soff, nl, width, thr, abort, lane, t, sleep=2):
    lp = a.newlabel('L_wf'); dn = a.newlabel('L_wfd')
    sh = {1: 2, 4: 4}[width]
    a(f'''s_mov_b32 s{sTO}, 0x20000
          v_lshlrev_b32 v{t+4}, {sh}, v{lane}
          v_cmp_gt_u32 s[{sM}:{sM+1}], {nl}, v{lane}''')
    if not isinstance(soff, str):
        a(f's_mov_b32 s{sT3}, {soff}'); soff = f's{sT3}'
    a.label(lp)
    if width == 4:
        a(f'''buffer_load_dwordx4 {vr(t,4)}, v{t+4}, {S(sWS)}, {soff} offen sc1
              s_waitcnt vmcnt(0)
              v_min3_u32 v{t}, v{t}, v{t+1}, v{t+2}
              v_min_u32 v{t}, v{t}, v{t+3}''')
    else:
        a(f'''buffer_load_dword v{t}, v{t+4}, {S(sWS)}, {soff} offen sc1
              s_waitcnt vmcnt(0)''')
    a(f'''v_cmp_gt_u32 vcc, {thr}, v{t}
          s_and_b64 vcc, vcc, s[{sM}:{sM+1}]
          s_cbranch_scc0 {dn}
          s_sleep {sleep}
          s_sub_u32 s{sTO}, s{sTO}, 1
          s_cbranch_scc0 {lp}
          s_branch {abort}''')
    a.label(dn)

def poll_sent(a, loads, regs, abort, t, sleep=1):
    lp = a.newlabel('L_ps'); dn = a.newlabel('L_psd')
    a(f's_mov_b32 s{sTO}, 0x20000')
    a.label(lp)
    for x in loads: a(x)
    a('s_waitcnt vmcnt(0)')
    r = list(regs)
    a(f'v_max_u32 v{t}, v{r[0]}, v{r[1]}')
    for k in range(2, len(r), 2): a(f'v_max3_u32 v{t}, v{t}, v{r[k]}, v{r[k+1]}')
    a(f'''v_cmp_eq_u32 vcc, -1, v{t}
          s_cbranch_vccz {dn}
          s_sleep {sleep}
          s_sub_u32 s{sTO}, s{sTO}, 1
          s_cbranch_scc0 {lp}
          s_branch {abort}''')
    a.label(dn)

def frag_src_lane(a, dst, rowstride, t0, t1, perm=False):
    a(f'''v_lshrrev_b32 v{t0}, 2, v{L}
          v_lshrrev_b32 v{t1}, 5, v{L}
          v_lshlrev_b32 v{t1}, 1, v{t1}
          v_and_b32 v{dst}, 3, v{L}
          v_xor_b32 v{t1}, v{t1}, v{dst}''')
    if perm:
        a(f'''v_and_b32 v{dst}, 12, v{t0}
              v_add_u32 v{t0}, v{t0}, v{dst}''')
    a(f'''s_mov_b32 s{sT3}, {rowstride}
          v_mul_lo_u32 v{dst}, v{t0}, s{sT3}
          v_lshl_add_u32 v{dst}, v{t1}, 4, v{dst}''')

def frag_read_lane(a, dst, t0):
    a(f'''v_lshrrev_b32 v{t0}, 3, v{N}
          v_lshlrev_b32 v{t0}, 1, v{t0}
          v_xor_b32 v{t0}, v{t0}, v{G}
          v_lshlrev_b32 v{dst}, 6, v{N}
          v_lshl_add_u32 v{dst}, v{t0}, 4, v{dst}''')

def mark(a, cfg, k, r=12):
    if cfg.get('dbgt'):
        if k == 0: a('s_memrealtime s[80:81]\ns_waitcnt lgkmcnt(0)'); return
        key = (cfg.get('_role', ''), k)
        slot = {('S', 1): 0, ('S', 2): 1, ('S', 5): 2, ('V', 4): 3, ('V', 5): 4, ('', 1): 5, ('', 2): 6, ('O', 5): 7, ('O', 6): 8, ('F', 7): 9}.get(key)
        if slot is None: return
        a(f'''s_memrealtime s[60:61]
              s_waitcnt lgkmcnt(0)
              s_sub_u32 s60, s60, s80
              v_mov_b32 v{r}, s60
              v_mov_b32 v{r+1}, 0
              s_mov_b64 exec, 1
              global_atomic_umax v{r+1}, v{r}, s[{sDBG}:{sDBG+1}] offset:{4*(4+slot)}
              s_mov_b64 exec, -1''')
        return
    if not cfg.get('marks'): return
    a(f'''s_memrealtime s[60:61]
          s_memtime s[64:65]
          s_lshl_b32 s62, s2, 6
          s_add_u32 s62, s62, {DBG_OFF + 4*k}
          s_cmp_eq_u32 s{sW}, 0
          s_cselect_b32 s62, s62, {OOB}
          s_waitcnt lgkmcnt(0)
          v_mov_b32 v{r}, s60
          v_mov_b32 v{r+1}, 0
          buffer_store_dword v{r}, v{r+1}, {S(sWS)}, s62 offen
          s_add_u32 s63, s62, 0x8000
          v_mov_b32 v{r}, s64
          buffer_store_dword v{r}, v{r+1}, {S(sWS)}, s63 offen''')

def gate_go(a, cfg, abort, t0, t1):
    if not cfg.get('gate', 1): return
    g0 = a.newlabel('L_g')
    a(f's_cmp_lg_u32 s{sW}, 0\ns_cbranch_scc1 {g0}')
    wait_dbg(a, D_GO, 32, abort, t0, t1, sleep=16)
    a.label(g0)
    a('s_barrier')
```

```python
import sys, json
from common import *
import chain, pre, workers, ba

NAME = 'gated_mix__linear_kernel_hedgehog__memory_aug_recurrent_mem_tr__prompt'
def generate(cfg):
    a = Asm()
    K = NAME + '_kernel'
    hdr = open('cdna_kernels/' + NAME + '.s.ref').read().split('; Override launch')[0]
    a.raw(hdr.rstrip())
    a.raw(f'; @launch grid=(256,1,1) block=(256,1,1) lds={LDS_SIZE}')
    a.raw('.amdgcn_target "amdgcn-amd-amdhsa--gfx950"\n.text\n.globl %s\n.p2align 8\n.type %s,@function\n%s:' % (K, K, K))
    a(f'''s_cmp_ge_u32 s2, 256
          s_cbranch_scc1 L_end
          s_getpc_b64 s[{sT2}:{sT3}]
L_pc:
          s_bfe_u32 s{sT0}, s2, 0x30003
          s_lshl_b32 s{sT0}, s{sT0}, 15
          v_lshlrev_b32 v1, 7, v0
          v_add_u32 v1, s{sT0}, v1
          v_min_u32 v1, L_end-L_pc, v1
          global_load_dword v117, v1, s[{sT2}:{sT3}]
          s_load_dwordx2 s[{sXS}:{sXS+1}], s[0:1], 0
          s_load_dwordx2 s[{sDBG}:{sDBG+1}], s[0:1], 104
          s_load_dwordx2 s[{sWS}:{sWS+1}], s[0:1], 112
          s_getreg_b32 s{sXCC}, hwreg(HW_REG_XCC_ID, 0, 4)
          s_and_b32 s{sXCC}, s{sXCC}, 7
          s_mov_b32 s{sWS+2}, {WS_SIZE}
          s_mov_b32 s{sWS+3}, 0x20000
          s_mov_b32 s{sXS+2}, 1835008
          s_mov_b32 s{sXS+3}, 0x20000
          v_mov_b32 v{vTID}, v0
          s_mov_b32 s70, 0
          v_lshrrev_b32 v1, 6, v0
          v_readfirstlane_b32 s{sW}, v1
          s_and_b32 s{sT0}, s2, 7
          s_lshl_b32 s{sROLE}, s{sT0}, 5
          s_lshr_b32 s{sT1}, s2, 3
          s_add_u32 s{sROLE}, s{sROLE}, s{sT1}
          s_waitcnt lgkmcnt(0)''')
    mark(a, cfg, 0)
    a(f'''s_cmp_lt_u32 s{sROLE}, 16
          s_cbranch_scc1 L_S
          s_cmp_lt_u32 s{sROLE}, 32
          s_cbranch_scc1 L_V''')
    pre.p_phase(a, cfg, 'L_end')
    chain.v_mem0(a, cfg)
    mark(a, cfg, 3)
    a(f'''s_cmp_lt_u32 s{sROLE}, 128
          s_cbranch_scc1 L_O
          s_cmp_lt_u32 s{sROLE}, 192
          s_cbranch_scc1 L_X
          s_branch L_BA''')
    cfg['_role'] = 'S'; a.label('L_S'); chain.role_S(a, cfg, 'L_fin')
    cfg['_role'] = 'V'; a.label('L_V'); chain.role_V(a, cfg, 'L_fin')
    cfg['_role'] = 'O'; a.label('L_O'); workers.role_O(a, cfg, 'L_fin')
    cfg['_role'] = 'X'; a.label('L_X'); workers.role_X(a, cfg, 'L_fin')
    cfg['_role'] = 'BA'; a.label('L_BA'); ba.role_BA(a, cfg, 'L_fin')
    a.label('L_fin')
    cfg['_role'] = 'F'
    if cfg.get('dbgt'):
        a('s_waitcnt vmcnt(0) lgkmcnt(0)'); mark(a, cfg, 7)
    if cfg.get('marks'):
        a('s_waitcnt vmcnt(0) lgkmcnt(0)')
        mark(a, cfg, 7)
        a(f'''s_add_u32 s62, s62, 4
              v_mov_b32 v12, s{sROLE}
              buffer_store_dword v12, v13, {S(sWS)}, s62 offen
              s_add_u32 s62, s62, 4
              v_mov_b32 v14, s70
              buffer_store_dword v14, v13, {S(sWS)}, s62 offen''')
    a('L_end:\ns_endpgm')

    a.raw('''.section .rodata,"a"
.p2align 6
.amdhsa_kernel %s
  .amdhsa_next_free_vgpr 512
  .amdhsa_next_free_sgpr 96
  .amdhsa_accum_offset 256
  .amdhsa_group_segment_fixed_size 0
  .amdhsa_kernarg_size 120
  .amdhsa_user_sgpr_count 2
  .amdhsa_user_sgpr_kernarg_segment_ptr 1
  .amdhsa_system_sgpr_workgroup_id_x 1
  .amdhsa_float_denorm_mode_32 3
.end_amdhsa_kernel''' % K)
    return a

if __name__ == '__main__':
    cfg = json.loads(sys.argv[1]) if len(sys.argv) > 1 else {}
    out = sys.argv[2] if len(sys.argv) > 2 else 'cdna_kernels/' + NAME + '.s'
    a = generate(cfg)
    open(out, 'w').write(a.text())
    print('instructions', len(a.ins), 'nops inserted', a.nops_inserted)
    open(out+'.trlog','w').write('\n'.join(a.tr_log))
```

```python
from common import *

L_MEM = 0
L_T   = 8192
L_RED = 16384
L_X   = 65536

MA = 0; ACC = 28; XB = 56; SACC = 88
vIDX, vPOLL, vLM, vLA, vLB, vLC, vTW, vTR, vMB, vSW, vSW2, vSR, vPS, vX, vX2, vXR, vPF3, vPF2, vT0, vT1 = range(100, 120)
sHO = 15; sHO2 = 16; sXO = 17; sYO = 18; sYO2 = 19; sTHR = 21
sVALID = 22
sMSO = 28; sPFY = 29; sPO = 30; sLX = 31
sFAST = 44; sSLOW = 45; sYK = 34; sFY = 35; sMODE = 46
ST0 = 48

def slot_map(w):
    if w < 3: return [2*w, 2*w+1, 2*((w+1)%3), 2*((w+1)%3)+1, 2*((w+2)%3), 2*((w+2)%3)+1, 6]
    return [6, 0, 2, 3, 4, 5, 1]
def pack_map(w): return sum(k << (4*i) for i, k in enumerate(slot_map(w)))

def load_weights(a, rot=True, tiles=range(7), start=None):
    a(f'''s_mul_i32 s{sT1}, s{sW}, {7*14*1024}
          s_add_u32 s{sT1}, s{sT1}, s{sT0}''')
    if rot:
        a(f'''s_mov_b32 s{sT3}, {pack_map(0)}
              s_cmp_eq_u32 s{sW}, 1
              s_cselect_b32 s{sT3}, {pack_map(1)}, s{sT3}
              s_cmp_eq_u32 s{sW}, 2
              s_cselect_b32 s{sT3}, {pack_map(2)}, s{sT3}
              s_cmp_eq_u32 s{sW}, 3
              s_cselect_b32 s{sT3}, {pack_map(3)}, s{sT3}''')
    if start:
        lp = a.newlabel('L_lw'); a(f's_mov_b32 s{sT0}, 0'); a.label(lp)
    for i in range(7):
        if start:
            sk = a.newlabel('L_lws')
            a(f'''s_cmp_lt_u32 {i}, {start}
                  s_cselect_b32 s{sT3}, 1, 0
                  s_cmp_lg_u32 s{sT3}, s{sT0}
                  s_cbranch_scc1 {sk}''')
        if rot:
            a(f's_bfe_u32 s{sT2}, s{sT3}, {(4 << 16) | (4*i)}')
            if i in (2, 4, 6):
                a(f'''s_lshl_b32 s{sT0}, s{sT2}, 10
                      v_add_u32 v{ {2: vLA, 4: vLB, 6: vLC}[i] }, s{sT0}, v{vPOLL}''')
            a(f'''s_lshl_b32 s{sT2}, s{sT2}, 11
                  s_add_u32 s{sT2}, s{sT2}, s{sT1}''')
        else:
            a(f's_add_u32 s{sT2}, s{sT1}, {i*2048}')
        for j in range(7):
            if j: a(f's_add_u32 s{sT2}, s{sT2}, {14*1024}')
            if j not in tiles: continue
            a(f'buffer_load_dwordx4 {wreg(j,i,4,0)}, v{vPOLL}, {S(sWS)}, s{sT2} offen sc1')
            a(f'buffer_load_dwordx4 {wreg(j,i,4,1)}, v{vPOLL}, {S(sWS)}, s{sT2} offen offset:1024 sc1')
        if start: a.label(sk)
    if start:
        a(f's_add_u32 s{sT0}, s{sT0}, 1\ns_cmp_lt_u32 s{sT0}, 2\ns_cbranch_scc1 {lp}')

def idx_setup(a):
    a(f'''v_lshlrev_b32 v{vPOLL}, 4, v{L}
          v_mov_b32 v{vIDX}, 0x4444
          v_mov_b32 v1, 0xeeee
          v_and_b32 v2, 2, v{N}
          v_cmp_ne_u32 vcc, 0, v2
          v_cndmask_b32 v{vIDX}, v{vIDX}, v1, vcc''')

def common_setup(a):
    idx_setup(a)
    a(f'''s_lshl_b32 s{sT0}, s{sW}, 11
          v_add_u32 v{vLM}, s{sT0}, v{vPOLL}
          v_lshrrev_b32 v4, 5, v{L}
          v_and_b32 v5, 31, v{L}''')

def red_read_addr(a, colreg):
    a(f'''v_lshlrev_b32 v{vSR}, 9, v4
          v_lshl_add_u32 v{vSR}, v{colreg}, 4, v{vSR}
          s_lshl_b32 s{sT1}, s{sW}, 10
          s_add_u32 s{sT1}, s{sT1}, {L_RED}
          v_add_u32 v{vSR}, s{sT1}, v{vSR}''')

def red_write_base(a, dst):
    a(f'''s_lshr_b32 s{sT1}, s{sW}, 1
          s_lshl_b32 s{sT1}, s{sT1}, 12
          s_and_b32 s{sT2}, s{sW}, 1
          s_lshl_b32 s{sT2}, s{sT2}, 3
          s_add_u32 s{sT1}, s{sT1}, s{sT2}
          s_add_u32 s{sT1}, s{sT1}, {L_RED}
          v_lshlrev_b32 v{dst}, 10, v{G}
          v_add_u32 v{dst}, s{sT1}, v{dst}''')

def warm(a, n):
    for _ in range(n): a(f'v_mov_b32 v{vT1}, v{vT1}\ns_nop 2')

def smf(a, d, A, B): a(f'v_smfmac_f32_16x16x64_bf16 {vr(d,4)}, {vr(A,4)}, {B}, v{vIDX}')

def post_ops(j, d=None):
    d = ACC + 4 * j if d is None else d
    return [f'v_add_f32 v{d}, v{d}, v{d+2}', f'v_add_f32 v{d+1}, v{d+1}, v{d+3}',
            f'v_cvt_pk_bf16_f32 v{d}, v{d}, v{d+1}', f'ds_write_b32 v{vTW}, v{d} offset:{j*256}']

def stage1(a, early, extra, cfg, depth, abort, pw, skip=()):
    lp = a.newlabel('L_mp'); rt = a.newlabel('L_mretry')
    ld = [f'buffer_load_dwordx4 {vr(MA,4)}, v{vPOLL}, {S(sWS)}, s{sHO} offen sc1',
          f'buffer_load_dwordx4 {vr(MA+4,4)}, v{vPOLL}, {S(sWS)}, s{sHO2} offen sc1']
    a(f's_mov_b32 s{sTO}, 0x40000')
    for d in range(depth - 1):
        for x in ld: a(x)
        warm(a, cfg.get('stag', 6))
    a.label(lp)
    for x in ld: a(x)
    a(f'''s_sub_u32 s{sTO}, s{sTO}, 1
          s_cbranch_scc1 {abort}
          s_cmp_eq_u32 s{sROLE}, 0''')
    warm(a, pw)
    a(f'''s_waitcnt vmcnt({2*(depth-1)+1})
          v_max3_u32 v{vT0}, v{MA}, v{MA+1}, v{MA+2}
          v_max_u32 v{vT0}, v{vT0}, v{MA+3}
          s_waitcnt vmcnt({2*(depth-1)})
          v_max3_u32 v{vT0}, v{vT0}, v{MA+4}, v{MA+5}
          v_max3_u32 v{vT0}, v{vT0}, v{MA+6}, v{MA+7}
          v_cmp_eq_u32 vcc, -1, v{vT0}''')
    wr = [f'ds_write_b128 v{vLM}, {vr(MA,4)}', f'ds_write_b128 v{vLM}, {vr(MA+4,4)} offset:1024']
    nw = cfg.get('specw', 1)
    for x in wr[:nw]: a(x)
    a(f's_cbranch_vccnz {lp}')
    stamp(a, cfg, 0)
    q = wr[nw:] + list(early)
    rd = [f'ds_read_b128 {vr(MA+8,4)}, v{vLA}', f'ds_read_b128 {vr(MA+12,4)}, v{vLA} offset:1024',
          f'ds_read_b128 {vr(MA+16,4)}, v{vLB}', f'ds_read_b128 {vr(MA+20,4)}, v{vLB} offset:1024',
          f'ds_read_b128 {vr(MA+24,4)}, v{vLC}']
    def pop():
        x = q.pop(0)
        if x: a(x)
    k = 0
    for i in range(2):
        for j in range(7):
            if j in skip: continue
            smf(a, ACC + 4 * j, MA + 4 * i, wreg(j, i))
            k += 1
            if k == cfg.get('barpos', 8):
                a('s_waitcnt lgkmcnt(0)\ns_barrier')
                for x in rd[:2]: a(x)
                q = rd[2:] + q
            elif q: pop()
    while any(x in rd for x in q): pop()
    probe(a, cfg, 'O')
    for j in range(7):
        for i in range(2, 7):
            if j == 0: a(f's_waitcnt lgkmcnt({6-i})')
            if j not in skip: smf(a, ACC + 4 * j, MA + 4 * i, wreg(j, i))
            if j > 0 and i == 3: q = q + post_ops(j - 1) + extra.get(j, [])
            if i == 2: probe(a, cfg, 'T%d' % j)
            for _ in range(2 if len([x for x in q if x]) > 5 else 1):
                if q: pop()
    while q: pop()

def align(a, pad):
    if pad is None: return
    a.raw('.p2align 6')
    for _ in range(pad): a('s_nop 0')

def zero_acc(a, regs):
    for r in regs: a(f'v_mov_b32 v{r}, 0')

def mode_prefetch(a):
    a(f'''v_mov_b32 v17, 0
          global_load_dwordx2 v[18:19], v17, s[{sDBG}:{sDBG+1}] offset:{4*D_MODE} sc1''')

def chain_mode(a, cfg, abort):
    lp = a.newlabel('L_cm'); dn = a.newlabel('L_cmd'); en = a.newlabel('L_cme')
    a(f'''s_mov_b32 s{sTO}, 0x20000
          s_branch {en}''')
    a.label(lp)
    mode_prefetch(a)
    a.label(en)
    a(f'''s_waitcnt vmcnt(0)
          v_readfirstlane_b32 s{sT0}, v18
          v_readfirstlane_b32 s{sT2}, v19
          s_and_b32 s{sT1}, s{sT0}, 255
          s_add_u32 s{sT1}, s{sT1}, s{sT2}
          s_cmp_ge_u32 s{sT1}, 48
          s_cbranch_scc1 {dn}
          s_sleep 2
          s_sub_u32 s{sTO}, s{sTO}, 1
          s_cbranch_scc0 {lp}
          s_branch {abort}''')
    a.label(dn)
    a(f'''s_lshl_b32 s{sT1}, s{sMODE}, 5
          s_cmp_lg_u32 s{sT0}, s{sT1}
          s_cselect_b32 s{sMODE}, 1, 0''')
    if cfg.get('force_slow'): a(f's_mov_b32 s{sMODE}, 1')

def chain_start(a, abort):
    sk = a.newlabel('L_go')
    a(f'''s_cmp_lg_u32 s{sW}, 0
          s_cbranch_scc1 {sk}
          v_mov_b32 v10, 0
          v_mov_b32 v11, 1
          s_mov_b64 exec, 1
          global_atomic_add v10, v11, s[{sDBG}:{sDBG+1}] offset:{4*D_GO}
          s_mov_b64 exec, -1''')
    a.label(sk)
    a(f'''s_lshl_b32 s{sT0}, s{sW}, 11
          s_add_u32 s{sHO}, s{sT0}, {REC_OFF}
          s_add_u32 s{sHO2}, s{sHO}, 1024
          s_cmp_eq_u32 s{sW}, 3
          s_cselect_b32 s{sHO2}, {REC_OFF}, s{sHO2}
          s_mov_b32 s{sS}, 0''')

def mode_offsets(a, off, cfg):
    a(f'''s_mov_b32 s{sT0}, {off}
          s_mov_b32 s{sT1}, {OOB}
          s_cmp_eq_u32 s{sMODE}, 0
          s_cselect_b32 s{sFAST}, s{sT0}, s{sT1}
          s_cselect_b32 s{sSLOW}, s{sT1}, s{sT0}''')

def stamp(a, cfg, k):
    if cfg.get('trace'):
        if k == cfg.get('trstart', 0):
            a.tr_every, a.tr_skip = cfg['trace']; a.tr_cnt = 0; a.tr_n = 0; a.tr_max = 23; a.tr_log.append('--- role')
        if k == 3:
            a.tr_every = 0; a.tr_log.append('END'); a(f's_memtime s[{48+2*a.tr_n}:{49+2*a.tr_n}]')
        return
    if cfg.get('stamps') and k in cfg['stamps']:
        a(f'{"s_memrealtime" if cfg.get("rt") else "s_memtime"} s[{ST0+2*k}:{ST0+1+2*k}]')

def probe(a, cfg, name):
    if cfg.get('probe') == name: a(f's_memtime s[{ST0+2}:{ST0+3}]')

def dump_stamps(a, cfg):
    if cfg.get('trace'):
        a(f'''s_waitcnt lgkmcnt(0)
              s_lshl_b32 s{sT0}, s{sROLE}, 2
              s_add_u32 s{sT0}, s{sT0}, s{sW}
              s_lshl_b32 s{sT0}, s{sT0}, 6
              s_add_u32 s{sT0}, s{sT0}, s{sS}
              s_lshl_b32 s{sT0}, s{sT0}, 7
              s_add_u32 s{sT0}, s{sT0}, {DBG_OFF + 0x100000}
              v_mov_b32 v{ACC+24}, 0''')
        for k in range(24): a(f'v_mov_b32 v{ACC+k}, s{48+2*k}')
        for k in range(6): a(f'buffer_store_dwordx4 {vr(ACC+4*k,4)}, v{ACC+24}, {S(sWS)}, s{sT0} offen offset:{16*k}')
        return
    if not cfg.get('stamps'): return
    a(f'''s_waitcnt lgkmcnt(0)
          s_lshl_b32 s{sT0}, s{sROLE}, 2
          s_add_u32 s{sT0}, s{sT0}, s{sW}
          s_lshl_b32 s{sT0}, s{sT0}, 6
          s_add_u32 s{sT0}, s{sT0}, s{sS}
          s_lshl_b32 s{sT0}, s{sT0}, 4
          s_add_u32 s{sT0}, s{sT0}, {DBG_OFF + 0x10000}''')
    for k in range(4): a(f'v_mov_b32 v{MA+24+k}, s{ST0+2*k}')
    a(f'v_mov_b32 v{MA+23}, 0')
    a(f'buffer_store_dwordx4 {vr(MA+24,4)}, v{MA+23}, {S(sWS)}, s{sT0} offen')

def red_sum(a, t, cfg, again, scale=None, fill=None):
    for _ in range(cfg.get('bpad', 0)): a(f'v_mov_b32 v{vT1}, v{vT1}')
    if not cfg.get('nobar'): a('s_barrier')
    a.label(again)
    a(f'''ds_read_b128 {vr(t+2,4)}, v{vSR}
          ds_read_b128 {vr(t+6,4)}, v{vSR} offset:4096''')
    if fill:
        for x in fill: a(x)
    else: warm(a, cfg.get('w3', 3))
    a(f'''s_waitcnt lgkmcnt(1)
          v_pk_add_f32 {vr(t,2)}, {vr(t+2,2)}, {vr(t+4,2)}''')
    if scale: a(f'v_pk_mul_f32 {vr(t,2)}, {vr(t,2)}, {scale}')
    a(f'''s_waitcnt lgkmcnt(0)
          v_pk_add_f32 {vr(t+10,2)}, {vr(t+6,2)}, {vr(t+8,2)}''')
    if scale: a(f'v_pk_fma_f32 {vr(t,2)}, {vr(t+10,2)}, {scale}, {vr(t,2)}')
    else: a(f'v_pk_add_f32 {vr(t,2)}, {vr(t,2)}, {vr(t+10,2)}')

def red_check(a, t, again, abort):
    a('s_add_u32 s70, s70, 1')
    a(f'''v_max3_u32 v{t+10}, v{t+2}, v{t+3}, v{t+4}
          v_max3_u32 v{t+10}, v{t+10}, v{t+5}, v{t+6}
          v_max3_u32 v{t+10}, v{t+10}, v{t+7}, v{t+8}
          v_max_u32 v{t+10}, v{t+10}, v{t+9}
          v_cmp_eq_u32 vcc, -1, v{t+10}
          s_sub_u32 s{sTO}, s{sTO}, 1
          s_cbranch_scc1 {abort}
          s_and_b64 vcc, vcc, s[{sVALID}:{sVALID+1}]
          s_cbranch_scc1 {again}''')

def red_reset(a, t):
    for k in range(4): a(f'v_mov_b32 v{t+k}, -1')
    a(f'''s_mov_b64 exec, s[{sVALID}:{sVALID+1}]
          ds_write_b128 v{vSR}, {vr(t,4)}
          ds_write_b128 v{vSR}, {vr(t,4)} offset:4096
          s_mov_b64 exec, -1''')

def x_dma():
    return [f's_add_u32 m0, s{sLX}, {n*1024 - n*64}\nbuffer_load_dwordx4 v{vX}, {S(sXS)}, s{sXO} offen offset:{n*64} lds' for n in range(7)]

def inv_pack(w):
    m = slot_map(w); return sum(m.index(k) << (4*k) for k in range(7))

def local_a(a, cfg, isS, abort):
    NT = 4 if isS else 3; J0 = 0 if isS else 4
    A0, A1, PK, FA, CF = 0, 32, 64, 96, 120
    vSA, vSB, vRD, vRR, vL16 = 112, 113, 114, 115, 116
    sHd, sKS, sRO, sSL, sWO, sWO2, sINV, sSC = 14, 15, 16, 17, 18, 19, 21, 22
    mark(a, cfg, 10)
    lane_setup(a)
    a(f'''s_load_dwordx2 s[{sR1}:{sR1+1}], s[0:1], 48
          s_load_dwordx2 s[{sR2}:{sR2+1}], s[0:1], 56
          s_mov_b32 s{sR1+2}, 3670016
          s_mov_b32 s{sR1+3}, 0x20000
          s_mov_b32 s{sR2+2}, 3670016
          s_mov_b32 s{sR2+3}, 0x20000
          s_and_b32 s{sHd}, s{sROLE}, 15''')
    sk0 = a.newlabel('L_la0')
    a(f'''s_mul_i32 s{sT0}, s{sXCC}, s{sXCC}
          s_lshl_b32 s{sT0}, s{sT0}, 16
          s_lshl_b32 s{sMODE}, s{sXCC}, 8
          s_add_u32 s{sMODE}, s{sMODE}, s{sT0}
          s_add_u32 s{sMODE}, s{sMODE}, 1
          s_cmp_lg_u32 s{sW}, 0
          s_cbranch_scc1 {sk0}
          v_mov_b32 v6, 0
          v_mov_b32 v7, s{sMODE}
          s_mov_b64 exec, 1
          global_atomic_add v6, v7, s[{sDBG}:{sDBG+1}] offset:{4*D_MODE}
          s_mov_b64 exec, -1''')
    a.label(sk0)
    if not isS:
        a(f'''v_lshrrev_b32 v6, 2, v{L}
              v_lshlrev_b32 v6, 13, v6
              v_and_b32 v7, 3, v{L}
              v_lshl_add_u32 v6, v7, 7, v6
              s_lshl_b32 s{sT1}, s{sHd}, 9
              s_mul_i32 s{sT0}, s{sW}, {112*8192}
              s_add_u32 s{sT0}, s{sT0}, s{sT1}
              s_add_u32 s{sT0}, s{sT0}, {32*8192}
              s_add_u32 s{sT2}, s{sT0}, {16*8192}
              s_lshl_b32 s{sT3}, s{sW}, 17
              s_add_u32 s{sT1}, s{sT1}, s{sT3}
              s_add_u32 s{sT1}, s{sT1}, {32*8192}
              s_waitcnt lgkmcnt(0)
              buffer_load_dword v116, v6, {S(sR2)}, s{sT0} offen
              buffer_load_dword v116, v6, {S(sR2)}, s{sT2} offen''')
        for k in range(cfg.get('vtouch', 5)):
            a(f'buffer_load_dword v116, v6, {S(sR1)}, s{sT1} offen\ns_add_u32 s{sT1}, s{sT1}, {64*8192}')
        a(f'''v_lshlrev_b32 v6, 7, v{L}
              s_mul_i32 s{sT0}, s{sHd}, 3584
              v_min_u32 v6, 3456, v6
              buffer_load_dword v116, v6, {S(sXS)}, s{sT0} offen''')
        wait_dbg(a, D_FLAGS_OK, 1, abort, 10, 11)
        mark(a, cfg, 1)
        return
    frag_src_lane(a, vSB, 8192, 6, 7)
    frag_src_lane(a, vSA, 8192, 6, 7, perm=True)
    frag_read_lane(a, vRD, 6)
    a(f'''v_lshlrev_b32 v{vL16}, 4, v{L}
          s_mul_i32 s{sT0}, s{sW}, {112*8192}
          s_lshl_b32 s{sT1}, s{sHd}, 9
          s_add_u32 s{sT0}, s{sT0}, s{sT1}
          s_add_u32 s{sT0}, s{sT0}, {J0*16*8192}
          s_lshl_b32 s{sT2}, s{sW}, 15
          s_lshr_b32 s{sRO}, s{sW}, 1
          s_lshl_b32 s{sRO}, s{sRO}, 15
          s_and_b32 s{sT3}, s{sW}, 1
          s_lshl_b32 s{sT3}, s{sT3}, 8
          s_add_u32 s{sRO}, s{sRO}, s{sT3}
          s_add_u32 s{sRO}, s{sRO}, s{sT1}
          s_add_u32 s{sRO}, s{sRO}, {0 if isS else 7*32*8192}
          s_lshl_b32 s{sSL}, s{sW}, 12
          s_add_u32 s{sSL}, s{sSL}, {8*16384}
          s_waitcnt lgkmcnt(0)''')
    RS = cfg.get('ring', 4)
    RB = (9 - RS) * 16384
    def rows_q():
        q = [f'''s_add_u32 m0, s{sSL}, {k*1024 - k*64}
                  buffer_load_dwordx4 v{vSA}, {S(sR1)}, s{sRO} offen offset:{k*64} lds''' for k in range(4)]
        wrap = '' if isS else f's_cmp_ge_u32 s{sRO}, 3670016\ns_cselect_b32 s{sT3}, 3670016, 0\ns_sub_u32 s{sRO}, s{sRO}, s{sT3}\n'
        q.append(f'''s_add_u32 s{sRO}, s{sRO}, {32*8192}
              {wrap}              s_add_u32 s{sSL}, s{sSL}, 16384
              s_cmp_ge_u32 s{sSL}, {9*16384}
              s_cselect_b32 s{sT3}, {RS*16384}, 0
              s_sub_u32 s{sSL}, s{sSL}, s{sT3}''')
        return q
    def rows():
        for x in rows_q(): a(x)
    for j in range(NT):
        for ke in range(8):
            a(f'''s_add_u32 m0, s{sT2}, {(j*8+ke)*1024 - ke*64}
                  buffer_load_dwordx4 v{vSB}, {S(sR2)}, s{sT0} offen offset:{ke*64} lds''')
        a(f's_add_u32 s{sT0}, s{sT0}, {16*8192}')
    rows()
    a(f'''v_add_u32 v{vRR}, s{sT2}, v{vRD}
''')
    mark(a, cfg, 11)
    a(f'''v_mov_b32 v117, 0
          global_load_dword v118, v117, s[{sDBG}:{sDBG+1}] offset:{4*D_FLAGS_OK} sc1
          s_waitcnt vmcnt(1)''')
    mark(a, cfg, 1)
    for f in range(NT * 8):
        a(f'ds_read_b128 {vr(CF+4*f,4)}, v{vRR} offset:{f*1024}')
        if f % 8 == 7: a('s_waitcnt lgkmcnt(0)')
    a('s_barrier')
    a(f's_mov_b32 s{sWO2}, {OOB}')
    for k in range(RS - 2):
        rows()
    a(f'''v_add_u32 v{vRR}, {8*16384}, v{vRD}
          s_mov_b32 s{sKS}, 0''')
    if isS:
        a(f'''s_mov_b32 s{sINV}, {inv_pack(0)}
              s_cmp_eq_u32 s{sW}, 1
              s_cselect_b32 s{sINV}, {inv_pack(1)}, s{sINV}
              s_cmp_eq_u32 s{sW}, 2
              s_cselect_b32 s{sINV}, {inv_pack(2)}, s{sINV}
              s_cmp_eq_u32 s{sW}, 3
              s_cselect_b32 s{sINV}, {inv_pack(3)}, s{sINV}
              s_lshl_b32 s{sINV}, s{sINV}, 4
              s_or_b32 s{sINV}, s{sINV}, 7''')
    a(f'''s_mul_i32 s{sWO}, s{sHd}, {WF_MAT}
          s_mul_i32 s{sT1}, s{sW}, {7*14336}
          s_add_u32 s{sWO}, s{sWO}, s{sT1}
          s_mov_b32 s{sWO2}, {OOB}''')
    def pack(acc, hf):
        q = []
        for j in range(NT):
            for mt in range(2):
                d = acc + (j*2+mt)*4; o = PK + 16*hf + 4*j + 2*mt
                q += [f'v_cvt_pk_bf16_f32 v{o}, v{d}, v{d+1}', f'v_cvt_pk_bf16_f32 v{o+1}, v{d+2}, v{d+3}']
        return q
    def block(acc, q):
        def rd(ke, reg): return [f'ds_read_b128 {vr(FA+8*(ke%2)+4*mt,4)}, v{reg} offset:{mt*8192 + (ke%8)*1024}' for mt in range(2)]
        dq = rows_q()
        if cfg.get('nodma'): dq = dq[4:]
        for ke in range(8):
            if ke == 7:
                a(f'''v_add_u32 v{vRR}, 16384, v{vRR}
                      v_add_u32 v{vSB}, {-RS*16384}, v{vRR}
                      v_cmp_le_u32 vcc, {9*16384}, v{vRR}
                      v_cndmask_b32 v{vRR}, v{vRR}, v{vSB}, vcc
                      s_waitcnt vmcnt({4*(RS-2)}) lgkmcnt(0)
                      s_barrier''')
            else: a('s_waitcnt lgkmcnt(0)')
            r = rd(ke + 1, vRR)
            n = 0
            for j in range(NT):
                for mt in range(2):
                    d = vr(acc + (j*2+mt)*4, 4)
                    a(f'v_mfma_f32_16x16x32_bf16 {d}, {vr(FA+8*(ke%2)+4*mt,4)}, {vr(CF+(j*8+ke)*4,4)}, {d if ke else 0}')
                    n += 1
                    if r: a(r.pop(0))
                    elif cfg.get('dstag') and n == 3 and ke < 4:
                        sk = a.newlabel('L_lds')
                        a(f's_cmp_lg_u32 s{sW}, {ke}\ns_cbranch_scc1 {sk}')
                        for x in rows_q(): a(x)
                        a.label(sk); dq = []
                    elif n == 3 and dq and ke < 7: a(dq.pop(0))
                    elif q: a(q.pop(0))
        assert not q and not dq
    def commit():
        end = a.newlabel('L_lce'); lab = [a.newlabel('L_lc') for _ in range(7)]
        a(f's_and_b32 s{sT0}, s{sINV}, 15\ns_lshr_b32 s{sINV}, s{sINV}, 4')
        for i in range(7): a(f's_cmp_eq_u32 s{sT0}, {i}\ns_cbranch_scc1 {lab[i]}')
        a(f's_branch {end}')
        for i in range(7):
            a.label(lab[i])
            for j in range(4):
                for hf in range(2):
                    for r in range(4): a(f'v_accvgpr_write_b32 a{(j*7+i)*8 + 4*hf + r}, v{PK+16*hf+4*j+r}')
            if i < 6: a(f's_branch {end}')
        a.label(end)
    mark(a, cfg, 12)
    for mt in range(2): a(f'ds_read_b128 {vr(FA+4*mt,4)}, v{vRR} offset:{mt*8192}')
    lp = a.newlabel('L_la'); ex = a.newlabel('L_lax'); cm = a.newlabel('L_lcm')
    a.label(lp)
    block(A0, pack(A1, 1))
    a.label(cm)
    if isS: commit()
    a(f's_cmp_ge_u32 s{sKS}, 7\ns_cbranch_scc1 {ex}')
    block(A1, pack(A0, 0))
    a(f'''s_add_u32 s{sKS}, s{sKS}, 1
          s_cmp_lt_u32 s{sKS}, 7
          s_cbranch_scc1 {lp}''')
    for x in pack(A1, 1): a(x)
    a(f's_branch {cm}')
    a.label(ex)
    mark(a, cfg, 2)
    ok = a.newlabel('L_lok')
    a(f'''v_cmp_ne_u32 vcc, 0, v118
          s_cbranch_vccnz {ok}''')
    wait_dbg(a, D_FLAGS_OK, 1, abort, 10, 11)
    a.label(ok)

def v_fill(a, cfg, sHd, sKS):
    a(f'''s_mul_i32 s{sT0}, s{sHd}, {4*REC_STR}
          s_add_u32 s{sT0}, s{sT0}, {REC_OFF}
          v_lshlrev_b32 v6, 4, v{vTID}
          v_mov_b32 v7, {OOB}
          s_cmp_eq_u32 s{sHd}, 0
          s_cselect_b64 vcc, -1, 0
          v_cndmask_b32 v7, v6, v7, vcc
          v_mov_b32 v8, -1
          v_mov_b32 v9, -1
          v_mov_b32 v10, -1
          v_mov_b32 v11, -1
          s_mov_b32 s{sKS}, 0''')
    fl = a.newlabel('L_lf')
    a.label(fl)
    for k in range(7):
        a(f'''buffer_store_dwordx4 v[8:11], v{7 if k < 2 else 6}, {S(sWS)}, s{sT0} offen sc1
              s_add_u32 s{sT0}, s{sT0}, {4096 if k < 6 else REC_STR - 6*4096}''')
    a(f'''v_mov_b32 v7, v6
          s_add_u32 s{sKS}, s{sKS}, 1
          s_cmp_lt_u32 s{sKS}, 4
          s_cbranch_scc1 {fl}''')

def v_mem0(a, cfg):
    nm = a.newlabel('L_lm0'); n2 = a.newlabel('L_lm2')
    a(f'''s_cmp_lt_u32 s{sROLE}, 240
          s_cbranch_scc1 {nm}
          s_sub_u32 s14, s{sROLE}, 240''')
    v_fill(a, cfg, 14, 15)
    a(f'''s_cmp_lg_u32 s{sROLE}, 240
          s_cbranch_scc1 {n2}''')
    srd(a, sR2, 5, 7168)
    a(f'''v_lshlrev_b32 v12, 2, v{vTID}
          v_lshrrev_b32 v13, 3, v{vTID}
          v_lshlrev_b32 v13, 8, v13
          v_and_b32 v14, 1, v{vTID}
          v_lshl_add_u32 v13, v14, 5, v13
          v_bfe_u32 v15, v{vTID}, 1, 2
          v_lshl_add_u32 v13, v15, 2, v13
          v_mov_b32 v7, {OOB}
          v_cmp_gt_u32 vcc, 224, v{vTID}
          v_cndmask_b32 v13, v7, v13, vcc
          v_cndmask_b32 v12, v7, v12, vcc
          s_mov_b32 s{sT0}, {REC_OFF + R_MEMF}''')
    for m in range(8):
        a(f's_mov_b32 s{sT3}, {m*896}\nbuffer_load_dword v{30+m}, v12, {S(sR2)}, s{sT3} offen')
    a('s_waitcnt vmcnt(0)')
    for m in range(8):
        rs = (4*(m//2) + m % 2) * 16
        a(f'''v_min_u32 v{30+m}, -2, v{30+m}
              buffer_store_dword v{30+m}, v13, {S(sWS)}, s{sT0} offen offset:{rs} sc1''')
    a.label(n2)
    a(f'''s_waitcnt vmcnt(0)
          s_barrier
          s_cmp_lg_u32 s{sW}, 0
          s_cbranch_scc1 {nm}
          v_mov_b32 v6, 0
          v_mov_b32 v7, 1
          s_mov_b64 exec, 1
          global_atomic_add v6, v7, s[{sDBG}:{sDBG+1}] offset:{4*D_SENT}
          s_mov_b64 exec, -1''')
    a.label(nm)

def role_S(a, cfg, done):
    vXK, vMK, vYT = vPF3, vPF2, vX2
    local_a(a, cfg, True, done)
    lane_setup(a); common_setup(a)
    a(f'''s_lshl_b32 s{sT2}, s{sROLE}, 6
          s_add_u32 s{sT2}, s{sT2}, {FL_OFF + F_A}''')
    a(f's_mov_b32 s{sPO}, s{sT2}')
    frag_src_lane(a, vX, 1792, 6, 7)
    a(f'''s_lshr_b32 s{sT1}, s{sW}, 1
          s_mul_i32 s{sT1}, s{sT1}, 896
          s_and_b32 s{sT2}, s{sW}, 1
          s_mul_i32 s{sT2}, s{sT2}, 448
          s_add_u32 s{sT1}, s{sT1}, s{sT2}
          v_add_u32 v{vX}, s{sT1}, v{vX}
          s_mul_i32 s{sLX}, s{sW}, 7168
          s_add_u32 s{sLX}, s{sLX}, {L_X}
          s_mov_b32 s{sXO}, 0''')
    wait_flags(a, f's{sPO}', 7, 1, 1, done, L, 10, sleep=1)
    a('s_barrier')
    mark(a, cfg, 4)
    for x in x_dma(): a(x)
    a(f's_add_u32 s{sXO}, s{sXO}, 28672\ns_xor_b32 s{sLX}, s{sLX}, 0x8000')
    for x in x_dma()[:cfg.get('dgap', 1)]: a(x)
    mode_prefetch(a)
    a(f's_mul_i32 s{sT0}, s{sROLE}, {WF_MAT}')
    load_weights(a, tiles=(4, 5, 6))
    a(f'''s_lshl_b32 s{sT0}, s{sW}, 11
          s_add_u32 s{sT1}, s{sT0}, {L_T}
          v_lshrrev_b32 v6, 3, v{N}
          v_and_b32 v7, 3, v{N}
          v_lshl_add_u32 v6, v6, 2, v7
          v_lshlrev_b32 v{vTW}, 5, v6
          v_lshl_add_u32 v{vTW}, v{G}, 3, v{vTW}
          v_and_b32 v6, 4, v{N}
          v_add_u32 v{vTW}, v6, v{vTW}
          v_add_u32 v{vTW}, s{sT1}, v{vTW}
          v_lshlrev_b32 v{vTR}, 8, v{G}
          v_lshl_add_u32 v{vTR}, v{N}, 3, v{vTR}
          v_add_u32 v{vTR}, s{sT1}, v{vTR}''')
    a(f'''s_mul_i32 s{sT2}, s{sW}, {7*256}
          v_and_b32 v7, 1, v{N}
          v_lshrrev_b32 v6, 1, v{G}
          v_lshlrev_b32 v{vMB}, 8, v6
          v_bfe_u32 v6, v{N}, 1, 2
          v_lshl_add_u32 v6, v6, 2, v7
          v_lshl_add_u32 v{vMB}, v6, 4, v{vMB}
          v_and_b32 v6, 1, v{G}
          v_lshl_add_u32 v{vMB}, v6, 3, v{vMB}
          v_add_u32 v{vMB}, s{sT2}, v{vMB}
          v_bfe_u32 v6, v{N}, 1, 2
          v_lshl_add_u32 v6, v6, 2, v7
          v_lshlrev_b32 v{vMK}, 4, v6
          v_lshl_add_u32 v{vMK}, v{G}, 2, v{vMK}
          s_add_u32 s{sT2}, s{sT2}, {6*256}
          v_add_u32 v{vMK}, s{sT2}, v{vMK}''')
    red_write_base(a, 6)
    a(f'''v_lshl_add_u32 v{vSW}, v{N}, 4, v6
          v_and_b32 v9, 8, v{N}
          v_xor_b32 v{vSW}, v9, v{vSW}
          v_lshrrev_b32 v9, 1, v{N}
          v_lshl_add_u32 v{vSW2}, v9, 4, v6
          v_lshl_add_u32 v{vSW2}, v7, 2, v{vSW2}
          v_add_u32 v{vSW2}, 256, v{vSW2}''')
    a(f'''v_and_b32 v8, 8, v5
          v_and_b32 v6, 3, v5
          v_lshl_add_u32 v8, v6, 1, v8
          v_bfe_u32 v6, v5, 2, 1
          v_add_u32 v8, v8, v6
          v_cmp_gt_u32 vcc, 16, v5
          v_cndmask_b32 v8, v5, v8, vcc
          v_mov_b32 v9, 28
          v_cmp_gt_u32 s[{sVALID}:{sVALID+1}], 20, v5
          v_cndmask_b32 v8, v9, v8, s[{sVALID}:{sVALID+1}]''')
    red_read_addr(a, 8)
    a(f'''v_bfe_u32 v7, v5, 3, 1
          v_lshlrev_b32 v7, 8, v7
          v_lshl_add_u32 v7, v6, 5, v7
          s_lshl_b32 s{sT1}, s{sW}, 6
          v_add_u32 v7, s{sT1}, v7
          s_lshl_b32 s{sT1}, s{sW}, 5
          s_add_u32 s{sT1}, s{sT1}, 512
          v_mov_b32 v9, s{sT1}
          v_cndmask_b32 v{vPS}, v9, v7, vcc
          v_lshl_add_u32 v{vPS}, v4, 4, v{vPS}
          v_and_b32 v6, 3, v5
          v_lshl_add_u32 v{vPS}, v6, 2, v{vPS}
          s_mul_i32 s{sT1}, s{sROLE}, 640
          v_add_u32 v{vPS}, s{sT1}, v{vPS}
          v_mov_b32 v8, {OOB}
          v_cndmask_b32 v{vPS}, v8, v{vPS}, s[{sVALID}:{sVALID+1}]''')
    a(f'''s_nop 0
          s_mul_i32 s{sT1}, s{sW}, 14
          v_add_u32 v6, s{sT1}, v{G}
          v_lshrrev_b32 v7, 2, v6
          v_lshlrev_b32 v{vXR}, 10, v7
          v_lshl_add_u32 v{vXR}, v{N}, 6, v{vXR}
          v_and_b32 v6, 3, v6
          v_lshrrev_b32 v7, 3, v{N}
          v_lshlrev_b32 v7, 1, v7
          v_xor_b32 v6, v6, v7
          v_lshl_add_u32 v{vXR}, v6, 4, v{vXR}
          v_add_u32 v{vXR}, {L_X}, v{vXR}
          v_mov_b32 v12, 0
          v_mov_b32 v13, 0
          v_mov_b32 v14, 0
          v_mov_b32 v15, 0
          v_add_u32 v6, {L_X + 28672}, v{vPOLL}
          ds_write_b128 v6, v[12:15]
          ds_write_b128 v6, v[12:15] offset:32768''')
    a(f'''s_mul_i32 s{sT1}, s{sW}, 14
          s_add_u32 s{sT1}, s{sT1}, 12
          v_lshrrev_b32 v6, 1, v{G}
          v_add_u32 v6, s{sT1}, v6
          v_lshrrev_b32 v9, 2, v6
          v_lshlrev_b32 v{vXK}, 10, v9
          v_lshl_add_u32 v{vXK}, v{N}, 6, v{vXK}
          v_and_b32 v6, 3, v6
          v_xor_b32 v6, v6, v7
          v_lshl_add_u32 v{vXK}, v6, 4, v{vXK}
          v_and_b32 v6, 1, v{G}
          v_lshl_add_u32 v{vXK}, v6, 3, v{vXK}
          v_add_u32 v{vXK}, {L_X}, v{vXK}
          v_lshlrev_b32 v6, 2, v{G}
          v_sub_u32 v6, v{N}, v6
          v_mov_b32 v9, 0x3f80
          v_mov_b32 v10, 0x3f800000
          v_lshlrev_b32 v{vYT}, 3, v{vPOLL}
          v_min_u32 v{vYT}, {cfg.get("ymax", 6016)}, v{vYT}''')
    for rr in range(2):
        a(f'''v_cmp_eq_u32 vcc, {2*rr}, v6
              v_cndmask_b32 v{XB+22+rr}, 0, v9, vcc
              v_cmp_eq_u32 vcc, {2*rr+1}, v6
              v_cndmask_b32 v{XB+22+rr}, v{XB+22+rr}, v10, vcc''')
    a(f'''v_mov_b32 v6, 0
          ds_write_b32 v{vTW}, v6 offset:{7*256}
          ds_write_b32 v{vTW}, v6 offset:{6*256}
          v_mov_b32 v8, 0xf0000000
          v_mov_b32 v9, v8
          v_lshlrev_b32 v6, 9, v{N}
          v_add_u32 v6, {L_RED + 28*16}, v6
          ds_write2_b64 v6, v[8:9], v[8:9] offset0:0 offset1:1
          s_mov_b32 s{sTHR}, 0x42200000
          s_mov_b32 s{sYK}, {ASCALE_HEX}
          s_mov_b32 s{sYK+1}, {ASCALE_HEX}
          s_mov_b32 s{sPO}, {REC_OFF + R_P}
          s_lshl_b32 s{sPFY}, s{sROLE}, 15
          s_lshl_b32 s{sT1}, s{sW}, 13
          s_add_u32 s{sPFY}, s{sPFY}, s{sT1}
          s_add_u32 s{sPFY}, s{sPFY}, {YF_OFF + 2*16*32768}''')
    red_reset(a, 12)
    chain_mode(a, cfg, done)
    chain_start(a, done)
    mode_offsets(a, REC_OFF + R_P, cfg)
    a(f'''s_add_u32 s{sMSO}, s{sHO}, {R_MSA}
          s_add_u32 s{sYO}, s{sHO2}, {R_MSA}
''')
    a('s_barrier')
    mark(a, cfg, 5)
    top = a.newlabel('L_Stop'); slow = a.newlabel('L_Sslow'); back = a.newlabel('L_Sback')
    align(a, cfg.get('salign'))
    a.label(top)
    ng = cfg.get('dgap', 1)
    dm = x_dma()[ng:]
    if cfg.get('nox'): dm = []
    for f in range(8):
        if cfg.get('dmafirst', 0) and dm: a(dm.pop(0))
        if f in (5, 7): a(f'ds_read_b64 {vr(XB+4*f,2)}, v{vXK} offset:{((f>>1)&1)*14336}')
        else: a(f'ds_read_b128 {vr(XB+4*f,4)}, v{vXR} offset:{((f>>1)&1)*14336 + ((f>>2)*2 + (f&1))*1024}')
    a(f'v_xor_b32 v{vXR}, 0x8000, v{vXR}\nv_xor_b32 v{vXK}, 0x8000, v{vXK}')
    z = [f'v_mov_b32 v{r}, 0' for r in list(range(ACC, ACC + 28)) + list(range(SACC, SACC + 12))]
    for _ in range(cfg.get('zfirst', 40)): a(z.pop(0))
    for x in dm:
        a(x)
        for _ in range(5):
            if z: a(z.pop(0))
    for x in z: a(x)
    a('s_waitcnt lgkmcnt(0)')
    for f in (0, 1, 2, 3, 4, 6): a(f'v_swap_b32 v{XB+4*f+1}, v{XB+4*f+2}')
    if cfg.get('dmat', 0): a('s_waitcnt vmcnt(0)')
    stamp(a, cfg, 2)
    a(f's_add_u32 s{sXO}, s{sXO}, 28672\ns_xor_b32 s{sLX}, s{sLX}, 0x8000')
    tail = []
    early = [''] * 8 + [f'buffer_load_dword v{vT1}, v{vYT}, {S(sWS)}, s{sPFY} offen sc1']
    if cfg.get('noyt'): early[8] = ''
    pb = a.newlabel('L_Spub'); pr = a.newlabel('L_Spr')
    early[cfg.get('pubpos', 2)] = f's_cbranch_scc1 {pb}\n{pr}:'
    if cfg.get('nopf'): early = early[:8]
    def mbread(d, aa):
        return [f'ds_read2_b64 {vr(d,4)}, v{vMB} offset0:{128*aa} offset1:{128*aa+4}', f'ds_read2_b64 {vr(d+4,4)}, v{vMB} offset0:{128*aa+64} offset1:{128*aa+68}']
    def s_step(aa, TA, MBr):
        return [f'v_smfmac_f32_16x16x64_bf16 {vr(SACC,4)}, {vr(TA,4)}, {vr(XB+aa*16,8)}, v{vIDX}',
                f'v_smfmac_f32_16x16x64_bf16 {vr(SACC+4,4)}, {vr(TA,4)}, {vr(XB+aa*16+8,8)}, v{vIDX}',
                f'v_smfmac_f32_16x16x64_bf16 {vr(SACC+8,4)}, {vr(TA,4)}, {vr(MBr,8)}, v{vIDX}']
    def trread(aa, d):
        return [f'ds_read_b64_tr_b16 {vr(d,2)}, v{vTR} offset:{aa*1024}', f'ds_read_b64_tr_b16 {vr(d+2,2)}, v{vTR} offset:{aa*1024+128}']
    extra = {1: [f'ds_read2_b32 {vr(XB+30,2)}, v{vMK} offset0:0 offset1:8'], 2: mbread(ACC, 0), 4: mbread(ACC + 8, 1), 5: trread(0, ACC + 16), 6: trread(1, ACC + 20)}
    def pubstub():
        a.label(pb)
        a(f'''buffer_store_dwordx4 {vr(MA,4)}, v{vPOLL}, {S(sWS)}, s{sMSO} offen sc1
              buffer_store_dwordx4 {vr(MA+4,4)}, v{vPOLL}, {S(sWS)}, s{sYO} offen sc1
              s_branch {pr}''')
    tail.append(pubstub)
    stage1(a, early, extra, cfg, cfg.get('sdepth', 2), done, cfg.get('pw', 0), skip=cfg.get('fakeE', ()))
    stamp(a, cfg, 1); probe(a, cfg, 'A')
    s0 = s_step(0, ACC + 16, ACC)
    s1 = s_step(1, ACC + 20, ACC + 8)
    pub = f'''buffer_store_dwordx4 {vr(MA,4)}, v{vPOLL}, {S(sWS)}, s{sMSO} offen sc1
          buffer_store_dwordx4 {vr(MA+4,4)}, v{vPOLL}, {S(sWS)}, s{sYO} offen sc1'''
    T6 = ACC + 24; D2 = MA + 8
    a('s_waitcnt lgkmcnt(3)')
    a(s0[0]); a(s0[1])
    a(f'''v_cvt_pk_bf16_f32 v{T6}, v{T6}, v{T6+1}
          v_cvt_pk_bf16_f32 v{T6+1}, v{T6+2}, v{T6+3}''')
    if cfg.get('tord', 0) == 0: a(s0[2])
    a(f'v_mfma_f32_16x16x16_bf16 {vr(D2,4)}, {vr(T6,2)}, {vr(XB+22,2)}, 0')
    if cfg.get('tord', 0) == 1: a(s0[2])
    a('s_waitcnt lgkmcnt(0)')
    a(s1[2])
    if cfg.get('tord', 0) == 0: a(s1[0])
    a(f'''v_cvt_pk_bf16_f32 v{D2}, v{D2}, v{D2+1}
          v_cvt_pk_bf16_f32 v{D2+1}, v{D2+2}, v{D2+3}''')
    probe(a, cfg, 'B')
    fin = [f'v_mfma_f32_16x16x16_bf16 {vr(SACC+4*k,4)}, {vr(D2,2)}, {vr(XB+(20,28,30)[k],2)}, {vr(SACC+4*k,4)}' for k in range(3)]
    if cfg.get('tord', 0) == 0:
        a(s1[1]); a(fin[2]); a(fin[0]); a(fin[1])
    else:
        for x in (s1[0], fin[2], s1[1], fin[0], fin[1]): a(x)
    d = SACC; t = ACC
    a(f'''v_add_f32 v{d+8}, v{d+8}, v{d+10}
          v_add_f32 v{d+9}, v{d+9}, v{d+11}
          ds_write2_b32 v{vSW2}, v{d+8}, v{d+9} offset0:0 offset1:128
          v_add_f32 v{t}, v{d}, v{d+2}
          v_add_f32 v{t+2}, v{d+1}, v{d+3}
          v_add_f32 v{t+1}, v{d+4}, v{d+6}
          v_add_f32 v{t+3}, v{d+5}, v{d+7}
          ds_write2_b64 v{vSW}, {vr(t,2)}, {vr(t+2,2)} offset0:0 offset1:64''')
    t = ACC + 4; e = t + 12
    probe(a, cfg, 'C')
    again = a.newlabel('L_Sagain')
    fl = []
    for x in x_dma()[:ng]: fl += [x.replace('\n', f'\nv_mov_b32 v{vT1}, v{vT1}\n')]
    if ng: fl += [f'v_mov_b32 v{vT1}, v{vT1}\ns_nop 2'] * cfg.get('dgw', 1)
    red_sum(a, t, cfg, again, f's[{sYK}:{sYK+1}]', fl)
    probe(a, cfg, 'D')
    a(f'''v_exp_f32 v{e}, v{t}
          v_exp_f32 v{e+1}, v{t+1}
          v_add_f32 v{e+4}, |v{t}|, |v{t+1}|
          v_add_f32 v{e+2}, v{e}, v{e+1}
          v_cmp_nge_f32 vcc, s{sTHR}, v{e+4}''')
    def butterfly(op, r, tmp, mid=None):
        for k, m in enumerate(('quad_perm:[1,0,3,2]', 'quad_perm:[2,3,0,1]', 'row_half_mirror', 'row_mirror')):
            a.I(f'{op}_dpp v{r}, v{r}, v{r} {m} row_mask:0xf bank_mask:0xf')
            if k == 2 and mid: a(mid)
        a(f'v_mov_b32 v{tmp}, v{r}')
        a(f'v_permlane16_swap_b32 v{r}, v{tmp}')
        a(f'{op} v{r}, v{r}, v{tmp}')
    butterfly('v_add_f32', e + 2, e + 3, f's_and_b64 vcc, vcc, s[{sVALID}:{sVALID+1}]\ns_cbranch_scc1 {slow}')
    a.label(back)
    a(f'''v_rcp_f32 v{e+2}, v{e+2}
          v_mul_f32 v{e}, v{e}, v{e+2}
          v_mul_f32 v{e+1}, v{e+1}, v{e+2}
          v_cvt_pk_bf16_f32 v{e}, |v{e}|, |v{e+1}|''')
    probe(a, cfg, 'E')
    a(f'''buffer_store_dword v{e}, v{vPS}, {S(sWS)}, s{sFAST} offen
          buffer_store_dword v{e}, v{vPS}, {S(sWS)}, s{sSLOW} offen sc1''')
    stamp(a, cfg, 3)
    red_reset(a, t)
    if cfg.get('sbar', 1): a('s_barrier')
    dump_stamps(a, cfg)
    a(f'''s_add_u32 s{sHO}, s{sHO}, {REC_STR}
          s_add_u32 s{sHO2}, s{sHO2}, {REC_STR}
          s_add_u32 s{sPO}, s{sPO}, {REC_STR}
          s_add_u32 s{sFAST}, s{sFAST}, {REC_STR}
          s_add_u32 s{sSLOW}, s{sSLOW}, {REC_STR}
          s_add_u32 s{sMSO}, s{sMSO}, {REC_STR}
          s_add_u32 s{sYO}, s{sYO}, {REC_STR}
          s_add_u32 s{sPFY}, s{sPFY}, {16*32768}
          s_add_u32 s{sS}, s{sS}, 1
          s_cmp_lt_u32 s{sS}, 63
          s_cbranch_scc1 {top}
          s_cmp_ge_u32 s{sROLE}, 1
          s_cbranch_scc1 {done}''')
    poll_sent(a, [f'buffer_load_dwordx4 {vr(MA,4)}, v{vPOLL}, {S(sWS)}, s{sHO} offen sc1',
                  f'buffer_load_dwordx4 {vr(MA+4,4)}, v{vPOLL}, {S(sWS)}, s{sHO2} offen sc1'], range(MA, MA+8), done, MA+8, sleep=0)
    a(pub)
    a(f's_branch {done}')
    a.label(slow)
    red_check(a, t, again, done)
    a(f'v_max_f32 v{e+2}, v{t}, v{t+1}')
    butterfly('v_max_f32', e + 2, e + 3)
    a(f'''v_sub_f32 v{t}, v{t}, v{e+2}
          v_sub_f32 v{t+1}, v{t+1}, v{e+2}
          v_exp_f32 v{e}, v{t}
          v_exp_f32 v{e+1}, v{t+1}
          v_add_f32 v{e+2}, v{e}, v{e+1}''')
    butterfly('v_add_f32', e + 2, e + 3)
    a(f's_branch {back}')
    for f in tail: f()

def role_V(a, cfg, done):
    vUW, vUR, vPP, vPP2, vMS, vMN, vOUT, vFY, vFO = vTW, vTR, vMB, vSW2, vPS, vX, vX2, vPF3, vPF2
    local_a(a, cfg, False, done)
    mark(a, cfg, 6)
    lane_setup(a); common_setup(a)
    a(f'''s_lshl_b32 s{sT0}, s{sW}, 11
          s_add_u32 s{sT1}, s{sT0}, {L_T}
          v_lshlrev_b32 v{vUW}, 4, v{N}
          v_lshl_add_u32 v{vUW}, v{G}, 2, v{vUW}
          v_add_u32 v{vUW}, s{sT1}, v{vUW}
          v_mul_u32_u24 v{vUR}, 448, v{G}
          v_lshl_add_u32 v{vUR}, v{N}, 4, v{vUR}
          v_add_u32 v{vUR}, s{sT1}, v{vUR}
          s_mul_i32 s{sT1}, s{sW}, 2560
          v_mul_u32_u24 v6, 640, v{G}
          v_add_u32 v6, s{sT1}, v6
          v_lshl_add_u32 v{vPP}, v{N}, 4, v6
          v_lshrrev_b32 v7, 2, v{N}
          v_and_b32 v9, 1, v{N}
          v_lshl_add_u32 v7, v7, 1, v9
          v_lshl_add_u32 v{vPP2}, v7, 4, v6
          v_mov_b32 v8, {OOB}
          v_and_b32 v9, 2, v{N}
          v_cmp_eq_u32 vcc, 0, v9
          v_cndmask_b32 v{vPP2}, v8, v{vPP2}, vcc''')
    red_write_base(a, 6)
    a(f'''v_add_u32 v7, 26, v{N}
          v_cmp_gt_u32 vcc, 14, v{N}
          v_cndmask_b32 v7, v7, v{N}, vcc
          v_lshrrev_b32 v9, 1, v7
          v_lshl_add_u32 v{vSW}, v9, 4, v6
          v_and_b32 v9, 1, v7
          v_lshl_add_u32 v{vSW}, v9, 2, v{vSW}''')
    red_read_addr(a, N)
    a(f'''s_sub_u32 s{sT1}, s{sROLE}, 16
          s_mul_i32 s{sT2}, s{sT1}, 28
          v_lshlrev_b32 v6, 1, v5
          v_add_u32 v6, s{sT2}, v6
          v_lshrrev_b32 v7, 4, v6
          v_lshlrev_b32 v{vMS}, 8, v7
          v_and_b32 v9, 2, v6
          v_add_u32 v7, v9, v4
          v_lshl_add_u32 v{vMS}, v7, 4, v{vMS}
          v_and_b32 v7, 12, v6
          v_add_u32 v{vMS}, v7, v{vMS}
          s_lshl_b32 s{sT2}, s{sW}, 6
          v_add_u32 v{vMS}, s{sT2}, v{vMS}
          v_cmp_gt_u32 vcc, 14, v5
          v_cndmask_b32 v{vMS}, v8, v{vMS}, vcc
          s_mov_b64 s[{sVALID}:{sVALID+1}], vcc
          s_lshl_b32 s{sYO}, s{sT1}, 15
          s_lshl_b32 s{sT2}, s{sW}, 13
          s_add_u32 s{sYO}, s{sYO}, s{sT2}
          s_add_u32 s{sYO}, s{sYO}, {YF_OFF}
          s_add_u32 s{sYO2}, s{sYO}, 4096
          s_mov_b32 s{sPO}, {REC_OFF + R_P}
          s_mov_b32 s{sMSO}, {OOB}
          s_lshl_b32 s{sFY}, s{sT1}, 2
          s_add_u32 s{sFY}, s{sFY}, s{sW}
          s_lshl_b32 s{sFY}, s{sFY}, 5
          s_add_u32 s{sFY}, s{sFY}, {FL_OFF + F_Y}
          v_and_b32 v{vFO}, 7, v{L}
          v_lshlrev_b32 v{vFO}, 2, v{vFO}
          v_mov_b32 v{vFY}, 0
          s_mov_b32 s{sYK}, 0''')
    a(f's_sub_u32 s{sT3}, s{sROLE}, 16\ns_mov_b32 s{sXO}, 0')
    a(f'''s_mul_i32 s{sT1}, s{sT3}, 640
          s_add_u32 s{sT1}, s{sT1}, {2*REC_STR}
          v_lshlrev_b32 v6, 6, v{L}
          v_add_u32 v{vMN}, s{sT1}, v6
          s_mul_i32 s{sT1}, s{sT3}, 448
          s_add_u32 s{sT1}, s{sT1}, {3*REC_STR - R_P - 10*64}
          v_add_u32 v7, s{sT1}, v6
          v_cmp_gt_u32 vcc, 10, v{L}
          v_cndmask_b32 v{vMN}, v7, v{vMN}, vcc
          v_cmp_gt_u32 vcc, 17, v{vTID}
          v_cndmask_b32 v{vMN}, v8, v{vMN}, vcc
          s_mul_i32 s{sT1}, s{sT3}, {14*128}
          s_add_u32 s{sT1}, s{sT1}, {3*28672}
          s_mul_i32 s{sT2}, s{sW}, 448
          s_add_u32 s{sT1}, s{sT1}, s{sT2}
          v_add_u32 v{vXR}, s{sT1}, v6
          v_cmp_gt_u32 vcc, 7, v{L}
          v_cndmask_b32 v{vXR}, v8, v{vXR}, vcc''')
    red_reset(a, 12)
    wait_flags_w0(a, FL_OFF + F_B, 56, 4, 1, done, L, 10, sleep=cfg.get('fbs', 4))
    mark(a, cfg, 4)
    mode_prefetch(a)
    a(f's_mul_i32 s{sT0}, s{sROLE}, {WF_MAT}')
    load_weights(a)
    chain_mode(a, cfg, done)
    chain_start(a, done)
    mode_offsets(a, REC_OFF + REC_STR + R_MEMF, cfg)
    a(f'''s_add_u32 s{sPFY}, s{sHO}, {R_MSA}
          s_add_u32 s{sLX}, s{sHO2}, {R_MSA}
          s_cmp_eq_u32 s{sROLE}, 16
          s_cselect_b32 s{sPFY}, s{sPFY}, {OOB}
          s_cmp_eq_u32 s{sROLE}, 17
          s_cselect_b32 s{sLX}, s{sLX}, {OOB}''')
    mark(a, cfg, 5)
    top = a.newlabel('L_Vtop'); yok = a.newlabel('L_Vyok'); ychk = a.newlabel('L_Vychk')
    align(a, cfg.get('valign'))
    a.label(top)
    a(f'''s_cmp_lt_u32 s{sS}, s{sYK}
          s_cbranch_scc0 {ychk}''')
    a.label(yok)
    early = []; tail = []
    for f in (7, 6, 5, 4, 3, 2, 1, 0):
        early.append(f'buffer_load_dwordx4 {vr(XB+4*f,4)}, v{vPOLL}, {S(sWS)}, s{sYO if f<4 else sYO2} offen offset:{(f%4)*1024} sc1')
    z = [f'v_mov_b32 v{r}, 0' for r in range(ACC, ACC + 28)]
    for _ in range(cfg.get('yz', 0)): a(z.pop(0))
    for _ in range(cfg.get('ytop', 0)):
        a(early.pop())
        for _ in range(3):
            if z: a(z.pop(0))
    for x in z: a(x)
    if cfg.get('noy'): early = []
    if cfg.get('pub', 'Searly') == 'V':
        early = [f'buffer_store_dwordx4 {vr(MA,4)}, v{vPOLL}, {S(sWS)}, s{sPFY} offen sc1',
                 f'buffer_store_dwordx4 {vr(MA+4,4)}, v{vPOLL}, {S(sWS)}, s{sLX} offen sc1'] + early
    early += [f's_add_u32 s{sT0}, s{sS}, 3\ns_cmp_ge_u32 s{sT0}, s{sYK}\ns_cselect_b32 s{sT0}, s{sFY}, {OOB}\nbuffer_load_dword v{vFY}, v{vFO}, {S(sWS)}, s{sT0} offen sc1']
    if cfg.get('vyt', 1) == 2:
        early += [''] * cfg.get('vtd', 0) + [f'buffer_load_dword v{vT1}, v{vMN}, {S(sWS)}, s{sPO} offen sc1',
                  f'buffer_load_dword v{vT1}, v{vXR}, {S(sXS)}, s{sXO} offen\ns_add_u32 s{sXO}, s{sXO}, 28672',
                  f'v_lshlrev_b32 v{vT0}, 3, v{vPOLL}', f'v_max_u32 v{vT0}, {cfg.get("ymax", 6016) + 128}, v{vT0}',
                  f's_add_u32 s{sT0}, s{sYO}, {2*16*32768}\nbuffer_load_dword v{vT1}, v{vT0}, {S(sWS)}, s{sT0} offen sc1']
    PA = ACC
    pl = [f'buffer_load_dwordx4 {vr(PA,4)}, v{vPP2}, {S(sWS)}, s{sPO} offen offset:512 sc1',
          f'buffer_load_dwordx4 {vr(PA+4,4)}, v{vPP}, {S(sWS)}, s{sPO} offen sc1',
          f'buffer_load_dwordx4 {vr(PA+8,4)}, v{vPP}, {S(sWS)}, s{sPO} offen offset:256 sc1']
    stage1(a, [''] * cfg.get('ydelay', 0) + early, {cfg.get('pwin', 5): pl}, cfg, cfg.get('vdepth', 1), done, cfg.get('vmw', 8))
    for x in post_ops(6): a(x)
    a(f'''ds_read_b128 {vr(SACC,4)}, v{vUR}
          ds_read_b128 {vr(SACC+4,4)}, v{vUR} offset:224
          s_mov_b32 s{sTO}, 0x40000''')
    lp = a.newlabel('L_pp')
    a.label(lp)
    for x in pl: a(x)
    a(f'''s_sub_u32 s{sTO}, s{sTO}, 1
          s_cbranch_scc1 {done}''')
    warm(a, cfg.get('vpw', 0))
    d = MA + 8
    mf = [f'v_mfma_f32_16x16x32_bf16 {vr(d+4*nt,4)}, {vr(PA,4)}, {vr(SACC+4*nt,4)}, 0' for nt in range(2)]
    for i in range(2):
        mf += [f'v_smfmac_f32_16x16x64_bf16 {vr(d+4*nt,4)}, {vr(PA+4+4*i,4)}, {vr(XB+(i*2+nt)*8,8)}, v{vIDX}' for nt in range(2)]
    a(f'''s_waitcnt vmcnt(5) lgkmcnt(0)
          v_max3_u32 v{vT0}, v{PA}, v{PA+1}, v{PA+2}
          v_max_u32 v{vT0}, v{vT0}, v{PA+3}''')
    stamp(a, cfg, 2)
    sp = cfg.get('vspec', 2)
    if sp >= 4: a(mf.pop(0)); a(mf.pop(0))
    for i in range(2):
        r = PA + 4 + 4*i
        a(f'''s_waitcnt vmcnt({4-i})
              v_max3_u32 v{vT0}, v{vT0}, v{r}, v{r+1}
              v_max3_u32 v{vT0}, v{vT0}, v{r+2}, v{r+3}''')
        if sp == 6 and i == 0: a(mf.pop(0)); a(mf.pop(0))
    a(f'v_cmp_eq_u32 vcc, -1, v{vT0}')
    a(mf.pop(0)); a(mf.pop(0))
    a(f's_cbranch_vccnz {lp}')
    stamp(a, cfg, 1)
    for x in mf: a(x)
    a(f'''v_add_f32 v{d}, v{d}, v{d+2}
          v_add_f32 v{d+1}, v{d+1}, v{d+3}
          ds_write2_b32 v{vSW}, v{d}, v{d+1} offset0:0 offset1:128
          v_add_f32 v{d+4}, v{d+4}, v{d+6}
          v_add_f32 v{d+5}, v{d+5}, v{d+7}
          ds_write2_b32 v{vSW}, v{d+4}, v{d+5} offset0:28 offset1:156''')
    t = ACC + 12
    again = a.newlabel('L_Vagain'); chk = a.newlabel('L_Vchk'); go = a.newlabel('L_Vgo')
    red_sum(a, t, cfg, again)
    st = f'''buffer_store_dword v{vOUT}, v{vMS}, {S(sWS)}, s{sFAST} offen
          buffer_store_dword v{vOUT}, v{vMS}, {S(sWS)}, s{sSLOW} offen sc1'''
    a(f'''v_cmp_o_f32 vcc, v{t}, v{t+1}
          v_cvt_pk_bf16_f32 v{vOUT}, v{t}, v{t+1}
          v_cndmask_b32 v{vOUT}, -1, v{vOUT}, vcc''')
    a(st)
    a(f'''s_andn2_b64 vcc, s[{sVALID}:{sVALID+1}], vcc
          s_cbranch_scc1 {chk}''')
    a.label(go)
    if cfg.get('vyt', 1) == 1:
        a(f'''v_lshlrev_b32 v{vT0}, 3, v{vPOLL}
              v_max_u32 v{vT0}, {cfg.get("ymax", 6016) + 128}, v{vT0}
              s_add_u32 s{sT0}, s{sYO}, {cfg.get('vya', 2)*16*32768}
              s_waitcnt vmcnt(2)
              s_barrier
              buffer_load_dword v{vT1}, v{vMN}, {S(sWS)}, s{sPO} offen sc1
              buffer_load_dword v{vT1}, v{vXR}, {S(sXS)}, s{sXO} offen
              buffer_load_dword v{vT1}, v{vT0}, {S(sWS)}, s{sT0} offen sc1
              s_add_u32 s{sXO}, s{sXO}, 28672''')
    def vchk():
        a.label(chk)
        a('s_waitcnt vmcnt(0)')
        red_check(a, t, again, done)
        a(f'''v_cvt_pk_bf16_f32 v{vOUT}, v{t}, v{t+1}
              v_min_u32 v{vOUT}, -2, v{vOUT}''')
        a(st)
        a(f's_branch {go}')
    tail.append(vchk)
    stamp(a, cfg, 3)
    red_reset(a, t)
    dump_stamps(a, cfg)
    a(f'''s_add_u32 s{sHO}, s{sHO}, {REC_STR}
          s_add_u32 s{sHO2}, s{sHO2}, {REC_STR}
          s_add_u32 s{sPO}, s{sPO}, {REC_STR}
          s_add_u32 s{sFAST}, s{sFAST}, {REC_STR}
          s_add_u32 s{sSLOW}, s{sSLOW}, {REC_STR}
          s_add_u32 s{sYO}, s{sYO}, {16*32768}
          s_add_u32 s{sYO2}, s{sYO2}, {16*32768}
          s_add_u32 s{sMSO}, s{sPO}, {R_MSA - R_P}
          s_add_u32 s{sPFY}, s{sPFY}, {REC_STR}
          s_add_u32 s{sLX}, s{sLX}, {REC_STR}
          s_add_u32 s{sS}, s{sS}, 1
          s_cmp_lt_u32 s{sS}, 63
          s_cbranch_scc1 {top}
          s_branch {done}''')
    a.label(ychk)
    a(f's_mov_b32 s{sTO}, 0x20000')
    yl = a.newlabel('L_Vyl')
    a.label(yl)
    a(f's_mov_b32 s{sYK}, 1000')
    for r in range(NRO):
        a(f'''v_readlane_b32 s{sT0}, v{vFY}, {r}
              s_mul_i32 s{sT0}, s{sT0}, {NRO}
              s_add_u32 s{sT0}, s{sT0}, {r}
              s_min_u32 s{sYK}, s{sYK}, s{sT0}''')
    a(f'''s_cmp_lt_u32 s{sS}, s{sYK}
          s_cbranch_scc1 {yok}
          buffer_load_dword v{vFY}, v{vFO}, {S(sWS)}, s{sFY} offen sc1
          s_waitcnt vmcnt(0)
          s_sub_u32 s{sTO}, s{sTO}, 1
          s_cbranch_scc0 {yl}
          s_branch {done}''')
    for f in tail: f()
```

```python
from asmlib import *

WS_SIZE = 1 << 28
WF_OFF  = 0
WF_MAT  = 401408
YF_OFF  = 0x1000000
REC_OFF = 0x3000000
REC_STR = 0x11000
R_MEMF  = 0
R_P     = 0x2000
R_MSA   = 0x5000
R_PX    = 0x7000
OA_OFF  = 0x3600000
G_OFF   = 0x3800000
KVP_OFF = 0x3810000
FL_OFF  = 0x3900000
F_B = 0; F_A = 1024; F_Y = 2048; F_KV = 4096; F_O = 5120; F_L = 6144; FL_SIZE = 8192
DBG_OFF = 0x3A00000
WL_OFF  = 0x4000000
OOB     = 0x40000000
LDS_SIZE = 151552
L_ROLE  = LDS_SIZE - 16
LOG2E_HEX = 0x3fb8aa3b
ASCALE_HEX = 0x3db8aa3b
NRO = 6; NRX = 4

D_MODE = 0; D_SENT = 1; D_FLAGS_OK = 32; D_SENT2 = 33; D_GO = 34

sWS = 4; sXS = 8
sW = 12; sROLE = 13; sS = 14
sTO = 20
sT0 = 24; sT1 = 25; sT2 = 26; sT3 = 27
sR1 = 32; sR2 = 36
sDBG = 40
sM = 42
sXCC = 3
sX0 = 47
sPT = 46

L, N, G = 20, 21, 22
vTID = 119

def lane_setup(a):
    a(f'''v_and_b32 v{L}, 63, v{vTID}
          v_and_b32 v{N}, 15, v{vTID}
          v_bfe_u32 v{G}, v{vTID}, 4, 2''')

def wreg(j, i, n=8, h=0):
    t = j * 7 + i
    if t < 32: f, b = 'a', t * 8
    else: f, b = 'v', 120 + (t - 32) * 8
    return vr(b + 4 * h, n, f)

def srd(a, r, slot, nbytes):
    a(f'''s_load_dwordx2 s[{r}:{r+1}], s[0:1], {slot*8}
          s_mov_b32 s{r+2}, {nbytes}
          s_mov_b32 s{r+3}, 0x20000
          s_waitcnt lgkmcnt(0)''')

def S(r): return f's[{r}:{r+3}]'

def wait_dbg(a, idx, val, abort, t0, t1, sleep=2):
    lp = a.newlabel('L_wd'); dn = a.newlabel('L_wdd')
    a(f'''s_mov_b32 s{sTO}, 0x20000
          v_mov_b32 v{t0}, 0''')
    a.label(lp)
    a(f'''global_load_dword v{t1}, v{t0}, s[{sDBG}:{sDBG+1}] offset:{4*idx} sc1
          s_waitcnt vmcnt(0)
          v_cmp_gt_u32 vcc, {val}, v{t1}
          s_cbranch_vccz {dn}
          s_sleep {sleep}
          s_sub_u32 s{sTO}, s{sTO}, 1
          s_cbranch_scc0 {lp}
          s_branch {abort}''')
    a.label(dn)

def wait_flags(a, soff, nl, width, thr, abort, lane, t, sleep=2):
    lp = a.newlabel('L_wf'); dn = a.newlabel('L_wfd')
    sh = {1: 2, 4: 4}[width]
    a(f'''s_mov_b32 s{sTO}, 0x20000
          v_lshlrev_b32 v{t+4}, {sh}, v{lane}
          v_cmp_gt_u32 s[{sM}:{sM+1}], {nl}, v{lane}''')
    if not isinstance(soff, str):
        a(f's_mov_b32 s{sT3}, {soff}'); soff = f's{sT3}'
    a.label(lp)
    if width == 4:
        a(f'''buffer_load_dwordx4 {vr(t,4)}, v{t+4}, {S(sWS)}, {soff} offen sc1
              s_waitcnt vmcnt(0)
              v_min3_u32 v{t}, v{t}, v{t+1}, v{t+2}
              v_min_u32 v{t}, v{t}, v{t+3}''')
    else:
        a(f'''buffer_load_dword v{t}, v{t+4}, {S(sWS)}, {soff} offen sc1
              s_waitcnt vmcnt(0)''')
    a(f'''v_cmp_gt_u32 vcc, {thr}, v{t}
          s_and_b64 vcc, vcc, s[{sM}:{sM+1}]
          s_cbranch_scc0 {dn}
          s_sleep {sleep}
          s_sub_u32 s{sTO}, s{sTO}, 1
          s_cbranch_scc0 {lp}
          s_branch {abort}''')
    a.label(dn)

def poll_sent(a, loads, regs, abort, t, sleep=1):
    lp = a.newlabel('L_ps'); dn = a.newlabel('L_psd')
    a(f's_mov_b32 s{sTO}, 0x20000')
    a.label(lp)
    for x in loads: a(x)
    a('s_waitcnt vmcnt(0)')
    r = list(regs)
    a(f'v_max_u32 v{t}, v{r[0]}, v{r[1]}')
    for k in range(2, len(r), 2): a(f'v_max3_u32 v{t}, v{t}, v{r[k]}, v{r[k+1]}')
    a(f'''v_cmp_eq_u32 vcc, -1, v{t}
          s_cbranch_vccz {dn}
          s_sleep {sleep}
          s_sub_u32 s{sTO}, s{sTO}, 1
          s_cbranch_scc0 {lp}
          s_branch {abort}''')
    a.label(dn)

def frag_src_lane(a, dst, rowstride, t0, t1, perm=False):
    a(f'''v_lshrrev_b32 v{t0}, 2, v{L}
          v_lshrrev_b32 v{t1}, 5, v{L}
          v_lshlrev_b32 v{t1}, 1, v{t1}
          v_and_b32 v{dst}, 3, v{L}
          v_xor_b32 v{t1}, v{t1}, v{dst}''')
    if perm:
        a(f'''v_and_b32 v{dst}, 12, v{t0}
              v_add_u32 v{t0}, v{t0}, v{dst}''')
    a(f'''s_mov_b32 s{sT3}, {rowstride}
          v_mul_lo_u32 v{dst}, v{t0}, s{sT3}
          v_lshl_add_u32 v{dst}, v{t1}, 4, v{dst}''')

def frag_read_lane(a, dst, t0):
    a(f'''v_lshrrev_b32 v{t0}, 3, v{N}
          v_lshlrev_b32 v{t0}, 1, v{t0}
          v_xor_b32 v{t0}, v{t0}, v{G}
          v_lshlrev_b32 v{dst}, 6, v{N}
          v_lshl_add_u32 v{dst}, v{t0}, 4, v{dst}''')

def mark(a, cfg, k, r=12):
    if cfg.get('dbgt'):
        if k == 0: a('s_memrealtime s[80:81]\ns_waitcnt lgkmcnt(0)'); return
        key = (cfg.get('_role', ''), k)
        slot = {('S', 1): 0, ('S', 2): 1, ('S', 5): 2, ('V', 4): 3, ('V', 5): 4, ('', 1): 5, ('', 2): 6, ('O', 5): 7, ('O', 6): 8, ('F', 7): 9}.get(key)
        if slot is None: return
        a(f'''s_memrealtime s[60:61]
              s_waitcnt lgkmcnt(0)
              s_sub_u32 s60, s60, s80
              v_mov_b32 v{r}, s60
              v_mov_b32 v{r+1}, 0
              s_mov_b64 exec, 1
              global_atomic_umax v{r+1}, v{r}, s[{sDBG}:{sDBG+1}] offset:{4*(4+slot)}
              s_mov_b64 exec, -1''')
        return
    if not cfg.get('marks'): return
    a(f'''s_memrealtime s[60:61]
          s_memtime s[64:65]
          s_lshl_b32 s62, s2, 6
          s_add_u32 s62, s62, {DBG_OFF + 4*k}
          s_cmp_eq_u32 s{sW}, 0
          s_cselect_b32 s62, s62, {OOB}
          s_waitcnt lgkmcnt(0)
          v_mov_b32 v{r}, s60
          v_mov_b32 v{r+1}, 0
          buffer_store_dword v{r}, v{r+1}, {S(sWS)}, s62 offen
          s_add_u32 s63, s62, 0x8000
          v_mov_b32 v{r}, s64
          buffer_store_dword v{r}, v{r+1}, {S(sWS)}, s63 offen''')

def gate_go(a, cfg, abort, t0, t1):
    if not cfg.get('gate', 1): return
    g0 = a.newlabel('L_g')
    a(f's_cmp_lg_u32 s{sW}, 0\ns_cbranch_scc1 {g0}')
    wait_dbg(a, D_GO, 32, abort, t0, t1, sleep=16)
    a.label(g0)
    a('s_barrier')

def wait_flags_w0(a, soff, nl, width, thr, abort, lane, t, sleep=2):
    g0 = a.newlabel('L_w0')
    a(f's_cmp_lg_u32 s{sW}, 0\ns_cbranch_scc1 {g0}')
    wait_flags(a, soff, nl, width, thr, abort, lane, t, sleep)
    a.label(g0)
    a('s_barrier')
```

```python
from common import *

L_PA = 0
L_PB = 32768

def p_phase(a, cfg, abort):
    sH, sKK, sCH, sWC, sKE = 14, 15, 16, 17, 18
    vSA, vSB, vSO, vRA, vRB, vL16 = 24, 25, 26, 27, 28, 29
    vAD = 30
    ACC = 40
    FA = 96
    FB = 128
    PK = 184
    lane_setup(a)
    nf = a.newlabel('L_inf')
    a(f'''s_sub_u32 s{sPT}, s{sROLE}, 32
          s_lshl_b32 s{sT0}, s{sPT}, 2
          s_add_u32 s{sT0}, s{sT0}, s{sW}
          s_cmp_lg_u32 s{sT0}, 3
          s_cbranch_scc1 {nf}
          v_lshlrev_b32 v24, 4, v{L}
          v_mov_b32 v4, 0
          v_mov_b32 v5, 0
          v_mov_b32 v6, 0
          v_mov_b32 v7, 0
          s_mov_b32 s{sT0}, {FL_OFF}
          s_mov_b32 s{sT1}, {FL_OFF + 4096}''')
    for k in range(8): a(f'buffer_store_dwordx4 v[4:7], v24, {S(sWS)}, s{sT0 if k < 4 else sT1} offen offset:{(k%4)*1024} sc1')
    a(f'''s_waitcnt vmcnt(0)
          v_mov_b32 v8, 1
          global_store_dword v4, v8, s[{sDBG}:{sDBG+1}] offset:{4*D_FLAGS_OK} sc1''')
    a.label(nf)
    a(f'''s_nop 0
          s_mul_i32 s{sH}, s{sPT}, 4682
          s_lshr_b32 s{sH}, s{sH}, 16
          s_mul_i32 s{sT2}, s{sH}, 14
          s_sub_u32 s19, s{sPT}, s{sT2}
          s_and_b32 s{sCH}, s19, 1
          s_and_b32 s{sKK}, s19, 14
          s_lshr_b32 s{sT0}, s{sW}, 1
          s_add_u32 s{sKK}, s{sKK}, s{sT0}
          s_and_b32 s{sWC}, s{sW}, 1''')
    frag_src_lane(a, vSA, 8192, 6, 7, perm=True)
    def row_dma(r, sT0=sT0, sT1=sT1):
        a(f'''s_lshl_b32 s{sT0}, s{sKK}, 5
              s_lshl_b32 s{sT1}, s{sWC}, 2
              s_add_u32 s{sT0}, s{sT0}, s{sT1}
              s_lshl_b32 s{sT0}, s{sT0}, 13
              s_lshl_b32 s{sT1}, s{sH}, 9
              s_add_u32 s{sT0}, s{sT0}, s{sT1}
              s_lshl_b32 s{sT1}, s{sW}, 13''')
        for ke in range(8):
            a(f'''s_add_u32 m0, s{sT1}, {L_PA + ke*1024 - ke*64}
                  buffer_load_dwordx4 v{vSA}, {S(r)}, s{sT0} offen offset:{ke*64} lds''')
    a(f'''s_load_dwordx2 s[{sR1}:{sR1+1}], s[0:1], 64
          s_load_dwordx2 s[{sR2}:{sR2+1}], s[0:1], 72
          s_mov_b32 s{sR1+2}, 3670016
          s_mov_b32 s{sR1+3}, 0x20000
          s_mov_b32 s{sR2+2}, 3670016
          s_mov_b32 s{sR2+3}, 0x20000
          v_cmp_lt_u32 vcc, 27, v{L}
          v_mov_b32 v6, {896 - 448}
          v_cndmask_b32 v6, 0, v6, vcc
          v_lshl_add_u32 v{vSO}, v{L}, 4, v6
          s_mul_i32 s{sT0}, s{sH}, 229376
          s_mul_i32 s{sT1}, s{sW}, {64*896}
          s_add_u32 s{sT0}, s{sT0}, s{sT1}
          s_mul_i32 s{sT1}, s{sCH}, 448
          s_add_u32 s{sT0}, s{sT0}, s{sT1}
          s_mul_i32 s{sT1}, s{sW}, {64*448}
          s_add_u32 s{sT1}, s{sT1}, {L_PB}
          s_mov_b32 s{sT2}, 0
          s_lshr_b32 s{sKE}, s19, 1
          s_mul_i32 s{sKE}, s{sKE}, 5
          s_waitcnt lgkmcnt(0)''')
    row_dma(sR1, 21, 22)
    a('s_mov_b32 exec_hi, 0x00ffffff')
    lp = a.newlabel('L_pwo')
    a.label(lp)
    a(f'''s_and_b32 s{sKE}, s{sKE}, 31
          s_mul_i32 s{sT3}, s{sKE}, 896
          s_add_u32 m0, s{sT1}, s{sT3}
          s_lshl_b32 s{sT3}, s{sT3}, 1
          s_add_u32 s{sT3}, s{sT3}, s{sT0}
          buffer_load_dwordx4 v{vSO}, {S(sR2)}, s{sT3} offen lds
          s_add_u32 s{sKE}, s{sKE}, 1
          s_add_u32 s{sT2}, s{sT2}, 1
          s_cmp_lt_u32 s{sT2}, 32
          s_cbranch_scc1 {lp}
          s_mov_b64 exec, -1''')
    mark(a, cfg, 10)
    frag_src_lane(a, vSB, 8192, 6, 7)
    frag_read_lane(a, vRA, 6)
    a(f'''s_lshr_b32 s{sT0}, s{sW}, 1
          s_lshl_b32 s{sT0}, s{sT0}, 14
          v_add_u32 v{vRA}, s{sT0}, v{vRA}
          v_lshlrev_b32 v{vL16}, 4, v{L}
          v_lshrrev_b32 v6, 2, v{N}
          v_lshl_add_u32 v6, v{G}, 3, v6
          v_mul_u32_u24 v{vRB}, 448, v6
          v_and_b32 v6, 3, v{N}
          v_lshl_add_u32 v{vRB}, v6, 3, v{vRB}
          s_mul_i32 s{sT0}, s{sWC}, 224
          s_add_u32 s{sT0}, s{sT0}, {L_PB}
          v_add_u32 v{vRB}, s{sT0}, v{vRB}
          s_mul_i32 s{sT1}, s{sH}, 28
          s_mov_b32 s{sT2}, {WF_MAT}''')
    for jt in range(7):
        a(f'''v_add_u32 v6, {16*jt}, v{N}
              v_mul_u32_u24 v7, 2341, v6
              v_lshrrev_b32 v7, 16, v7
              v_mul_u32_u24 v8, 28, v7
              v_sub_u32 v6, v6, v8
              v_add_u32 v6, s{sT1}, v6
              v_mul_lo_u32 v7, v7, s{sT2}
              v_lshrrev_b32 v8, 4, v6
              v_mul_u32_u24 v8, 14336, v8
              v_and_b32 v6, 15, v6
              v_lshl_add_u32 v6, v{G}, 4, v6
              v_lshl_add_u32 v6, v6, 4, v8
              v_add_u32 v{vAD+jt}, v6, v7''')
    def compute(tr):
        def reads(b, ko):
            r = [f'ds_read_b128 {vr(FA+8*b+4*mt,4)}, v{vRA} offset:{mt*8192 + ko*1024}' for mt in range(2)]
            for jt in range(7):
                d = FB + 28*b + 4*jt
                if tr:
                    r += [f'ds_read_b64_tr_b16 {vr(d,2)}, v{vRB} offset:{(ko%4)*32*448 + jt*32}',
                          f'ds_read_b64_tr_b16 {vr(d+2,2)}, v{vRB} offset:{(ko%4)*32*448 + 4*448 + jt*32}']
                else:
                    r += [f'ds_read_b128 {vr(d,4)}, v{vRB} offset:{jt*8192 + ko*1024}']
            return r
        for x in reads(0, 0): a(x)
        for ke in range(8):
            b = ke % 2
            if ke == 3: a(f'v_add_u32 v{vRB}, {4*32*448}, v{vRB}')
            q = reads(1 - b, ke + 1) if ke < 7 else []
            a('s_waitcnt lgkmcnt(0)')
            for jt in range(7):
                for mt in range(2):
                    d = ACC + 28*mt + 4*jt
                    a(f'v_mfma_f32_16x16x32_bf16 {vr(d,4)}, {vr(FA+8*b+4*mt,4)}, {vr(FB+28*b+4*jt,4)}, {vr(d,4) if ke else 0}')
                    if q: a(q.pop(0))
                    if len(q) > 13 - 2*jt - mt: a(q.pop(0))
            for x in q: a(x)
    def pack(jt, scale):
        for mt in range(2):
            d = ACC + 28*mt + 4*jt
            if scale:
                for r in range(4): a(f'v_mul_f32 v{d+r}, s{sT3}, v{d+r}')
            a(f'''v_cvt_pk_bf16_f32 v{PK+4*jt+2*mt}, v{d}, v{d+1}
                  v_cvt_pk_bf16_f32 v{PK+4*jt+2*mt+1}, v{d+2}, v{d+3}''')
    def flag(off_code, val='1'):
        sk = a.newlabel('L_pf')
        a(f'''s_cmp_lg_u32 s{sW}, 0
              s_cbranch_scc1 {sk}''')
        a(off_code)
        a(f'''v_mov_b32 v6, 0
              v_mov_b32 v7, {val}
              s_mov_b64 exec, 1
              buffer_store_dword v7, v6, {S(sWS)}, s{sT0} offen sc1
              s_mov_b64 exec, -1''')
        a.label(sk)
    mark(a, cfg, 11)
    wait_dbg_w0 = a.newlabel('L_pw0')
    a(f'''s_cmp_lg_u32 s{sW}, 0
          s_cbranch_scc1 {wait_dbg_w0}''')
    wait_dbg(a, D_FLAGS_OK, 1, abort, 6, 7)
    a.label(wait_dbg_w0)
    a('s_waitcnt vmcnt(0)\ns_barrier')
    mark(a, cfg, 1)
    compute(True)
    mark(a, cfg, 12)
    a(f'''s_lshl_b32 s{sT0}, s{sCH}, 3
          s_lshl_b32 s{sT1}, s{sWC}, 2
          s_add_u32 s{sT0}, s{sT0}, s{sT1}
          s_add_u32 s{sT0}, s{sT0}, 16
          s_mul_i32 s{sT0}, s{sT0}, {WF_MAT}
          s_lshl_b32 s{sT1}, s{sKK}, 10
          s_add_u32 s{sT0}, s{sT0}, s{sT1}''')
    for jt in range(7):
        pack(jt, False)
        a(f'buffer_store_dwordx4 {vr(PK+4*jt,4)}, v{vAD+jt}, {S(sWS)}, s{sT0} offen sc1')
    fin = a.newlabel('L_pfin'); noa = a.newlabel('L_pnoa'); bf = a.newlabel('L_pbf')
    a(f'''s_sub_u32 s19, s{sPT}, 96
          s_cmp_lt_u32 s19, 112
          s_cbranch_scc0 {noa}
          s_load_dwordx2 s[{sR1}:{sR1+1}], s[0:1], 48
          s_load_dwordx2 s[{sR2}:{sR2+1}], s[0:1], 56
          s_mul_i32 s{sH}, s19, 9363
          s_lshr_b32 s{sH}, s{sH}, 16
          s_mul_i32 s{sT0}, s{sH}, 7
          s_sub_u32 s{sCH}, s19, s{sT0}
          s_lshl_b32 s{sKK}, s{sCH}, 1
          s_lshr_b32 s{sT0}, s{sW}, 1
          s_add_u32 s{sKK}, s{sKK}, s{sT0}
          s_waitcnt lgkmcnt(0)
          s_barrier''')
    row_dma(sR1)
    a(f'''s_waitcnt vmcnt(8)
          s_branch {bf}''')
    a.label(noa)
    a('s_waitcnt vmcnt(0)')
    a.label(bf)
    a('s_barrier')
    flag(f's_lshl_b32 s{sT0}, s{sPT}, 2\ns_add_u32 s{sT0}, s{sT0}, {FL_OFF + F_B}')
    mark(a, cfg, 2)
    px = a.newlabel('L_ppx')
    a(f'''s_cmp_lt_u32 s{sPT}, 96
          s_cbranch_scc1 {fin}
          s_cmp_lt_u32 s19, 112
          s_cbranch_scc0 {px}
          s_mov_b32 s{sKK}, 4
          s_mov_b32 s23, 1''')
    ap = a.newlabel('L_pap')
    a.label(ap)
    a(f'''s_mul_i32 s{sT0}, s{sW}, {112*8192}
          s_lshl_b32 s{sT1}, s{sH}, 9
          s_add_u32 s{sT0}, s{sT0}, s{sT1}
          s_lshl_b32 s{sT1}, s{sKK}, 17
          s_add_u32 s{sT0}, s{sT0}, s{sT1}
          s_mul_i32 s{sT1}, s{sW}, 24576
          s_add_u32 s{sT1}, s{sT1}, {L_PB}
          s_lshl_b32 s{sKE}, s{sCH}, 1
          s_mov_b32 s{sT2}, 0''')
    lp = a.newlabel('L_pwk')
    a.label(lp)
    a(f'''s_cmp_ge_u32 s{sKE}, 12
          s_cselect_b32 s{sT3}, 12, 0
          s_sub_u32 s{sKE}, s{sKE}, s{sT3}
          s_lshr_b32 s21, s{sKE}, 2
          s_lshl_b32 s21, s21, 17
          s_and_b32 s22, s{sKE}, 3
          s_lshl_b32 s22, s22, 7
          s_add_u32 s21, s21, s22
          s_add_u32 s21, s21, s{sT0}
          s_lshl_b32 s22, s{sKE}, 11
          s_add_u32 m0, s22, s{sT1}
          s_add_u32 s{sKE}, s{sKE}, 1
          buffer_load_dwordx4 v{vSB}, {S(sR2)}, s21 offen lds
          s_add_u32 m0, m0, {1024-64}
          s_add_u32 s{sT2}, s{sT2}, 1
          buffer_load_dwordx4 v{vSB}, {S(sR2)}, s21 offen offset:64 lds
          s_cmp_lt_u32 s{sT2}, 12
          s_cbranch_scc1 {lp}''')
    frag_read_lane(a, vRA, 6)
    a(f'''v_add_u32 v{vRB}, s{sT1}, v{vRA}
          s_waitcnt vmcnt(0)
          s_barrier''')
    def rdA(ke):
        b = ke % 2
        return [f'ds_read_b128 {vr(FB+28*b+4*rt,4)}, v{vRA} offset:{rt*8192 + ke*1024}' for rt in range(4)] + \
               [f'ds_read_b128 {vr(FB+28*b+16+4*jt,4)}, v{vRB} offset:{jt*8192 + ke*1024}' for jt in range(3)]
    for x in rdA(0): a(x)
    for ke in range(8):
        q = rdA(ke + 1) if ke < 7 else []
        a('s_waitcnt lgkmcnt(0)')
        for jt in range(3):
            for rt in range(4):
                d = vr(ACC + (jt*4+rt)*4, 4)
                a(f'v_mfma_f32_16x16x32_bf16 {d}, {vr(FB+28*(ke%2)+4*rt,4)}, {vr(FB+28*(ke%2)+16+4*jt,4)}, {d if ke else 0}')
                if q: a(q.pop(0))
    a(f'''s_mul_i32 s{sT0}, s{sH}, {WF_MAT}
          s_mul_i32 s{sT1}, s{sW}, {7*14336}
          s_add_u32 s{sT0}, s{sT0}, s{sT1}
          s_lshl_b32 s{sT1}, s{sCH}, 11
          s_add_u32 s{sT0}, s{sT0}, s{sT1}
          s_mul_i32 s{sT1}, s{sKK}, 14336
          s_add_u32 s{sT0}, s{sT0}, s{sT1}''')
    for jt in range(3):
        for hf in range(2):
            d = ACC + (jt*4+2*hf)*4; o = PK + (jt*2+hf)*4
            for k in range(4): a(f'v_cvt_pk_bf16_f32 v{o+k}, v{d+2*k}, v{d+2*k+1}')
            a(f'buffer_store_dwordx4 {vr(o,4)}, v{vL16}, {S(sWS)}, s{sT0} offen offset:{hf*1024} sc1')
        a(f's_add_u32 s{sT0}, s{sT0}, 14336')
    a('s_waitcnt vmcnt(0)\ns_barrier')
    flag(f's_lshl_b32 s{sT0}, s{sH}, 6\ns_lshl_b32 s{sT1}, s{sCH}, 2\ns_add_u32 s{sT0}, s{sT0}, s{sT1}\ns_add_u32 s{sT0}, s{sT0}, {FL_OFF + F_A}', 's23')
    if cfg.get('marks'):
        mk = a.newlabel('L_pmk'); a(f's_cmp_lg_u32 s23, 1\ns_cbranch_scc1 {mk}'); mark(a, cfg, 13); a.label(mk)
    gate_go(a, cfg, abort, 6, 7)
    a(f'''s_lshr_b32 s{sKK}, s{sKK}, 2
          s_add_u32 s23, s23, 1
          s_cmp_le_u32 s23, 3
          s_cbranch_scc1 {ap}''')
    a.label(px)
    a(f'''s_mul_i32 s{sT0}, s19, {REC_STR}
          s_add_u32 s{sT0}, s{sT0}, {REC_OFF + R_PX}
          s_cmp_lt_u32 s19, 64
          s_cbranch_scc0 {fin}
          v_lshlrev_b32 v6, 4, v{vTID}
          v_mov_b32 v8, -1
          v_mov_b32 v9, -1
          v_mov_b32 v10, -1
          v_mov_b32 v11, -1''')
    for k in range(10):
        a(f'buffer_store_dwordx4 v[8:11], v6, {S(sWS)}, s{sT0} offen sc1\ns_add_u32 s{sT0}, s{sT0}, 4096')
    a(f'''s_waitcnt vmcnt(0)
          s_barrier
          s_cmp_lg_u32 s{sW}, 0
          s_cbranch_scc1 {fin}
          v_mov_b32 v6, 0
          v_mov_b32 v7, 1
          s_mov_b64 exec, 1
          global_atomic_add v6, v7, s[{sDBG}:{sDBG+1}] offset:{4*D_SENT2}
          s_mov_b64 exec, -1''')
    a.label(fin)
```
